```python
import torch

def _softmax(x, axis=-1):
    return torch.softmax(x, dim=axis)
def _gelu(x):
    return torch.nn.functional.gelu(x, approximate="tanh")
def _silu(x):
    return torch.nn.functional.silu(x)
def _sigmoid(x):
    return torch.sigmoid(x)
def _layernorm(x, axis=-1, eps=1e-5):
    m = x.mean(dim=axis, keepdim=True)
    v = x.var(dim=axis, keepdim=True, unbiased=False)
    return (x - m) / torch.sqrt(v + eps)
def _scatter_add(tgt, idx, src, axis=0):
    return tgt.clone().index_add_(axis, idx, src)
def _segment_sum(src, seg, n):
    out = torch.zeros((n,) + src.shape[1:], dtype=src.dtype)
    return out.index_add_(0, seg, src)
def _pad(x, pw):
    flat = tuple(v for pair in reversed(pw) for v in pair)
    return torch.nn.functional.pad(x, flat)

kernel_name = 'concat_heads__gqa_block_cached__compressed_kv_cla__decode'

def setup_inputs():

    _w = (lambda a: (lambda t: t.to(torch.bfloat16) if t.is_floating_point() else t)(torch.as_tensor(a)))
    def _A_setup():
        B, Sq, D = 4, 1, 576
        Hq, Hkv, Sk, Dh = 32, 16, 4096, 128
        assert Hq % Hkv == 0, (Hq, Hkv)
        return {
            "x": _w((lambda *s: torch.randn(*s, dtype=torch.bfloat16) * 1.6)(B, Sq, D)),
            "k_cache": _w((lambda *s: torch.randn(*s, dtype=torch.bfloat16) * 1.6)(B, Hkv, Sk, Dh)),
            "v_cache": _w((lambda *s: torch.randn(*s, dtype=torch.bfloat16) * 0.05)(B, Hkv, Sk, Dh)),
            "wq": _w((lambda *s: torch.randn(*s, dtype=torch.bfloat16) * 1.6)(D, Hq * Dh) * (D ** -0.5)),
            "wo": _w((lambda *s: torch.randn(*s, dtype=torch.bfloat16) * 0.05)(Hq * Dh, D) * ((Hq * Dh) ** -0.5)),
        }
    _A_in = _A_setup()

    def _B_setup():
        B, H, Sq, Sk, D, M = 4, 32, 1, 4096, 128, 576
        Dc = 4 * D
        return {
            "x": _w((lambda *s: torch.randn(*s, dtype=torch.bfloat16) * 3.2)(B, Sq, M)),
            "c_kv": _w((lambda *s: torch.randn(*s, dtype=torch.bfloat16) * 0.1)(B, Sk, Dc)),
            "w_q": _w((lambda *s: torch.randn(*s, dtype=torch.bfloat16) * 6.4)(M, H, D) * (M ** -0.5)),
            "w_uk": _w((lambda *s: torch.randn(*s, dtype=torch.bfloat16) * 6.4)(Dc, H, D) * (Dc ** -0.5)),
            "w_uv": _w((lambda *s: torch.randn(*s, dtype=torch.bfloat16) * 0.1)(Dc, H, D) * (Dc ** -0.5)),
            "w_o": _w((lambda *s: torch.randn(*s, dtype=torch.bfloat16) * 0.1)(H, D, M) * ((H * D) ** -0.5)),
        }
    _B_in = _B_setup()

    return {
        "A_x": _A_in["x"],
        "A_k_cache": _A_in["k_cache"],
        "A_v_cache": _A_in["v_cache"],
        "A_wq": _A_in["wq"],
        "A_wo": _A_in["wo"],
        "B_x": _B_in["x"],
        "B_c_kv": _B_in["c_kv"],
        "B_w_q": _B_in["w_q"],
        "B_w_uk": _B_in["w_uk"],
        "B_w_uv": _B_in["w_uv"],
        "B_w_o": _B_in["w_o"],
    }

def reference(A_x, A_k_cache, A_v_cache, A_wq, A_wo, B_x, B_c_kv, B_w_q, B_w_uk, B_w_uv, B_w_o):
    def _A_ref(x, k_cache, v_cache, wq, wo):
        B, Sq, D = x.shape
        Hq, Dh = 32, 128
        Hkv = k_cache.shape[1]
        rep = Hq // Hkv
        q = (lambda x, *d: x.permute(*d))((x @ wq).reshape(B, Sq, Hq, Dh), 0, 2, 1, 3)
        k = (lambda x, n, axis: torch.repeat_interleave(x, n, dim=axis))(k_cache, rep, axis=1)
        v = (lambda x, n, axis: torch.repeat_interleave(x, n, dim=axis))(v_cache, rep, axis=1)
        scores = torch.einsum("bhqd,bhkd->bhqk", q, k) * (Dh ** -0.5)
        p = _softmax(scores, axis=-1)
        o = torch.einsum("bhqk,bhkd->bhqd", p, v)
        return (lambda x, *d: x.permute(*d))(o, 0, 2, 1, 3).reshape(B, Sq, Hq * Dh) @ wo

    def _B_ref(x, c_kv, w_q, w_uk, w_uv, w_o):
        B, Sq, M = x.shape[0], x.shape[1], x.shape[2]
        Sk = c_kv.shape[1]
        H, D = w_q.shape[1], w_q.shape[2]
        q = torch.einsum("bqm,mhd->bhqd", x, w_q)
        k = torch.einsum("bkc,chd->bhkd", c_kv, w_uk)
        v = torch.einsum("bkc,chd->bhkd", c_kv, w_uv)
        scores = torch.einsum("bhqd,bhkd->bhqk", q, k) * (D ** -0.5)
        off = Sk - Sq
        qi = torch.arange(Sq)[:, None]
        kj = torch.arange(Sk)[None, :]
        cmask = kj <= (qi + off)
        scores = torch.where(cmask[None, None], scores, -1e9)
        p = _softmax(scores, axis=-1)
        ctx = torch.einsum("bhqk,bhkd->bhqd", p, v)
        return torch.einsum("bhqd,hdm->bqm", ctx, w_o)

    a = _A_ref(A_x, A_k_cache, A_v_cache, A_wq, A_wo)
    b = _B_ref(B_x, B_c_kv, B_w_q, B_w_uk, B_w_uv, B_w_o)
    return torch.concatenate([a, b], axis=-1)
```

```python
import re
NAME = "concat_heads__gqa_block_cached__compressed_kv_cla__decode"
HEADER_COMMENT = open("cdna_kernels/%s.s.ref" % NAME).read().split("; Override launch")[0]

TRANS = ("v_exp_f32", "v_log_f32", "v_rcp_f32", "v_rsq_f32", "v_sqrt_f32", "v_sin_f32", "v_cos_f32", "v_rcp_iflag_f32")

def regs_of(tok):
    tok = tok.strip()
    tok = tok.lstrip("-")
    if tok.startswith("abs(") or tok.startswith("|"):
        tok = tok.replace("abs(", "").replace(")", "").replace("|", "")
    m = re.fullmatch(r"([vsa])(\d+)", tok)
    if m: return [(m.group(1), int(m.group(2)))]
    m = re.fullmatch(r"([vsa])\[(\d+):(\d+)\]", tok)
    if m: return [(m.group(1), i) for i in range(int(m.group(2)), int(m.group(3)) + 1)]
    if tok in ("vcc", "vcc_lo", "vcc_hi"): return [("vcc", 0)]
    if tok in ("exec", "exec_lo", "exec_hi"): return [("exec", 0)]
    if tok == "m0": return [("m0", 0)]
    return []

class Ins:
    def __init__(self, text):
        self.text = text
        t = text.split(";")[0].strip()
        parts = t.split(None, 1)
        self.op = parts[0]
        rest = parts[1] if len(parts) > 1 else ""
        ops, cur, depth = [], "", 0
        for ch in rest:
            if ch == "[": depth += 1
            if ch == "]": depth -= 1
            if ch == "," and depth == 0:
                ops.append(cur); cur = ""
            else:
                cur += ch
        if cur.strip(): ops.append(cur)
        self.mods = ""
        if ops:
            l = ops[-1].strip().split(None, 1)
            ops[-1] = l[0]
            if len(l) > 1: self.mods = l[1]
        self.ops = [o.strip() for o in ops]
        op = self.op
        self.kind = "other"
        self.dst, self.src = [], []
        R = [regs_of(o) for o in self.ops]
        flat = lambda L: [x for l in L for x in l]
        if op.startswith("v_mfma"):
            self.kind = "mfma"; self.dst = R[0]; self.srcA = R[1]; self.srcB = R[2]; self.srcC = R[3]; self.src = flat(R[1:])
        elif op.startswith("v_"):
            self.kind = "valu"
            self.dst = R[0]; self.src = flat(R[1:])
            if op.startswith("v_permlane") and "swap" in op:
                self.dst = R[0] + R[1]; self.src = R[0] + R[1]
            if op.startswith(("v_fmac", "v_dot2c", "v_pk_fmac")) or "dpp" in op or "sdwa" in op or op.startswith("v_writelane"):
                self.src = self.src + R[0]
            if op.startswith("v_cndmask") and len(self.ops) == 3:
                self.src = self.src + [("vcc", 0)]
            if op.startswith(("v_add_co", "v_sub_co", "v_addc_co")):
                self.dst = R[0] + R[1]; self.src = flat(R[2:])
        elif op.startswith(("buffer_load", "global_load")):
            self.kind = "vmem"
            if re.search(r"\blds\b", self.mods) or op.startswith("global_load_lds"):
                self.src = flat(R) + [("m0", 0)]; self.isdma = True
            else:
                self.dst = R[0]; self.src = flat(R[1:])
        elif op.startswith(("buffer_store", "global_store", "buffer_atomic", "global_atomic")):
            self.kind = "vmem"; self.src = flat(R)
            self.store_data = R[0] if op.startswith("buffer") else R[1]
            if "atomic" in op and re.search(r"\bsc0\b", self.mods): self.dst = R[0]
        elif op.startswith("ds_"):
            self.kind = "ds"
            if op.startswith(("ds_read", "ds_bpermute", "ds_permute", "ds_swizzle")) or "_rtn" in op:
                self.dst = R[0]; self.src = flat(R[1:])
            else:
                self.src = flat(R)
        elif op.startswith("s_"):
            self.kind = "salu"
            if R and not op.startswith(("s_cmp", "s_cbranch", "s_branch", "s_waitcnt", "s_nop", "s_sleep", "s_barrier", "s_setprio", "s_endpgm", "s_bitcmp")):
                self.dst = R[0]; self.src = flat(R[1:])
            else:
                self.src = flat(R)
    def states(self):
        if self.op == "s_nop": return int(self.ops[0], 0) + 1
        return 1

def need(p, c):
    n = 0
    pd, cs, cd = set(p.dst), set(c.src), set(c.dst)
    if p.kind == "valu":
        vw = {r for r in pd if r[0] in "va"}
        sw = {r for r in pd if r[0] in ("s", "vcc")}
        if vw & cs:
            if c.kind == "valu" and "dpp" in c.op:
                n = max(n, 2)
            if c.kind == "mfma": n = max(n, 2)
            if c.op.startswith(("v_readlane", "v_readfirstlane")): n = max(n, 1)
            if c.op.startswith("v_permlane"): n = max(n, 2)
            if p.op.startswith(TRANS) and c.kind in ("valu", "mfma") and not c.op.startswith(TRANS): n = max(n, 1)
            if p.op.startswith(TRANS) and c.kind in ("vmem", "ds"): n = max(n, 1)
            if "sdwa" in p.op and c.kind == "valu": n = max(n, 1)
        if p.op.startswith("v_dot") and (vw & (cs | cd)):
            same = p.op.replace("_dpp", "").replace("_e32", "") == c.op.replace("_dpp", "").replace("_e32", "")
            if same:
                ab = set(regs_of(c.ops[1])) | set(regs_of(c.ops[2]))
                if vw & ab: n = max(n, 3)
            else:
                n = max(n, 3)
        if sw & cs:
            if c.kind in ("valu", "mfma"):
                n = max(n, 2)
                if c.op.startswith(("v_readlane", "v_writelane")): n = max(n, 4)
            if c.kind == "vmem": n = max(n, 5)
        if ("exec", 0) in pd: n = max(n, 5)
    if p.kind == "mfma":
        passes = 8 if "32x32" in p.op else 4
        tab = {4: (0, 6, 8, 8, 3), 8: (0, 10, 12, 12, 7)}[passes]
        if c.kind == "mfma":
            if pd & set(c.srcC):
                n = max(n, tab[0] if (c.srcC == p.dst and c.op == p.op) else tab[1])
            if pd & (set(c.srcA) | set(c.srcB)): n = max(n, tab[2])
            if pd & cd and not (pd & set(c.srcC)): n = max(n, tab[3])
        elif c.kind in ("valu", "vmem", "ds"):
            if pd & (cs | cd): n = max(n, tab[3])
            if c.kind == "valu" and set(p.srcC) & cd: n = max(n, tab[4])
    if p.kind == "salu" and ("m0", 0) in pd and ("m0", 0) in cs and c.kind in ("vmem", "ds"):
        n = max(n, 1)
    if p.kind == "vmem" and hasattr(p, "store_data") and len(p.store_data) >= 3:
        if set(p.store_data) & cd: n = max(n, 2)
    return n

def worst(p):
    if p.kind == "mfma": return 12 if "32x32" in p.op else 8
    if p.kind == "valu":
        if any(r[0] in ("s", "vcc", "exec") for r in p.dst): return 5
        if p.op.startswith("v_dot"): return 3
        return 2
    if p.kind == "salu" and ("m0", 0) in p.dst: return 1
    if p.kind == "vmem" and hasattr(p, "store_data") and len(p.store_data) >= 3: return 2
    return 0

class Asm:
    def __init__(self):
        self.items = []
        self.uid = 0
    def __call__(self, s):
        for l in s.split("\n"):
            l = l.strip()
            if not l: continue
            if l.startswith(";") or l.endswith(":") or l.startswith("."):
                self.items.append(l)
            else:
                self.items.append(Ins(l))
    def label(self, s): self.items.append(s + ":")
    def new_label(self, base="L"):
        self.uid += 1
        return f"{base}_{self.uid}"
    def text(self):
        out = []
        hist = []
        def dist_pad(c, flush=False):
            d = 0; pad = 0
            for p in reversed(hist):
                r = worst(p) if flush else need(p, c)
                if r - d > pad: pad = r - d
                d += p.states()
                if d >= 12: break
            return pad
        for it in self.items:
            if isinstance(it, str):
                out.append(it if it.endswith(":") else "    " + it)
                continue
            isbr = it.op.startswith(("s_cbranch", "s_branch", "s_setpc", "s_swappc"))
            pad = dist_pad(it, flush=isbr)
            if isbr: pad = max(0, pad - 1)
            if pad > 0:
                nop = Ins(f"s_nop {pad - 1}")
                out.append("    " + nop.text); hist.append(nop)
            out.append("    " + it.text); hist.append(it)
            if len(hist) > 16: hist = hist[-16:]
        return "\n".join(out) + "\n"
    def max_regs(self):
        mv = ms = -1
        for it in self.items:
            if isinstance(it, Ins):
                for k, n in it.dst + it.src:
                    if k == "v": mv = max(mv, n)
                    if k == "s": ms = max(ms, n)
        return mv, ms

def kernel_file(launches, kernels, extra_comment=""):
    out = HEADER_COMMENT + extra_comment
    if len(launches) == 1 and launches[0][0] == NAME + "_kernel":
        _, g, b, lds = launches[0]
        out += "; @launch grid=(%d,%d,%d) block=(%d,%d,%d) lds=%d\n" % (*g, *b, lds)
    else:
        for (lab, g, b, lds) in launches:
            out += "; @launch kernel=%s grid=(%d,%d,%d) block=(%d,%d,%d) lds=%d\n" % (lab, *g, *b, lds)
    out += '.amdgcn_target "amdgcn-amd-amdhsa--gfx950"\n.text\n'
    for (lab, body, vg, sg, acc) in kernels:
        out += ".globl %s\n.p2align 8\n.type %s,@function\n%s:\n" % (lab, lab, lab)
        out += body
    out += '.section .rodata,"a"\n'
    for (lab, body, vg, sg, acc) in kernels:
        out += """.p2align 6
.amdhsa_kernel %s
  .amdhsa_next_free_vgpr %d
  .amdhsa_next_free_sgpr %d
  .amdhsa_accum_offset %d
  .amdhsa_group_segment_fixed_size 0
  .amdhsa_kernarg_size 112
  .amdhsa_user_sgpr_count 2
  .amdhsa_user_sgpr_kernarg_segment_ptr 1
  .amdhsa_system_sgpr_workgroup_id_x 1
.end_amdhsa_kernel
""" % (lab, vg, sg, acc)
    return out
```

```python
import sys, math, struct
from asmlib import *

WS_EP   = 0x00000
WS_OP   = 0x10000
WS_T1S  = 0x50000
WS_QABS = 0x70000
WS_YA   = 0x90000
WS_YB   = 0xD8000
WS_BP   = 0x200000
WS_SIZE = 0x10000000
STAMPOFF = 200 << 20
PH_OFF = 201 << 20
L_PQ    = 73728
L_P     = 131072
L_MX    = 139264
L_ACOMB = 147456
L_AST   = 151552
L_CNT   = 151616
L_SM    = 151680
LDS_SIZE = 163840
OOB = 0x40000000
NEGMAX = 0xFF7FFFFF
CSC = struct.unpack("<I", struct.pack("<f", (128 ** -0.5) * math.log2(math.e)))[0]
DPPM = "row_mask:0xf bank_mask:0xf"
SPIN = 200000
P_AX, P_K, P_V, P_WQ, P_WO, P_BX, P_CKV, P_BWQ, P_WUK, P_WUV, P_BWO, P_OUT, P_DBG, P_WS = [64 + 2 * i for i in range(14)]
S_TAG = 63
NSPLIT_B = 32
SH1 = (30, 30, 45, 23)
SH2 = (26, 26, 41, 35)
def share(pair, t):
    sh = SH1 if pair < 32 else SH2
    u0 = sum(sh[:t])
    return 32 * u0, 32 * (u0 + sh[t])
def vr(b, n=4): return f"v[{b}:{b+n-1}]"
MF = "v_mfma_f32_16x16x32_bf16"

class Gen:
    def __init__(self, en, fused, opt, tag=""):
        self.a = Asm(); self.en = en; self.fused = fused; self.o = opt; self.stamps = opt.stamps and fused; self.tag = tag
    def L(self, s): return s + self.tag
    def srd(self, d, p, size):
        self.a(f"s_mov_b32 s{d}, s{p}\ns_mov_b32 s{d+1}, s{p+1}\ns_mov_b32 s{d+2}, {size}\ns_mov_b32 s{d+3}, 0x20000")
    def stamp(self, k, vt=250):
        if not self.stamps: return
        self.a(f"""
        s_memrealtime s[92:93]
        s_lshl_b32 s94, s2, 7
        s_add_u32 s94, s94, {PH_OFF + 8 * k}
        s_waitcnt lgkmcnt(0)
        v_mov_b32 v{vt}, s92
        v_mov_b32 v{vt+1}, s93
        v_mov_b32 v{vt+2}, 0
        s_mov_b64 s[96:97], exec
        s_mov_b64 exec, 1
        buffer_store_dwordx2 v[{vt}:{vt+1}], v{vt+2}, s[4:7], s94 offen
        s_mov_b64 exec, s[96:97]
        """)
    def wait_lds(self, slot, target, vt, sleep=0):
        a = self.a; lab = a.new_label(self.L("L_wl"))
        a(f"""
        v_mov_b32 v{vt}, {L_CNT + 4 * slot}
        s_mov_b32 s29, {SPIN * 8}
        {lab}:
        ds_read_b32 v{vt+1}, v{vt}
        s_sub_u32 s29, s29, 1
        s_cbranch_scc1 {lab}_x
        s_waitcnt lgkmcnt(0)
        v_readfirstlane_b32 s28, v{vt+1}
        s_cmp_ge_u32 s28, {target}
        s_cbranch_scc1 {lab}_x
        """)
        if sleep: a(f"s_sleep {sleep}")
        a(f"s_branch {lab}\n{lab}_x:\ns_waitcnt lgkmcnt(0)")
    def sbar(self, k, vt):
        self.a(f"""
        s_waitcnt lgkmcnt(0)
        v_mov_b32 v{vt}, {L_CNT + 4 * k}
        v_mov_b32 v{vt+1}, 1
        s_mov_b64 exec, 1
        ds_add_u32 v{vt}, v{vt+1}
        s_mov_b64 exec, -1
        """)
        self.wait_lds(k, 4, vt)
    def signal(self, k, vt):
        if not self.fused: return
        self.a(f"""
        v_mov_b32 v{vt}, {L_CNT + 4 * k}
        v_mov_b32 v{vt+1}, 1
        s_mov_b64 exec, 1
        ds_add_u32 v{vt}, v{vt+1}
        s_mov_b64 exec, -1
        """)
    def get_tag(self, vt):
        if not self.fused: return
        self.wait_lds(12, 1, vt, 1)
        self.a(f"ds_read_b32 v{vt+1}, v{vt} offset:4\ns_waitcnt lgkmcnt(0)\nv_readfirstlane_b32 s{S_TAG}, v{vt+1}")
    def check_flags(self, vaid, vt):
        if not self.fused: return
        a = self.a; lab = a.new_label(self.L("L_cf"))
        a(f"""
        v_lshlrev_b32 v{vt}, 10, v{vaid}
        s_mov_b32 s29, {SPIN}
        s_mov_b32 s28, {WS_OP + 896}
        {lab}:
        buffer_load_dword v{vt+1}, v{vt}, s[4:7], s28 offen sc1
        s_sub_u32 s29, s29, 1
        s_cbranch_scc1 {lab}_x
        s_waitcnt vmcnt(0)
        v_cmp_ne_u32 vcc, s{S_TAG}, v{vt+1}
        s_cbranch_vccz {lab}_x
        s_sleep 4
        s_branch {lab}
        {lab}_x:
        s_waitcnt vmcnt(0)
        """)
    def poll(self, loads, regs, vt, sleep=4):
        a = self.a; lab = a.new_label(self.L("L_poll"))
        a(f"s_mov_b32 s29, {SPIN}\n{lab}:")
        for l in loads: a(l)
        a(f"s_sub_u32 s29, s29, 1\ns_cbranch_scc1 {lab}_x\ns_waitcnt vmcnt(0)")
        rs = list(regs); cur = rs[0]; rest = rs[1:]
        while rest:
            if len(rest) >= 2:
                a(f"v_max3_u32 v{vt}, v{cur}, v{rest[0]}, v{rest[1]}"); rest = rest[2:]
            else:
                a(f"v_max_u32 v{vt}, v{cur}, v{rest[0]}"); rest = rest[1:]
            cur = vt
        a(f"v_cmp_eq_u32 vcc, -1, v{cur}\ns_cbranch_vccz {lab}_x")
        if sleep: a(f"s_sleep {sleep}")
        a(f"s_branch {lab}\n{lab}_x:\ns_waitcnt vmcnt(0)")
    def sanitize(self, regs):
        for r in regs: self.a(f"v_min_u32 v{r}, -2, v{r}")
    def xg_reduce(self, op, x, y):
        self.a(f"""
        v_mov_b32 v{y}, v{x}
        v_permlane16_swap_b32 v{x}, v{y}
        {op} v{x}, v{x}, v{y}
        v_mov_b32 v{y}, v{x}
        v_permlane32_swap_b32 v{x}, v{y}
        {op} v{x}, v{x}, v{y}
        """)
    def dma(self, voff, srd, soff, imm=0, depth=None):
        self.a(f"s_waitcnt vmcnt({(depth or self.o.DS) - 1})")
        self.a(f"buffer_load_dwordx4 v{voff}, {srd}, {soff} offen offset:{imm} nt lds")

    def build(self):
        a = self.a; L = self.L
        a(f"""
        s_cmp_ge_u32 s2, 256
        s_cbranch_scc1 {L('L_end')}
        s_load_dwordx16 s[64:79], s[0:1], 0
        s_load_dwordx8 s[80:87], s[0:1], 64
        s_load_dwordx4 s[88:91], s[0:1], 96
        """)
        if self.stamps: a("s_memrealtime s[98:99]")
        l1 = a.new_label(L("L_id1")); l2 = a.new_label(L("L_id2"))
        a(f"""
        v_lshrrev_b32 v1, 6, v0
        v_and_b32 v0, 63, v0
        v_readfirstlane_b32 s3, v1
        v_lshlrev_b32 v1, 2, v0
        v_add_u32 v1, {L_CNT}, v1
        v_mov_b32 v2, 0
        s_mov_b64 exec, 0xffff
        ds_write_b32 v1, v2
        s_mov_b64 exec, -1
        s_cmp_ge_u32 s2, 128
        s_cbranch_scc1 {l1}
        s_lshr_b32 s45, s2, 1
        s_and_b32 s46, s2, 1
        s_branch {l2}
        {l1}:
        s_and_b32 s45, s2, 63
        s_lshr_b32 s46, s2, 6
        {l2}:
        s_lshl_b32 s47, s45, 2
        s_add_u32 s47, s47, s46
        v_lshrrev_b32 v1, 4, v0
        v_and_b32 v2, 15, v0
        v_lshlrev_b32 v4, 4, v0
        s_waitcnt lgkmcnt(0)
        """)
        self.srd(4, P_WS, WS_SIZE)
        if "CLR" in self.en: self.clear()
        a(f"""
        s_barrier
        s_cmp_ge_u32 s3, 4
        s_cbranch_scc1 {L('L_awave')}
        s_setprio {self.o.sprio}
        s_cmp_ge_u32 s2, 224
        s_cbranch_scc1 {L('L_at')}
        s_cmp_ge_u32 s2, 192
        s_cbranch_scc1 {L('L_bh2')}
        s_cmp_ge_u32 s2, 128
        s_cbranch_scc1 {L('L_bh1')}
        """)
        self.role_t1()
        a(f"s_branch {L('L_fin')}")
        a.label(L("L_at"));  self.role_at();  a(f"s_branch {L('L_fin')}")
        a.label(L("L_bh1")); self.role_bh1(); a(f"s_branch {L('L_fin')}")
        a.label(L("L_bh2")); self.role_bh2(); a(f"s_branch {L('L_fin')}")
        a.label(L("L_awave")); self.role_a()
        a.label(L("L_fin"))
        if self.stamps:
            a(f"""
            s_mov_b64 exec, -1
            s_waitcnt vmcnt(0)
            s_memrealtime s[92:93]
            s_lshl_b32 s94, s2, 3
            s_add_u32 s94, s94, s3
            s_lshl_b32 s94, s94, 4
            s_add_u32 s94, s94, {STAMPOFF}
            s_waitcnt lgkmcnt(0)
            v_mov_b32 v4, s98
            v_mov_b32 v5, s99
            v_mov_b32 v6, s92
            v_mov_b32 v7, s93
            v_mov_b32 v1, 0
            s_mov_b64 exec, 1
            buffer_store_dwordx4 v[4:7], v1, s[4:7], s94 offen
            """)
        a.label(L("L_end"))
        a("s_endpgm")
        return a

    def clear(self):
        a = self.a; L = self.L
        done = a.new_label(L("L_clrd")); c1 = a.new_label(L("L_clr1")); c2 = a.new_label(L("L_clr2")); lp = a.new_label(L("L_clrl"))
        a(f"""
        s_cmp_lg_u32 s3, 4
        s_cbranch_scc1 {done}
        s_setprio 3
        s_load_dword s{S_TAG}, s[{P_WS}:{P_WS+1}], 0
        v_mov_b32 v8, -1
        v_mov_b32 v9, -1
        v_mov_b32 v10, -1
        v_mov_b32 v11, -1
        s_lshl_b32 s30, s47, 10
        s_add_u32 s30, s30, {WS_OP}
        s_mov_b32 exec_hi, 0xff
        buffer_store_dwordx4 v[8:11], v4, s[4:7], s30 offen sc1
        s_mov_b64 exec, -1
        s_cmp_ge_u32 s2, 128
        s_cbranch_scc1 {c1}
        s_lshl_b32 s31, s2, 10
        s_add_u32 s31, s31, {WS_T1S}
        s_mov_b32 s32, 1
        s_branch {lp}
        {c1}:
        s_cmp_ge_u32 s2, 192
        s_cbranch_scc1 {c2}
        s_lshl_b32 s31, s2, 11
        s_add_u32 s31, s31, {WS_QABS - 128 * 2048}
        s_mov_b32 s32, 2
        s_branch {lp}
        {c2}:
        s_and_b32 s31, s2, 31
        s_mul_i32 s31, s31, 9216
        s_add_u32 s31, s31, {WS_YB}
        s_cmp_ge_u32 s2, 224
        s_cselect_b32 s32, {WS_YB - WS_YA}, 0
        s_sub_u32 s31, s31, s32
        s_mov_b32 s32, 9
        {lp}:
        buffer_store_dwordx4 v[8:11], v4, s[4:7], s31 offen sc1
        s_add_u32 s31, s31, 1024
        s_sub_u32 s32, s32, 1
        s_cmp_lg_u32 s32, 0
        s_cbranch_scc1 {lp}
        {done}:
        """)
    def clear_finish(self):
        a = self.a; L = self.L
        done = a.new_label(L("L_clrf"))
        a(f"""
        s_cmp_lg_u32 s3, 4
        s_cbranch_scc1 {done}
        s_waitcnt lgkmcnt(0)
        s_mul_i32 s{S_TAG}, s{S_TAG}, 0x9E3779B1
        s_add_u32 s{S_TAG}, s{S_TAG}, 0x7F4A7C15
        v_mov_b32 v8, s{S_TAG}
        v_mov_b32 v9, s{S_TAG}
        v_mov_b32 v10, s{S_TAG}
        v_mov_b32 v11, s{S_TAG}
        v_mov_b32 v12, 1
        v_mov_b32 v13, s{S_TAG}
        v_mov_b32 v14, {L_CNT + 4 * 12}
        s_waitcnt vmcnt(0)
        s_mov_b64 exec, 0xff
        buffer_store_dwordx4 v[8:11], v4, s[4:7], s30 offen offset:896 sc1
        s_mov_b64 exec, 1
        ds_write_b64 v14, v[12:13]
        s_mov_b64 exec, -1
        s_setprio 0
        """)
        self.stamp(8)
        a.label(done)

    def role_t1(self):
        a = self.a
        f = lambda x: ((x & 7) << 1) | (x >> 3)
        PQ = "PQ" in self.en; BA = "BA" in self.en
        if BA:
            self.srd(20, P_CKV, 16 << 20)
            for r in range(16): a(f"v_xor_b32 v{24+r}, {f(r) << 4}, v4")
        def c_rows(r0, n):
            pass
        if PQ:
            a(f"""
            s_cmp_lt_u32 s2, 64
            s_cselect_b32 s12, s{P_BWQ}, s{P_WQ}
            s_cselect_b32 s13, s{P_BWQ+1}, s{P_WQ+1}
            s_mov_b32 s14, {576 * 8192}
            s_mov_b32 s15, 0x20000
            s_cselect_b32 s16, s{P_BX}, s{P_AX}
            s_cselect_b32 s17, s{P_BX+1}, s{P_AX+1}
            s_mov_b32 s18, {4 * 1152}
            s_mov_b32 s19, 0x20000
            s_and_b32 s34, s2, 63
            s_lshl_b32 s34, s34, 7               ; h*256 + ch*128
            s_mul_i32 s35, s3, {18 * 65536}
            s_add_u32 s34, s34, s35
            s_mul_i32 s35, s3, {18 * 1024}
            s_add_u32 s35, s35, {L_PQ}
            v_lshlrev_b32 v5, 1, v1
            v_and_b32 v6, 7, v0
            v_xor_b32 v5, v5, v6
            v_lshlrev_b32 v5, 4, v5
            v_lshrrev_b32 v6, 3, v0
            v_lshl_add_u32 v5, v6, 13, v5
            v_and_b32 v6, 3, v2
            v_mul_u32_u24 v6, 1152, v6
            v_lshl_add_u32 v6, v1, 3, v6
            """)
            X = 64
            L_X = L_SM + 1024
            a(f"""
            s_mov_b32 m0, {L_X}
            v_add_u32 v6, {L_X}, v6
            buffer_load_dwordx4 v4, s[16:19], 0 offen lds
            buffer_load_dwordx4 v4, s[16:19], 0 offen offset:1024 lds
            buffer_load_dwordx4 v4, s[16:19], 0 offen offset:2048 lds
            buffer_load_dwordx4 v4, s[16:19], 0 offen offset:3072 lds
            s_mov_b32 m0, {L_X + 4096}
            s_mov_b32 s38, 4096
            buffer_load_dwordx4 v4, s[16:19], s38 offen lds
            """)
            for i in range(18):
                a("s_mov_b32 m0, s35")
                self.dma(5, "s[12:15]", "s34", 0, 60)
                if i != 17: a("s_add_u32 s34, s34, 65536\ns_add_u32 s35, s35, 1024")
            a("s_waitcnt vmcnt(18)")
            for s in range(18):
                a(f"ds_read2_b64 {vr(X + 4*s)}, v6 offset0:{8*s} offset1:{8*s+4}")
                if s == 12: a("s_waitcnt lgkmcnt(8)")
            a(f"""
            v_lshrrev_b32 v7, 2, v0
            v_bfe_u32 v8, v0, 3, 2
            v_xor_b32 v8, s3, v8
            v_lshlrev_b32 v8, 5, v8
            v_lshl_add_u32 v8, v7, 7, v8
            v_and_b32 v7, 3, v0
            v_lshl_add_u32 v8, v7, 3, v8
            v_add_u32 v8, {L_PQ}, v8
            v_add_u32 v9, 0x8000, v8
            """)
        NC0 = self.o.NC0
        if BA:
            a("s_lshl_b32 s36, s2, 17\ns_lshl_b32 s37, s3, 14\ns_add_u32 s36, s36, s37")
            def stage_c(r0, n, depth=None):
                for r in range(r0, r0 + n):
                    if r % 4 == 0: a("s_mov_b32 m0, s37")
                    self.dma(24 + (r & 15), "s[20:23]", "s36", (r % 4) * 1024, depth)
                    if r % 4 == 3: a("s_add_u32 s36, s36, 4096\ns_add_u32 s37, s37, 4096")
            stage_c(0, NC0, 40)
        if PQ:
            a(f"s_waitcnt vmcnt({NC0 if BA else 0})")
            self.stamp(0)
        if PQ:
            self.sbar(0, 16)
            W = 140; NB = 8; PRE = 6
            def rd(s):
                base, off = (8, s * 4096) if s < 8 else (9, (s - 8) * 4096)
                r = W + 4 * (s % NB)
                a(f"ds_read_b64_tr_b16 v[{r}:{r+1}], v{base} offset:{off}")
                a(f"ds_read_b64_tr_b16 v[{r+2}:{r+3}], v{base} offset:{off + 2048}")
            for s in range(PRE): rd(s)
            for s in range(18):
                if s + PRE < 18: rd(s + PRE)
                a(f"s_waitcnt lgkmcnt({2 * min(PRE, 17 - s)})")
                acc = 40 + 4 * (s & 1)
                a(f"{MF} {vr(acc)}, {vr(W + 4 * (s % NB))}, {vr(X + 4*s)}, {'0' if s < 2 else vr(acc)}")
            a(f"""
            v_and_b32 v6, 3, v2
            v_lshlrev_b32 v6, 7, v6
            v_lshl_add_u32 v6, v1, 3, v6
            s_lshl_b32 s38, s3, 5
            s_add_u32 s38, s38, {L_SM}
            v_add_u32 v6, s38, v6
            v_add_f32 v40, v40, v44
            v_add_f32 v41, v41, v45
            v_add_f32 v42, v42, v46
            v_add_f32 v43, v43, v47
            v_cvt_pk_bf16_f32 v44, v40, v41
            v_cvt_pk_bf16_f32 v45, v42, v43
            """)
            self.sanitize([44, 45])
            a("ds_write_b64 v6, v[44:45]")
            self.get_tag(16)
            self.sbar(1, 16)
            sk = a.new_label(self.L("L_pqs"))
            a(f"""
            s_cmp_lg_u32 s3, 0
            s_cbranch_scc1 {sk}
            v_add_u32 v6, {L_SM}, v4
            s_lshl_b32 s38, s2, 10
            s_add_u32 s38, s38, {WS_T1S}
            s_mov_b32 exec_hi, 0
            ds_read_b128 v[40:43], v6
            s_waitcnt lgkmcnt(0)
            buffer_store_dwordx4 v[40:43], v4, s[4:7], s38 offen sc1
            s_mov_b64 exec, -1
            """)
            self.stamp(1)
            a.label(sk)
        else:
            self.get_tag(16)
        if not BA: return
        stage_c(NC0, 16 - NC0)
        a("s_add_u32 s36, s36, 49152\ns_add_u32 s37, s37, 49152")
        stage_c(0, 16)
        a(f"""
        v_and_b32 v5, 7, v2
        v_lshlrev_b32 v5, 1, v5
        v_lshrrev_b32 v6, 3, v2
        v_or_b32 v5, v5, v6
        v_lshlrev_b32 v5, 4, v5
        v_lshl_add_u32 v5, v1, 8, v5
        v_lshl_add_u32 v5, v2, 10, v5
        s_lshr_b32 s37, s3, 1
        s_lshl_b32 s37, s37, 16
        v_add_u32 v5, s37, v5
        s_and_b32 s38, s3, 1             ; hg
        s_lshr_b32 s39, s2, 5            ; b
        s_lshl_b32 s39, s39, 9
        s_lshl_b32 s40, s38, 16
        s_add_u32 s39, s39, s40
        s_add_u32 s39, s39, {WS_QABS}
        v_lshlrev_b32 v10, 12, v2
        v_lshl_add_u32 v10, v1, 4, v10   ; n*4096 + g*16
        v_mov_b32 v3, {CSC}
        v_lshlrev_b32 v11, 2, v0
        v_add_u32 v11, 2, v11            ; aid of BH1 producers
        """)
        self.check_flags(11, 16)
        a("s_waitcnt vmcnt(0)")
        self.stamp(2)
        if self.o.sig == 0: self.signal(11, 16)
        Q = 64
        qoff = lambda j: (j >> 3) * 2048 + (j & 7) * 64
        ql = lambda j: f"buffer_load_dwordx4 {vr(Q + 4*j)}, v10, s[4:7], s39 offen offset:{qoff(j)} sc1"
        self.poll([ql(7), ql(15)], list(range(Q + 28, Q + 32)) + list(range(Q + 60, Q + 64)), 16, sleep=8)
        self.stamp(3)
        self.poll([ql(j) for j in range(16)], range(Q, Q + 64), 16, sleep=4)
        self.stamp(4)
        if self.o.sig == 1: self.signal(11, 16)
        self.sbar(2, 16)
        S = 40; A = 128; NB = 12
        seq = [(j, t) for j in range(16) for t in range(4)]
        def rd(i):
            j, t = seq[i]
            if t == 0: a(f"v_xor_b32 v{6 + (j & 3)}, {j << 4}, v5")
            a(f"ds_read_b128 {vr(A + 4 * (i % NB))}, v{6 + (j & 3)} offset:{t * 16384}")
        PRE = 8
        for i in range(PRE): rd(i)
        for i, (j, t) in enumerate(seq):
            if i + PRE < len(seq): rd(i + PRE)
            a(f"s_waitcnt lgkmcnt({min(PRE, len(seq) - 1 - i)})")
            acc = S + 4 * t
            a(f"{MF} {vr(acc)}, {vr(A + 4 * (i % NB))}, {vr(Q + 4*j)}, {'0' if j == 0 else vr(acc)}")
        a(f"""
        s_lshl_b32 s37, s3, 6
        s_add_u32 s37, s37, {L_MX}
        v_lshlrev_b32 v12, 2, v2
        v_add_u32 v13, s37, v12
        v_xor_b32 v14, 0x80, v13
        """)
        for e in range(16): a(f"v_mul_f32 v{S+e}, v3, v{S+e}")
        a(f"v_max3_f32 v10, v{S}, v{S+1}, v{S+2}")
        for e in range(3, 15, 2): a(f"v_max3_f32 v10, v10, v{S+e}, v{S+e+1}")
        a(f"v_max_f32 v10, v10, v{S+15}")
        self.xg_reduce("v_max_f32", 10, 11)
        a("ds_write_b32 v13, v10")
        a(f"""
        v_lshrrev_b32 v6, 2, v0
        v_and_b32 v7, 7, v6
        v_lshlrev_b32 v7, 1, v7
        v_lshrrev_b32 v8, 3, v6
        v_or_b32 v7, v7, v8
        v_bfe_u32 v8, v0, 1, 1
        v_xor_b32 v7, v7, v8
        v_lshlrev_b32 v7, 4, v7
        v_lshl_add_u32 v7, v6, 10, v7
        v_and_b32 v8, 1, v0
        v_lshl_add_u32 v7, v8, 3, v7
        s_lshl_b32 s41, s3, 8
        v_add_u32 v7, s41, v7
        s_lshl_b32 s37, s38, 12
        s_lshr_b32 s43, s3, 1
        s_lshl_b32 s43, s43, 11
        s_add_u32 s37, s37, s43
        s_add_u32 s37, s37, {L_P}
        v_add_u32 v15, s37, v4
        v_add_u32 v9, {L_P}, v4
        """)
        for ct in range(8):
            a(f"v_xor_b32 v{24+ct}, {ct << 5}, v7\nv_add_u32 v{32+ct}, 0x10000, v{24+ct}")
        self.sbar(3, 16)
        a("ds_read_b32 v11, v14\ns_waitcnt lgkmcnt(0)\nv_max_f32 v10, v10, v11")
        for e in range(16): a(f"v_sub_f32 v{S+e}, v{S+e}, v10")
        for e in range(16): a(f"v_exp_f32 v{S+e}, v{S+e}")
        for e in range(8): a(f"v_cvt_pk_bf16_f32 v{56+e}, v{S+2*e}, v{S+2*e+1}")
        a("ds_write_b128 v15, v[56:59]\nds_write_b128 v15, v[60:63] offset:1024")
        a(f"v_add_f32 v11, v{S}, v{S+1}")
        for e in range(2, 16): a(f"v_add_f32 v11, v11, v{S+e}")
        self.xg_reduce("v_add_f32", 11, 12)
        a("ds_write_b32 v13, v11 offset:256\nds_write_b32 v13, v10 offset:512")
        self.sbar(4, 16)
        self.stamp(5)
        if self.o.sig == 2: self.signal(11, 16)
        PB = 64
        for hg in range(2):
            for u in range(4):
                a(f"ds_read_b128 {vr(PB + 16*hg + 4*u)}, v9 offset:{hg * 4096 + u * 1024}")
        ACC = 180
        seq = [(ct, u) for ct in range(8) for u in range(4)]
        def rd2(i):
            ct, u = seq[i]; base = (24 if u < 2 else 32) + ct; off = (u & 1) * 32768; r = A + 4 * (i % NB)
            a(f"ds_read_b64_tr_b16 v[{r}:{r+1}], v{base} offset:{off}")
            a(f"ds_read_b64_tr_b16 v[{r+2}:{r+3}], v{base} offset:{off + 16384}")
        PRE = 6
        a("s_waitcnt lgkmcnt(1)")
        for i in range(PRE): rd2(i)
        a(f"""
        v_and_b32 v6, 7, v2
        v_lshlrev_b32 v6, 10, v6
        v_lshrrev_b32 v8, 3, v2
        v_lshl_add_u32 v6, v8, 6, v6
        v_lshl_add_u32 v6, v1, 4, v6
        s_lshl_b32 s39, s2, 15
        s_add_u32 s39, s39, s41
        s_add_u32 s39, s39, {WS_BP}
        s_add_u32 s40, s39, 8192
        s_add_u32 s42, s39, 16384
        s_add_u32 s43, s39, 24576
        """)
        def out_pair(qq):
            for hg in range(2):
                acc = ACC + 32 * hg + 16 * qq; X0 = 96 + 16 * qq + 8 * hg; X1 = X0 + 4
                for w in range(8): a(f"v_cvt_pk_bf16_f32 v{X0+w}, v{acc+2*w}, v{acc+2*w+1}")
                for w in range(4): a(f"v_mov_b32 v{40+w}, v{X0+w}")
                for w in range(4): a(f"v_mov_b32_dpp v{X0+w}, v{X1+w} row_ror:8 row_mask:0xf bank_mask:0xc")
                for w in range(4): a(f"v_mov_b32_dpp v{X1+w}, v{40+w} row_ror:8 row_mask:0xf bank_mask:0x3")
                sA, sB = (39, 40) if hg == 0 else (42, 43)
                a(f"buffer_store_dwordx4 {vr(X0)}, v6, s[4:7], s{sA} offen offset:{128*qq} sc1")
                a(f"buffer_store_dwordx4 {vr(X1)}, v6, s[4:7], s{sB} offen offset:{128*qq} sc1")
        for i, (ct, u) in enumerate(seq):
            if i + PRE < len(seq): rd2(i + PRE)
            a(f"s_waitcnt lgkmcnt({2 * min(PRE, len(seq) - 1 - i)})")
            for hg in range(2):
                acc = ACC + 32 * hg + 4 * ct
                a(f"{MF} {vr(acc)}, {vr(A + 4 * (i % NB))}, {vr(PB + 16*hg + 4*u)}, {'0' if u == 0 else vr(acc)}")
            if i == 19: out_pair(0)
        out_pair(1)
        self.stamp(6)
        if self.o.sig == 3: self.signal(11, 16)
        a("s_waitcnt vmcnt(0)")
        self.sbar(5, 16)
        done = a.new_label(self.L("L_badone"))
        a(f"""
        s_cmp_lg_u32 s3, 0
        s_cbranch_scc1 {done}
        v_and_b32 v6, 31, v0
        v_lshlrev_b32 v7, 2, v6
        v_add_u32 v7, {L_MX}, v7
        ds_read_b32 v8, v7 offset:512
        ds_read_b32 v9, v7 offset:256
        ds_read_b32 v10, v7 offset:384
        v_lshlrev_b32 v6, 3, v6
        s_lshl_b32 s39, s2, 10
        s_add_u32 s39, s39, {WS_T1S + 512}
        s_waitcnt lgkmcnt(0)
        v_add_f32 v9, v9, v10
        """)
        self.sanitize([8, 9])
        a(f"""
        s_mov_b32 exec_hi, 0
        buffer_store_dwordx2 v[8:9], v6, s[4:7], s39 offen sc1
        s_mov_b64 exec, -1
        """)
        self.stamp(7)
        a.label(done)

    def stage_lin(self, srd, s_base, s_lds, n, voff):
        a = self.a
        for i in range(n):
            if i % 4 == 0: a(f"s_mov_b32 m0, {s_lds}")
            self.dma(voff, srd, s_base, (i % 4) * 1024)
            if i % 4 == 3 and i != n - 1:
                a(f"s_add_u32 {s_base}, {s_base}, 4096\ns_add_u32 {s_lds}, {s_lds}, 4096")
    def store_y(self, ys, s_y, s_y8, vt):
        a = self.a
        self.sanitize(range(ys, ys + 9))
        a(f"""
        v_lshlrev_b32 v{vt}, 2, v0
        buffer_store_dwordx4 {vr(ys)}, v4, s[4:7], {s_y} offen sc1
        buffer_store_dwordx4 {vr(ys+4)}, v4, s[4:7], {s_y} offen offset:1024 sc1
        buffer_store_dword v{ys+8}, v{vt}, s[4:7], {s_y8} offen sc1
        """)
    def y_addr(self, ybase):
        self.a(f"""
        s_mul_i32 s38, s33, 9216
        s_add_u32 s38, s38, {ybase}
        s_lshl_b32 s39, s3, 8
        s_add_u32 s39, s39, s38
        s_add_u32 s39, s39, 8192
        s_lshl_b32 s40, s3, 11
        s_add_u32 s38, s38, s40
        """)

    def role_at(self):
        a = self.a
        if "AT" not in self.en: return
        self.srd(12, P_WO, 4096 * 1152)
        a(f"""
        s_and_b32 s33, s2, 31
        s_mul_i32 s36, s33, {128 * 1152}
        s_mul_i32 s37, s3, {36 * 1024}
        s_add_u32 s36, s36, s37
        """)
        self.stage_lin("s[12:15]", "s36", "s37", 36, 4)
        self.signal(11, 16)
        a(f"""
        v_lshrrev_b32 v5, 2, v0
        v_mul_u32_u24 v5, {8 * 1152}, v5
        v_and_b32 v6, 3, v0
        v_lshl_add_u32 v5, v6, 3, v5
        s_lshl_b32 s38, s3, 5
        s_add_u32 s38, s38, 1024
        v_add_u32 v6, s38, v5
        s_lshl_b32 s38, s3, 8
        v_add_u32 v5, s38, v5
        s_waitcnt vmcnt(0)
        """)
        self.sbar(0, 16)
        WO = 64
        for ct in range(9):
            for j in range(4):
                r = WO + 16 * ct + 4 * j
                base, co = (5, ct * 32) if ct < 8 else (6, 0)
                a(f"ds_read_b64_tr_b16 v[{r}:{r+1}], v{base} offset:{(2*j) * 1152 + co}")
                a(f"ds_read_b64_tr_b16 v[{r+2}:{r+3}], v{base} offset:{(2*j+1) * 1152 + co}")
            a("s_waitcnt lgkmcnt(7)")
        a(f"""
        s_lshr_b32 s36, s33, 1
        s_lshl_b32 s36, s36, 2               ; 4*hkv
        v_lshrrev_b32 v6, 2, v2
        v_lshlrev_b32 v6, 6, v6
        v_and_b32 v7, 3, v2
        v_add_u32 v6, v6, v7
        v_add_u32 v8, s36, v6
        v_lshlrev_b32 v6, 10, v6
        v_lshl_add_u32 v6, v1, 4, v6         ; o voffset
        v_lshl_add_u32 v7, v1, 6, v7
        v_lshlrev_b32 v7, 10, v7
        s_lshl_b32 s36, s36, 10
        s_add_u32 s36, s36, {WS_OP}
        s_and_b32 s37, s33, 1
        s_lshl_b32 s40, s37, 3
        s_add_u32 s41, s36, s40
        s_add_u32 s41, s41, 512
        s_lshl_b32 s37, s37, 8
        s_add_u32 s36, s36, s37              ; o soffset
        """)
        self.y_addr(WS_YA)
        self.get_tag(16)
        self.check_flags(8, 16)
        self.stamp(0)
        if self.fused: self.wait_lds(15, 1, 16, 2)
        O = 24; ST = 40
        loads = [f"buffer_load_dwordx4 {vr(O + 4*j)}, v6, s[4:7], s36 offen offset:{64*j} sc1" for j in range(4)]
        loads += [f"buffer_load_dwordx2 v[{ST}:{ST+1}], v7, s[4:7], s41 offen sc1"]
        self.poll(loads, range(O, O + 18), 16, sleep=1)
        self.stamp(1)
        ACC = 208
        for ct in range(9):
            for j in range(4):
                acc = ACC + 4 * ct
                a(f"{MF} {vr(acc)}, {vr(O + 4*j)}, {vr(WO + 16*ct + 4*j)}, {'0' if j == 0 else vr(acc)}")
            if ct == 0:
                a(f"""
                v_max_f32_dpp v16, v{ST}, v{ST} quad_perm:[1,0,3,2] {DPPM}
                v_max_f32_dpp v16, v16, v16 quad_perm:[2,3,0,1] {DPPM}
                v_sub_f32 v17, v{ST}, v16
                v_exp_f32 v17, v17
                v_mul_f32 v18, v17, v{ST+1}
                """)
            if ct == 1:
                a(f"""
                v_add_f32_dpp v18, v18, v18 quad_perm:[1,0,3,2] {DPPM}
                v_add_f32_dpp v18, v18, v18 quad_perm:[2,3,0,1] {DPPM}
                v_rcp_f32 v18, v18
                v_mul_f32 v17, v17, v18
                """)
            if ct == 2:
                for t in range(4): a(f"v_mov_b32_dpp v{48+t}, v17 quad_perm:[{t},{t},{t},{t}] {DPPM}")
        Y = 52
        for ct in range(9):
            acc = ACC + 4 * ct
            a(f"""
            v_mul_f32 v{Y+ct}, v48, v{acc}
            v_fmac_f32 v{Y+ct}, v49, v{acc+1}
            v_fmac_f32 v{Y+ct}, v50, v{acc+2}
            v_fmac_f32 v{Y+ct}, v51, v{acc+3}
            """)
        self.store_y(Y, "s38", "s39", 16)
        self.stamp(2)

    def role_bh1(self):
        a = self.a
        if "BH1" not in self.en: return
        self.srd(12, P_WUK, 512 * 8192)
        a(f"""
        s_sub_u32 s33, s2, 128               ; 2h+cf
        s_lshr_b32 s36, s33, 1
        s_lshl_b32 s37, s36, 8               ; h*256
        s_and_b32 s38, s33, 1
        s_lshl_b32 s38, s38, 2
        s_add_u32 s38, s38, s3
        s_lshl_b32 s38, s38, 17              ; (64cf+16sw)*8192
        s_add_u32 s37, s37, s38
        s_lshl_b32 s35, s3, 14
        v_xor_b32 v5, v1, v2
        v_lshlrev_b32 v5, 4, v5
        v_lshl_add_u32 v8, v1, 13, v5
        v_xor_b32 v9, 64, v8
        v_xor_b32 v10, 0x80, v8
        v_xor_b32 v11, 0xc0, v8
        """)
        for i in range(16):
            p, g, half = i >> 3, (i >> 1) & 3, i & 1
            a(f"s_add_u32 s34, s37, {(128 * g + 8 * p + 4 * half) * 8192}\ns_add_u32 m0, s35, {i * 1024}")
            self.dma(8 + g, "s[12:15]", "s34", 0, 32)
        a(f"""
        v_lshrrev_b32 v6, 2, v2
        v_lshlrev_b32 v6, 3, v6
        v_and_b32 v7, 3, v2
        v_add_u32 v6, v6, v7
        v_lshl_add_u32 v12, v6, 8, v5
        v_add_u32 v12, s35, v12
        v_xor_b32 v13, 64, v12
        v_xor_b32 v14, 0x80, v12
        v_xor_b32 v15, 0xc0, v12
        v_lshlrev_b32 v18, 7, v7
        v_lshl_add_u32 v18, v1, 4, v18       ; q_B voffset: b*128 + g*16
        s_lshl_b32 s39, s36, 11
        s_add_u32 s39, s39, {WS_T1S}
        v_lshlrev_b32 v19, 9, v7             ; out: b*512 + p*64 + g*16
        v_bfe_u32 v6, v0, 2, 1
        v_lshl_add_u32 v19, v6, 6, v19
        v_lshl_add_u32 v19, v1, 4, v19
        v_cmp_eq_u32 s[42:43], 1, v6
        s_lshl_b32 s40, s33, 11
        s_lshl_b32 s41, s3, 7
        s_add_u32 s40, s40, s41
        s_add_u32 s40, s40, {WS_QABS}
        s_lshl_b32 s41, s36, 2
        v_and_b32 v20, 1, v0
        v_add_u32 v20, s41, v20
        """)
        self.get_tag(16)
        self.check_flags(20, 16)
        a("s_waitcnt vmcnt(0)")
        W = 64; ACC = 40; Q = 24
        for T in range(4):
            p, half = T >> 1, T & 1
            for k in range(4):
                a(f"ds_read_b128 {vr(W + 16*T + 4*k)}, v{12+k} offset:{(32*p + 4*half) * 256}")
            if T == 2: a("s_waitcnt lgkmcnt(8)")
        self.stamp(0)
        self.poll([f"buffer_load_dwordx4 {vr(Q + 4*k)}, v18, s[4:7], s39 offen offset:{(k >> 1) * 1024 + (k & 1) * 64} sc1" for k in range(4)], range(Q, Q + 16), 16, sleep=1)
        self.stamp(1)
        a("s_waitcnt lgkmcnt(0)")
        for k in range(4):
            for T in range(4):
                acc = ACC + 4 * T
                a(f"{MF} {vr(acc)}, {vr(W + 16*T + 4*k)}, {vr(Q + 4*k)}, {'0' if k == 0 else vr(acc)}")
        for w in range(8): a(f"v_cvt_pk_bf16_f32 v{56+w}, v{ACC+2*w}, v{ACC+2*w+1}")
        for w in range(4): a(f"v_cndmask_b32 v{56+w}, v{56+w}, v{60+w}, s[42:43]")
        self.sanitize(range(56, 60))
        a("""
        s_mov_b32 exec_lo, 0x00ff00ff
        s_mov_b32 exec_hi, 0x00ff00ff
        buffer_store_dwordx4 v[56:59], v19, s[4:7], s40 offen sc1
        s_mov_b64 exec, -1
        """)
        self.signal(11, 16)
        self.stamp(2)

    def role_bh2(self):
        a = self.a
        if "BH2" not in self.en: return
        nb = 0
        self.srd(12, P_WUV, 512 * 8192)
        self.srd(16, P_BWO, 4096 * 1152)
        a(f"""
        s_and_b32 s33, s2, 31
        s_lshl_b32 s34, s33, 8
        s_lshl_b32 s35, s3, 20
        s_add_u32 s34, s34, s35
        s_lshl_b32 s35, s3, 15
        v_lshlrev_b32 v5, 1, v1
        v_xor_b32 v5, v5, v2
        v_lshlrev_b32 v5, 4, v5
        v_lshl_add_u32 v5, v1, 13, v5
        v_xor_b32 v6, 0x80, v5
        """)
        for i in range(32):
            a("s_mov_b32 m0, s35")
            self.dma(5 + (i & 1), "s[12:15]", "s34")
            if i != 31: a("s_add_u32 s34, s34, 32768\ns_add_u32 s35, s35, 1024")
        if not self.o.bh2hold: self.signal(11, 16)
        a("s_lshl_b32 s39, s3, 1\ns_add_u32 s40, s39, 1")
        for (vd, sc) in ((8, "s39"), (9, "s40")):
            a(f"""
            v_lshrrev_b32 v10, 2, v0
            v_and_b32 v11, 7, v10
            v_xor_b32 v11, {sc}, v11
            v_lshlrev_b32 v11, 5, v11
            v_lshl_add_u32 v11, v10, 8, v11
            v_and_b32 v10, 3, v0
            v_lshl_add_u32 v{vd}, v10, 3, v11
            """)
        a("v_add_u32 v12, 0x10000, v8\nv_add_u32 v13, 0x10000, v9\ns_waitcnt vmcnt(0)")
        self.sbar(nb, 16); nb += 1
        WV = 128
        for c in range(2):
            for s in range(16):
                off = s * 8192; base = [8, 9][c] + (4 if off >> 16 else 0); off &= 0xffff
                r = WV + 64 * c + 4 * s
                a(f"ds_read_b64_tr_b16 v[{r}:{r+1}], v{base} offset:{off}")
                a(f"ds_read_b64_tr_b16 v[{r+2}:{r+3}], v{base} offset:{off + 4096}")
                if s % 4 == 3: a("s_waitcnt lgkmcnt(7)")
        self.sbar(nb, 16); nb += 1
        self.stamp(0, vt=100)
        a(f"""
        s_mul_i32 s36, s33, {128 * 1152}
        s_mul_i32 s37, s3, {36 * 1024}
        s_add_u32 s36, s36, s37
        """)
        self.stage_lin("s[16:19]", "s36", "s37", 36, 4)
        a(f"""
        v_and_b32 v5, 31, v0
        s_lshl_b32 s36, s3, 5
        v_add_u32 v5, s36, v5                ; idx
        v_lshrrev_b32 v6, 1, v5
        v_lshlrev_b32 v6, 2, v6
        v_and_b32 v7, 1, v5
        v_add_u32 v6, v6, v7                 ; aid
        v_lshlrev_b32 v5, 10, v5
        s_lshl_b32 s36, s33, 3
        s_add_u32 s36, s36, {WS_T1S + 512}
        """)
        self.get_tag(16)
        self.check_flags(6, 16)
        self.stamp(1, vt=100)
        self.poll(["buffer_load_dwordx2 v[18:19], v5, s[4:7], s36 offen sc1"], [18, 19], 16, sleep=4)
        self.stamp(2, vt=100)
        a(f"""
        s_lshl_b32 s36, s3, 20
        s_lshl_b32 s39, s33, 10
        s_add_u32 s36, s36, s39
        s_add_u32 s36, s36, {WS_BP}
        """)
        G = 64; NG = 16
        for s in range(NG):
            a(f"buffer_load_dwordx4 {vr(G + 4*s)}, v4, s[4:7], s36 offen sc1\ns_add_u32 s36, s36, 32768")
        a("v_mov_b32 v20, v18")
        for d in ("quad_perm:[1,0,3,2]", "quad_perm:[2,3,0,1]", "row_ror:4", "row_ror:8"):
            a(f"v_max_f32_dpp v20, v20, v20 {d} {DPPM}")
        a("v_mov_b32 v21, v20\nv_permlane16_swap_b32 v20, v21\nv_max_f32 v20, v20, v21")
        a("v_sub_f32 v21, v18, v20\nv_exp_f32 v21, v21\nv_mul_f32 v22, v21, v19")
        for d in ("quad_perm:[1,0,3,2]", "quad_perm:[2,3,0,1]", "row_ror:4", "row_ror:8"):
            a(f"v_add_f32_dpp v22, v22, v22 {d} {DPPM}")
        a("v_mov_b32 v23, v22\nv_permlane16_swap_b32 v22, v23\nv_add_f32 v22, v22, v23")
        a("v_rcp_f32 v22, v22\nv_mul_f32 v21, v21, v22")
        AC = 24
        for s in range(32):
            r = G + 4 * (s % NG)
            a(f"v_readlane_b32 s41, v21, {s}")
            a(f"s_waitcnt vmcnt({min(NG - 1, 31 - s)})")
            for w in range(4):
                a(f"v_lshlrev_b32 v{32+2*w}, 16, v{r+w}\nv_and_b32 v{33+2*w}, 0xffff0000, v{r+w}")
            if s + NG < 32:
                a(f"buffer_load_dwordx4 {vr(r)}, v4, s[4:7], s36 offen sc1\ns_add_u32 s36, s36, 32768")
            if s + NG == 31 and self.o.bh2hold: self.signal(11, 16)
            for e in range(8):
                if s == 0: a(f"v_mul_f32 v{AC+e}, s41, v{32+e}")
                else: a(f"v_fmac_f32 v{AC+e}, s41, v{32+e}")
        CTXC = L_SM; CST = 1088
        CTX = L_SM + 4 * CST; XST = 272
        a(f"""
        v_cvt_pk_bf16_f32 v32, v24, v25
        v_cvt_pk_bf16_f32 v33, v26, v27
        v_cvt_pk_bf16_f32 v34, v28, v29
        v_cvt_pk_bf16_f32 v35, v30, v31
        s_mul_i32 s39, s3, {CST}
        s_add_u32 s39, s39, {CTXC}
        v_add_u32 v5, s39, v4
        ds_write_b128 v5, v[32:35]
        v_and_b32 v6, 3, v2
        v_mul_u32_u24 v7, {CST}, v6
        v_lshl_add_u32 v7, v1, 4, v7
        v_add_u32 v7, {CTXC}, v7
        """)
        self.stamp(3, vt=100)
        self.sbar(nb, 16); nb += 1
        for s in range(12):
            a(f"ds_read_b128 {vr(G + 4*s)}, v7 offset:{64*s}")
        for s in range(16):
            if s + 12 < 16: a(f"ds_read_b128 {vr(G + 4*(s+12))}, v7 offset:{64*(s+12)}")
            a(f"s_waitcnt lgkmcnt({min(12, 15 - s)})")
            for c in range(2):
                acc = 24 + 4 * c
                a(f"{MF} {vr(acc)}, {vr(WV + 64*c + 4*s)}, {vr(G + 4*s)}, {'0' if s == 0 else vr(acc)}")
        a(f"""
        v_mul_u32_u24 v7, {XST}, v6
        v_lshl_add_u32 v7, v1, 3, v7
        s_lshl_b32 s39, s3, 6
        s_add_u32 s39, s39, {CTX}
        v_add_u32 v7, s39, v7
        v_lshlrev_b32 v5, 3, v1
        v_bfe_u32 v8, v0, 2, 2
        v_add_u32 v5, v5, v8
        v_mul_u32_u24 v5, 1152, v5
        v_and_b32 v8, 3, v0
        v_lshl_add_u32 v5, v8, 3, v5
        s_lshl_b32 s39, s3, 5
        s_add_u32 s39, s39, 1024
        v_add_u32 v10, s39, v5
        s_lshl_b32 s39, s3, 8
        v_add_u32 v5, s39, v5
        v_add_u32 v9, {64 * 1152}, v5
        v_add_u32 v11, {64 * 1152}, v10
        v_cvt_pk_bf16_f32 v32, v24, v25
        v_cvt_pk_bf16_f32 v33, v26, v27
        v_cvt_pk_bf16_f32 v34, v28, v29
        v_cvt_pk_bf16_f32 v35, v30, v31
        ds_write_b64 v7, v[32:33]
        ds_write_b64 v7, v[34:35] offset:32
        """)
        WO = 112
        for ct in range(9):
            for j in range(4):
                r = WO + 16 * ct + 4 * j
                if ct < 8: base = 5 if j < 2 else 9; off = ct * 32
                else: base = 10 if j < 2 else 11; off = 0
                off += (j & 1) * 32 * 1152
                a(f"ds_read_b64_tr_b16 v[{r}:{r+1}], v{base} offset:{off}")
                a(f"ds_read_b64_tr_b16 v[{r+2}:{r+3}], v{base} offset:{off + 4 * 1152}")
            a("s_waitcnt lgkmcnt(7)")
        a(f"""
        v_lshrrev_b32 v6, 2, v2
        v_mul_u32_u24 v7, {XST}, v6
        v_lshl_add_u32 v7, v1, 4, v7
        v_add_u32 v7, {CTX}, v7
        """)
        self.y_addr(WS_YB)
        self.sbar(nb, 16); nb += 1
        O = 24
        for j in range(4): a(f"ds_read_b128 {vr(O + 4*j)}, v7 offset:{64*j}")
        a("s_waitcnt lgkmcnt(0)")
        ACC = 64
        for ct in range(9):
            for j in range(4):
                acc = ACC + 4 * ct
                a(f"{MF} {vr(acc)}, {vr(O + 4*j)}, {vr(WO + 16*ct + 4*j)}, {'0' if j == 0 else vr(acc)}")
        Y = 52
        for ct in range(9): a(f"v_mov_b32 v{Y+ct}, v{ACC + 4*ct}")
        self.store_y(Y, "s38", "s39", 16)
        self.stamp(4, vt=100)

    def role_a(self):
        a = self.a; L = self.L
        a("s_sub_u32 s44, s3, 4")
        if "CLR" in self.en and self.fused: self.clear_finish()
        if "A" in self.en:
            self.a_main()
        elif "RED" in self.en:
            a(f"s_cmp_lg_u32 s44, 0\ns_cbranch_scc1 {L('L_fin')}")
        if "RED" in self.en:
            self.reducer()

    def a_main(self):
        a = self.a; L = self.L; D = self.o.D
        self.srd(12, P_K, 64 << 20); self.srd(16, P_V, 64 << 20)
        pk = lambda v: sum(x << (8 * i) for i, x in enumerate(v))
        cum = lambda sh: [sum(sh[:t]) for t in range(4)]
        a(f"""
        s_cmp_lt_u32 s45, 32
        s_mov_b32 s48, {pk(SH2)}
        s_cselect_b32 s48, {pk(SH1)}, s48
        s_mov_b32 s49, {pk(cum(SH2))}
        s_cselect_b32 s49, {pk(cum(SH1))}, s49
        s_lshl_b32 s30, s46, 3
        s_lshr_b32 s48, s48, s30
        s_and_b32 s48, s48, 0xff         ; n units
        s_lshr_b32 s49, s49, s30
        s_and_b32 s49, s49, 0xff         ; u0
        s_sub_u32 s48, s48, s44
        s_add_u32 s48, s48, 3
        s_lshr_b32 s48, s48, 2           ; n_w
        s_add_u32 s49, s49, s44
        s_lshl_b32 s49, s49, 13
        s_lshl_b32 s30, s45, 20
        s_add_u32 s30, s30, s49
        s_add_u32 s31, s30, 32768
        s_and_b32 s49, s48, 1
        s_cselect_b32 s31, s30, s31
        s_cselect_b32 s30, {OOB}, s30
        s_cselect_b32 s32, {NEGMAX}, 0
        s_add_u32 s48, s48, s49
        s_lshr_b32 s48, s48, 1
        s_sub_u32 s48, s48, 1            ; loop count
        s_mov_b32 s50, 0x05040100
        s_mov_b32 s51, 0x07060302
        v_mov_b32 v1, v4
        v_add_u32 v2, 4096, v4
        """)
        KA, VA, KB, VB = 96, 128, 160, 192
        def issue(srd, base, e, soff, d=None):
            a(f"s_waitcnt vmcnt({(d or D) - 1})")
            a(f"buffer_load_dwordx4 {vr(base + 4*e)}, v{1 if e < 4 else 2}, {srd}, {soff} offen offset:{(e & 3) * 1024} nt")
        a(f"""
        v_mov_b32 v3, {CSC}
        v_mov_b32 v4, {NEGMAX}
        v_mov_b32 v5, 0
        v_and_b32 v6, 7, v0
        v_lshlrev_b32 v6, 4, v6
        v_and_b32 v7, 1, v0
        v_lshl_add_u32 v6, v7, 11, v6
        v_bfe_u32 v28, v0, 3, 1
        v_lshl_add_u32 v6, v28, 10, v6
        v_lshl_add_u32 v30, v7, 2, v28        ; 4*(n&1) + ch
        v_xor_b32 v7, 16, v6
        s_and_b32 s52, s45, 15
        s_lshl_b32 s53, s52, 3
        s_add_u32 s53, s53, 128
        v_add_u32 v30, s53, v30
        s_lshl_b32 s52, s52, 12
        s_lshr_b32 s53, s45, 4
        s_lshl_b32 s53, s53, 7
        s_add_u32 s52, s52, s53
        s_add_u32 s52, s52, {WS_T1S + 64 * 1024}
        """)
        for r in range(32, 64): a(f"v_mov_b32 v{r}, 0")
        def ring():
            for (kb, vb, so) in ((KA, VA, "s30"), (KB, VB, "s31")):
                for e in range(8): issue("s[12:15]", kb, e, so, self.o.D0)
                for e in range(8): issue("s[16:19]", vb, e, so, self.o.D0)
        def getq(sl):
            self.poll(["buffer_load_dwordx4 v[8:11], v6, s[4:7], s52 offen sc1", "buffer_load_dwordx4 v[12:15], v7, s[4:7], s52 offen sc1"], range(8, 16), 28, sleep=sl)
        self.get_tag(28)
        self.check_flags(30, 28)
        if self.fused:
            l1 = a.new_label(L("L_ord1")); l2 = a.new_label(L("L_ord2"))
            a(f"s_cmp_ge_u32 s2, {224 if self.o.bh2hold else 192}\ns_cbranch_scc1 {l1}")
            getq(16)
            self.stamp(9)
            self.wait_lds(11, 4, 28, 1)
            self.stamp(10)
            ring()
            a(f"s_branch {l2}")
            a.label(l1)
            self.wait_lds(11, 4, 28, 1)
            ring()
            self.stamp(9)
            getq(4)
            self.stamp(10)
            a.label(l2)
        else:
            ring(); getq(4)
        a("s_add_u32 s30, s31, 32768")
        U = 16; P = 24; ACC = 32; T = 64
        def body(K, V, mode):
            a(f"s_waitcnt vmcnt({ {'loop': 24, 'e0': 24, 'e1': 8}[mode] })")
            for half in range(2):
                es = range(4 * half, 4 * half + 4)
                for e in es: a(f"v_dot2_f32_bf16 v{U+e}, v{K+4*e}, v8, 0")
                for w in range(1, 4):
                    for e in es: a(f"v_dot2c_f32_bf16 v{U+e}, v{K+4*e+w}, v{8+w}")
                for w in range(4):
                    for e in es: a(f"v_dot2c_f32_bf16_dpp v{U+e}, v{K+4*e+w}, v{12+w} quad_perm:[1,0,3,2] {DPPM}")
                if mode == "loop":
                    for e in es: issue("s[12:15]", K, e, "s30")
            for d in ("quad_perm:[2,3,0,1]", "row_ror:4", "row_ror:8"):
                for e in range(8): a(f"v_add_f32_dpp v{U+e}, v{U+e}, v{U+e} {d} {DPPM}")
            for e in range(8): a(f"v_fma_f32 v{U+e}, v{U+e}, v3, s32")
            a(f"""
            v_max3_f32 v28, v{U}, v{U+1}, v{U+2}
            v_max3_f32 v28, v28, v{U+3}, v{U+4}
            v_max3_f32 v28, v28, v{U+5}, v{U+6}
            v_max3_f32 v28, v28, v{U+7}, v4
            """)
            self.xg_reduce("v_max_f32", 28, 29)
            a("v_sub_f32 v29, v4, v28")
            for e in range(8): a(f"v_sub_f32 v{U+e}, v{U+e}, v28")
            a("v_exp_f32 v29, v29")
            for e in range(8): a(f"v_exp_f32 v{U+e}, v{U+e}")
            a(f"""
            v_mov_b32 v4, v28
            s_mov_b32 s32, 0
            v_cmp_neq_f32 vcc, 1.0, v29
            v_fma_f32 v5, v5, v29, v{U}
            v_add_f32 v30, v{U+1}, v{U+2}
            v_add_f32 v31, v{U+3}, v{U+4}
            v_add_f32 v5, v5, v{U+5}
            v_add_f32 v30, v30, v{U+6}
            v_add_f32 v31, v31, v{U+7}
            v_add_f32 v5, v5, v30
            v_add_f32 v5, v5, v31
            """)
            for w in range(4): a(f"v_cvt_pk_bf16_f32 v{P+w}, v{U+2*w}, v{U+2*w+1}")
            sk = a.new_label(L("L_nors"))
            a(f"s_cbranch_vccz {sk}")
            for r in range(32): a(f"v_mul_f32 v{ACC+r}, v29, v{ACC+r}")
            a.label(sk)
            if mode == "e1": self.xg_reduce("v_add_f32", 5, 29)
            if mode != "e1": a(f"s_waitcnt vmcnt({ {'loop': 24, 'e0': 16}[mode] })")
            for q in range(4):
                if mode == "e1": a(f"s_waitcnt vmcnt({6 - 2*q})")
                for i in range(8):
                    a(f"v_perm_b32 v{T+4*i+q}, v{V + 4*(2*q+1) + (i >> 1)}, v{V + 4*(2*q) + (i >> 1)}, s{50 + (i & 1)}")
                if mode == "loop":
                    issue("s[16:19]", V, 2*q, "s30"); issue("s[16:19]", V, 2*q+1, "s30")
            for i in range(8):
                a(f"{MF} {vr(ACC+4*i)}, {vr(T+4*i)}, {vr(P)}, {vr(ACC+4*i)}")
            if mode == "loop": a("s_add_u32 s30, s30, 32768")
        lp = a.new_label(L("L_aloop")); ep = a.new_label(L("L_aepi"))
        a(f"s_cmp_eq_u32 s48, 0\ns_cbranch_scc1 {ep}")
        a.label(lp)
        body(KA, VA, "loop"); body(KB, VB, "loop")
        a(f"s_sub_u32 s48, s48, 1\ns_cmp_lg_u32 s48, 0\ns_cbranch_scc1 {lp}")
        a.label(ep)
        body(KA, VA, "e0")
        a(f"""
        v_lshrrev_b32 v96, 4, v0
        v_and_b32 v97, 1, v0
        v_lshl_add_u32 v96, v96, 1, v97
        v_lshlrev_b32 v96, 4, v96
        s_lshl_b32 s53, s44, 10
        s_add_u32 s53, s53, {L_ACOMB}
        v_add_u32 v96, s53, v96
        s_lshl_b32 s53, s44, 4
        s_add_u32 s53, s53, {L_AST}
        v_lshlrev_b32 v97, 3, v97
        v_add_u32 v98, s53, v97
        v_add_u32 v99, {L_AST}, v97
        v_bfe_u32 v100, v0, 3, 2
        v_and_b32 v101, 7, v0
        v_lshlrev_b32 v101, 4, v101
        v_lshl_add_u32 v101, v100, 8, v101
        v_add_u32 v101, {L_ACOMB}, v101
        v_and_b32 v102, 1, v0
        v_lshlrev_b32 v102, 8, v102
        v_lshl_add_u32 v102, v100, 6, v102
        v_bfe_u32 v100, v0, 1, 2
        v_lshl_add_u32 v102, v100, 4, v102   ; h*256 + j*64 + g'*16
        v_cmp_lt_u32 vcc, 31, v0
        v_cndmask_b32 v102, v102, v1, vcc
        v_mov_b32 v104, {L_CNT + 4 * 15}
        v_mov_b32 v105, 1
        s_lshl_b32 s54, s47, 10
        s_add_u32 s54, s54, {WS_OP}
        """)
        body(KB, VB, "e1")
        a("s_mov_b64 exec, 3\nds_write_b64 v98, v[4:5]")
        a("s_mov_b32 exec_lo, 0x00030003\ns_mov_b32 exec_hi, 0x00030003")
        for i in range(8): a(f"ds_write_b128 v96, {vr(ACC+4*i)} offset:{128*i}")
        nc = a.new_label(L("L_nocomb"))
        a(f"""
        s_mov_b64 exec, 1
        ds_add_rtn_u32 v106, v104, v105
        s_mov_b64 exec, -1
        s_waitcnt lgkmcnt(0)
        v_readfirstlane_b32 s55, v106
        s_cmp_lg_u32 s55, 3
        s_cbranch_scc1 {nc}
        """)
        for w in range(4): a(f"ds_read_b64 v[{16+2*w}:{17+2*w}], v99 offset:{16*w}")
        for w in range(4):
            a(f"ds_read_b128 {vr(32+8*w)}, v101 offset:{1024*w}\nds_read_b128 {vr(36+8*w)}, v101 offset:{1024*w+128}")
        a(f"""
        s_waitcnt lgkmcnt(8)
        v_max3_f32 v24, v16, v18, v20
        v_max_f32 v24, v24, v22
        v_sub_f32 v16, v16, v24
        v_sub_f32 v18, v18, v24
        v_sub_f32 v20, v20, v24
        v_sub_f32 v22, v22, v24
        v_exp_f32 v16, v16
        v_exp_f32 v18, v18
        v_exp_f32 v20, v20
        v_exp_f32 v22, v22
        v_mul_f32 v25, v16, v17
        v_fmac_f32 v25, v18, v19
        v_fmac_f32 v25, v20, v21
        v_fmac_f32 v25, v22, v23
        s_waitcnt lgkmcnt(6)
        """)
        for e in range(8): a(f"v_mul_f32 v{64+e}, v16, v{32+e}")
        for w in range(1, 4):
            a(f"s_waitcnt lgkmcnt({6 - 2*w})")
            for e in range(8): a(f"v_fmac_f32 v{64+e}, v{16+2*w}, v{32+8*w+e}")
        for w in range(4): a(f"v_cvt_pk_bf16_f32 v{72+w}, v{64+2*w}, v{65+2*w}")
        a(f"""
        v_mov_b32_dpp v72, v24 quad_perm:[0,0,0,0] row_mask:0xc bank_mask:0xf
        v_mov_b32_dpp v73, v25 quad_perm:[0,0,0,0] row_mask:0xc bank_mask:0xf
        v_mov_b32_dpp v74, v24 quad_perm:[1,1,1,1] row_mask:0xc bank_mask:0xf
        v_mov_b32_dpp v75, v25 quad_perm:[1,1,1,1] row_mask:0xc bank_mask:0xf
        """)
        self.sanitize([72, 73, 74, 75])
        a(f"""
        s_mov_b32 exec_hi, 0xff
        buffer_store_dwordx4 v[72:75], v102, s[4:7], s54 offen sc1
        s_mov_b64 exec, -1
        """)
        self.stamp(11)
        a(f"s_branch {L('L_fin')}")
        a.label(nc)
        a(f"s_cmp_lg_u32 s55, 0\ns_cbranch_scc1 {L('L_fin')}")

    def reducer(self):
        a = self.a; L = self.L
        self.srd(12, P_OUT, 4608 * 2)
        t2 = a.new_label(L("L_rt2")); tj = a.new_label(L("L_rtj"))
        a(f"""
        s_cmp_ge_u32 s2, 72
        s_cbranch_scc1 {L('L_fin')}
        s_cmp_ge_u32 s2, 36
        s_cselect_b32 s56, 36, 0
        s_cselect_b32 s57, {WS_YB - WS_YA}, 0
        s_cselect_b32 s60, 1152, 0
        s_cselect_b32 s61, 3, 131
        s_sub_u32 s56, s2, s56               ; r
        s_add_u32 s57, s57, {WS_YA}
        s_mul_i32 s58, s56, 7282
        s_lshr_b32 s58, s58, 16              ; b = r/9
        s_mul_i32 s59, s58, 9
        s_sub_u32 s59, s56, s59              ; grp
        s_mul_i32 s62, s58, 2304
        s_add_u32 s60, s60, s62
        s_lshl_b32 s62, s59, 7
        s_add_u32 s60, s60, s62
        s_lshl_b32 s62, s59, 10
        s_add_u32 s57, s57, s62
        v_lshrrev_b32 v1, 4, v0
        v_and_b32 v2, 15, v0
        v_mul_u32_u24 v3, 9216, v1
        v_and_b32 v6, 31, v0
        v_lshlrev_b32 v6, 2, v6
        v_add_u32 v6, s61, v6
        s_cmp_eq_u32 s59, 8
        s_cbranch_scc1 {t2}
        s_lshl_b32 s62, s58, 8
        v_lshl_add_u32 v3, v2, 4, v3
        v_lshlrev_b32 v5, 1, v0
        s_branch {tj}
        {t2}:
        s_lshl_b32 s62, s58, 6
        v_lshrrev_b32 v4, 2, v2
        v_lshl_add_u32 v3, v4, 8, v3
        v_and_b32 v4, 3, v2
        v_lshl_add_u32 v3, v4, 4, v3
        v_lshl_add_u32 v5, v2, 2, v1
        v_lshlrev_b32 v5, 1, v5
        {tj}:
        s_add_u32 s57, s57, s62
        """)
        for k in range(8): a(f"s_add_u32 s{16+k}, s57, {k * 4 * 9216}")
        self.check_flags(6, 44)
        self.stamp(12)
        self.poll([f"buffer_load_dwordx4 {vr(8+4*k)}, v3, s[4:7], s{16+k} offen sc1" for k in range(8)], range(8, 40), 44, sleep=1)
        for st in (16, 8, 4):
            for c in range(st): a(f"v_add_f32 v{8+c}, v{8+c}, v{8+st+c}")
        a("""
        v_permlane32_swap_b32 v8, v10
        v_permlane32_swap_b32 v9, v11
        v_add_f32 v8, v8, v10
        v_add_f32 v9, v9, v11
        v_permlane16_swap_b32 v8, v9
        v_add_f32 v8, v8, v9
        v_cvt_pk_bf16_f32 v8, v8, v8
        buffer_store_short v8, v5, s[12:15], s60 offen
        """)
        if self.fused:
            a(f"""
            s_cmp_lg_u32 s2, 0
            s_cbranch_scc1 {L('L_fin')}
            v_mov_b32 v8, s{S_TAG}
            v_mov_b32 v9, 0
            s_mov_b64 exec, 1
            buffer_store_dword v8, v9, s[4:7], 0 offen sc1
            s_mov_b64 exec, -1
            """)

def emit(fname, o):
    if o.mode == "fused":
        g = Gen({"CLR", "PQ", "AT", "BH1", "BH2", "BA", "A", "RED"}, True, o)
        a = g.build()
        txt = kernel_file([(NAME + "_kernel", (256, 1, 1), (512, 1, 1), LDS_SIZE)], [(NAME + "_kernel", a.text(), 256, 102, 256)])
    else:
        phases = [("k0", {"CLR"}), ("k1", {"PQ"}), ("k2", {"BH1", "A"}), ("k3", {"BA", "AT"}), ("k4", {"BH2"}), ("k5", {"RED"})]
        ks = []; ls = []
        for nm, en in phases:
            g = Gen(en, False, o, tag="_" + nm)
            a = g.build()
            ks.append((nm + "_kernel", a.text(), 256, 102, 256)); ls.append((nm + "_kernel", (256, 1, 1), (512, 1, 1), LDS_SIZE))
        txt = kernel_file(ls, ks)
    open(fname, "w").write(txt)

if __name__ == "__main__":
    import argparse
    ap = argparse.ArgumentParser()
    ap.add_argument("out"); ap.add_argument("--mode", default="fused"); ap.add_argument("-D", type=int, default=10); ap.add_argument("--DS", type=int, default=16)
    ap.add_argument("--stamps", action="store_true"); ap.add_argument("--D0", type=int, default=10); ap.add_argument("--sig", type=int, default=1); ap.add_argument("--sprio", type=int, default=2); ap.add_argument("--bh2hold", type=int, default=0); ap.add_argument("--sh1", default=""); ap.add_argument("--sh2", default=""); ap.add_argument("--NC0", type=int, default=16)
    x = ap.parse_args()
    if x.sh1: SH1 = tuple(int(v) for v in x.sh1.split(","))
    if x.sh2: SH2 = tuple(int(v) for v in x.sh2.split(","))
    assert sum(SH1) == 128 and sum(SH2) == 128
    emit(x.out, x)
```

```python
import sys, math, struct
from asmlib import *

WS_EP   = 0x00000
WS_OP   = 0x10000
WS_T1S  = 0x50000
WS_QABS = 0x70000
WS_FLG  = 0x08000
WS_YA   = 0x90000
WS_YB   = 0xD8000
WS_BP   = 0x200000
WS_SIZE = 0x10000000
STAMPOFF = 200 << 20
PH_OFF = 201 << 20
L_PQ    = 73728
L_P     = 131072
L_MX    = 139264
L_ACOMB = 147456
L_AST   = 151552
L_CNT   = 151616
L_SM    = 151680
L_QA    = L_SM + 6400
LDS_SIZE = 163840
OOB = 0x40000000
NEGMAX = 0xFF7FFFFF
CSC = struct.unpack("<I", struct.pack("<f", (128 ** -0.5) * math.log2(math.e)))[0]
DPPM = "row_mask:0xf bank_mask:0xf"
SPIN = 200000
P_AX, P_K, P_V, P_WQ, P_WO, P_BX, P_CKV, P_BWQ, P_WUK, P_WUV, P_BWO, P_OUT, P_DBG, P_WS = [64 + 2 * i for i in range(14)]
S_TAG = 63
NSPLIT_B = 16
SH1 = (30, 30, 45, 23)
SH2 = (26, 26, 41, 35)
def share(pair, t):
    sh = SH1 if pair < 32 else SH2
    u0 = sum(sh[:t])
    return 32 * u0, 32 * (u0 + sh[t])
def vr(b, n=4): return f"v[{b}:{b+n-1}]"
MF = "v_mfma_f32_16x16x32_bf16"

class Gen:
    def __init__(self, en, fused, opt, tag=""):
        self.a = Asm(); self.en = en; self.fused = fused; self.o = opt; self.stamps = opt.stamps and fused; self.tag = tag
    def L(self, s): return s + self.tag
    def srd(self, d, p, size):
        self.a(f"s_mov_b32 s{d}, s{p}\ns_mov_b32 s{d+1}, s{p+1}\ns_mov_b32 s{d+2}, {size}\ns_mov_b32 s{d+3}, 0x20000")
    def stamp(self, k, vt=250):
        if not self.stamps: return
        self.a(f"""
        s_memrealtime s[92:93]
        s_lshl_b32 s94, s2, 7
        s_add_u32 s94, s94, {PH_OFF + 8 * k}
        s_waitcnt lgkmcnt(0)
        v_mov_b32 v{vt}, s92
        v_mov_b32 v{vt+1}, s93
        v_mov_b32 v{vt+2}, 0
        s_mov_b64 s[96:97], exec
        s_mov_b64 exec, 1
        buffer_store_dwordx2 v[{vt}:{vt+1}], v{vt+2}, s[4:7], s94 offen
        s_mov_b64 exec, s[96:97]
        """)
    def wait_lds(self, slot, target, vt, sleep=0):
        a = self.a; lab = a.new_label(self.L("L_wl"))
        a(f"""
        v_mov_b32 v{vt}, {L_CNT + 4 * slot}
        s_mov_b32 s29, {SPIN * 8}
        {lab}:
        ds_read_b32 v{vt+1}, v{vt}
        s_sub_u32 s29, s29, 1
        s_cbranch_scc1 {lab}_x
        s_waitcnt lgkmcnt(0)
        v_readfirstlane_b32 s28, v{vt+1}
        s_cmp_ge_u32 s28, {target}
        s_cbranch_scc1 {lab}_x
        """)
        if sleep: a(f"s_sleep {sleep}")
        a(f"s_branch {lab}\n{lab}_x:\ns_waitcnt lgkmcnt(0)")
    def sbar(self, k, vt):
        self.a(f"""
        s_waitcnt lgkmcnt(0)
        v_mov_b32 v{vt}, {L_CNT + 4 * k}
        v_mov_b32 v{vt+1}, 1
        s_mov_b64 exec, 1
        ds_add_u32 v{vt}, v{vt+1}
        s_mov_b64 exec, -1
        """)
        self.wait_lds(k, 4, vt)
    def signal(self, k, vt):
        if not self.fused: return
        self.a(f"""
        v_mov_b32 v{vt}, {L_CNT + 4 * k}
        v_mov_b32 v{vt+1}, 1
        s_mov_b64 exec, 1
        ds_add_u32 v{vt}, v{vt+1}
        s_mov_b64 exec, -1
        """)
    def get_tag(self, vt):
        if not self.fused: return
        self.wait_lds(12, 1, vt, 1)
        self.a(f"ds_read_b32 v{vt+1}, v{vt} offset:4\ns_waitcnt lgkmcnt(0)\nv_readfirstlane_b32 s{S_TAG}, v{vt+1}")
    def check_flags(self, voff, vt):
        if not self.fused: return
        a = self.a; lab = a.new_label(self.L("L_cf"))
        a(f"""
        s_mov_b32 s29, {SPIN}
        {lab}:
        buffer_load_dword v{vt+1}, v{voff}, s[4:7], 0 offen sc1
        s_sub_u32 s29, s29, 1
        s_cbranch_scc1 {lab}_x
        s_waitcnt vmcnt(0)
        v_cmp_ne_u32 vcc, s{S_TAG}, v{vt+1}
        s_cbranch_vccz {lab}_x
        s_mov_b64 exec, vcc
        s_sleep 4
        s_branch {lab}
        {lab}_x:
        s_mov_b64 exec, -1
        s_waitcnt vmcnt(0)
        """)
    def flag_wg(self, v):
        self.a(f"v_lshlrev_b32 v{v}, 7, v{v}\nv_add_u32 v{v}, {WS_FLG}, v{v}")
    def flag_aid(self, v):
        self.a(f"v_lshlrev_b32 v{v}, 10, v{v}\nv_add_u32 v{v}, {WS_OP + 896}, v{v}")
    def gate(self, val, vt):
        if not self.fused: return
        a = self.a; lab = a.new_label(self.L("L_gate"))
        a(f"""
        s_cmp_lg_u32 s3, 0
        s_cbranch_scc1 {lab}
        v_mov_b32 v{vt}, {L_CNT + 4 * 10}
        v_mov_b32 v{vt+1}, {val}
        ds_write_b32 v{vt}, v{vt+1}
        {lab}:
        """)
    def maxchain(self, regs, vt):
        a = self.a
        rs = list(regs); cur = rs[0]; rest = rs[1:]
        while rest:
            if len(rest) >= 2:
                a(f"v_max3_u32 v{vt}, v{cur}, v{rest[0]}, v{rest[1]}"); rest = rest[2:]
            else:
                a(f"v_max_u32 v{vt}, v{cur}, v{rest[0]}"); rest = rest[1:]
            cur = vt
        a(f"v_cmp_eq_u32 vcc, -1, v{cur}")
    def fpoll(self, loads, regs, vt, depth=2, sleep=0):
        a = self.a; lab = a.new_label(self.L("L_fp")); n = len(loads)
        a(f"s_mov_b32 s29, {SPIN}")
        for _ in range(depth - 1):
            for l in loads: a(l)
            if sleep: a(f"s_sleep {sleep}")
        a.label(lab)
        for l in loads: a(l)
        a(f"s_sub_u32 s29, s29, 1\ns_cbranch_scc1 {lab}_x\ns_waitcnt vmcnt({n * (depth - 1)})")
        self.maxchain(regs, vt)
        a(f"s_cbranch_vccz {lab}_x\ns_mov_b64 exec, vcc\ns_branch {lab}\n{lab}_x:\ns_mov_b64 exec, -1")
    def poll(self, loads, regs, vt, sleep=4):
        a = self.a; lab = a.new_label(self.L("L_poll"))
        a(f"s_mov_b32 s29, {SPIN}\n{lab}:")
        for l in loads: a(l)
        a(f"s_sub_u32 s29, s29, 1\ns_cbranch_scc1 {lab}_x\ns_waitcnt vmcnt(0)")
        self.maxchain(regs, vt)
        a(f"s_cbranch_vccz {lab}_x\ns_mov_b64 exec, vcc")
        if sleep: a(f"s_sleep {sleep}")
        a(f"s_branch {lab}\n{lab}_x:\ns_mov_b64 exec, -1\ns_waitcnt vmcnt(0)")
    def sanitize(self, regs):
        for r in regs: self.a(f"v_min_u32 v{r}, -2, v{r}")
    def xg_reduce(self, op, x, y):
        self.a(f"""
        v_mov_b32 v{y}, v{x}
        v_permlane16_swap_b32 v{x}, v{y}
        {op} v{x}, v{x}, v{y}
        v_mov_b32 v{y}, v{x}
        v_permlane32_swap_b32 v{x}, v{y}
        {op} v{x}, v{x}, v{y}
        """)
    def dma(self, voff, srd, soff, imm=0, depth=None):
        self.a(f"s_waitcnt vmcnt({(depth or self.o.DS) - 1})")
        self.a(f"buffer_load_dwordx4 v{voff}, {srd}, {soff} offen offset:{imm} nt lds")

    def build(self):
        a = self.a; L = self.L
        a(f"""
        s_cmp_ge_u32 s2, 256
        s_cbranch_scc1 {L('L_end')}
        s_load_dwordx16 s[64:79], s[0:1], 0
        s_load_dwordx8 s[80:87], s[0:1], 64
        s_load_dwordx4 s[88:91], s[0:1], 96
        """)
        if self.stamps: a("s_memrealtime s[98:99]")
        l1 = a.new_label(L("L_id1")); l2 = a.new_label(L("L_id2"))
        a(f"""
        v_lshrrev_b32 v1, 6, v0
        v_and_b32 v0, 63, v0
        v_readfirstlane_b32 s3, v1
        v_lshlrev_b32 v1, 2, v0
        v_add_u32 v1, {L_CNT}, v1
        v_mov_b32 v2, 0
        s_mov_b64 exec, 0xffff
        ds_write_b32 v1, v2
        s_mov_b64 exec, -1
        s_lshr_b32 s28, s2, 5                ; 0..7
        s_lshl_b32 s29, s28, 2
        s_lshr_b32 s46, 0x13220030, s29
        s_and_b32 s46, s46, 15
        s_lshr_b32 s45, 0x20440000, s29
        s_and_b32 s45, s45, 15               ; rotation : T3 4, AT 2
        s_add_u32 s45, s45, s2
        s_and_b32 s45, s45, 31
        s_lshr_b32 s29, 0x22, s28
        s_and_b32 s29, s29, 1
        s_lshl_b32 s29, s29, 5
        s_add_u32 s45, s45, s29
        s_lshr_b32 s28, s2, 6
        s_cmp_lg_u32 s28, 1
        s_cbranch_scc1 {l2}
        s_lshr_b32 s45, s2, 1
        s_and_b32 s46, s2, 1
        {l2}:
        s_lshl_b32 s47, s45, 2
        s_add_u32 s47, s47, s46
        v_lshrrev_b32 v1, 4, v0
        v_and_b32 v2, 15, v0
        v_lshlrev_b32 v4, 4, v0
        s_waitcnt lgkmcnt(0)
        """)
        self.srd(4, P_WS, WS_SIZE)
        if "CLR" in self.en: self.clear()
        a(f"""
        s_barrier
        s_cmp_ge_u32 s3, 4
        s_cbranch_scc1 {L('L_awave')}
        s_setprio {self.o.sprio}
        s_cmp_ge_u32 s2, 224
        s_cbranch_scc1 {L('L_at')}
        s_cmp_ge_u32 s2, 192
        s_cbranch_scc1 {L('L_bh2')}
        s_cmp_ge_u32 s2, 128
        s_cbranch_scc1 {L('L_bh1')}
        """)
        self.role_t1()
        a.label(L("L_at"));  self.role_at();  a(f"s_branch {L('L_fin')}")
        a.label(L("L_bh1")); self.role_bh1(); a(f"s_branch {L('L_fin')}")
        a.label(L("L_bh2")); self.role_bh2(); a(f"s_branch {L('L_fin')}")
        a.label(L("L_awave")); self.role_a()
        a.label(L("L_fin"))
        if self.stamps:
            a(f"""
            s_mov_b64 exec, -1
            s_waitcnt vmcnt(0)
            s_memrealtime s[92:93]
            s_lshl_b32 s94, s2, 3
            s_add_u32 s94, s94, s3
            s_lshl_b32 s94, s94, 4
            s_add_u32 s94, s94, {STAMPOFF}
            s_waitcnt lgkmcnt(0)
            v_mov_b32 v4, s98
            v_mov_b32 v5, s99
            v_mov_b32 v6, s92
            v_mov_b32 v7, s93
            v_mov_b32 v1, 0
            s_mov_b64 exec, 1
            buffer_store_dwordx4 v[4:7], v1, s[4:7], s94 offen
            """)
        a.label(L("L_end"))
        a("s_endpgm")
        return a

    def clear(self):
        a = self.a; L = self.L
        done = a.new_label(L("L_clrd")); c1 = a.new_label(L("L_clr1")); c2 = a.new_label(L("L_clr2")); lp = a.new_label(L("L_clrl"))
        a(f"""
        s_cmp_lg_u32 s3, 4
        s_cbranch_scc1 {done}
        s_setprio 3
        s_load_dword s{S_TAG}, s[{P_WS}:{P_WS+1}], 0
        v_mov_b32 v8, -1
        v_mov_b32 v9, -1
        v_mov_b32 v10, -1
        v_mov_b32 v11, -1
        s_lshl_b32 s30, s47, 10
        s_add_u32 s30, s30, {WS_OP}
        s_lshr_b32 s31, s2, 5
        s_cmp_eq_u32 s31, 6
        s_cselect_b32 s31, 0, -1
        s_cselect_b32 s32, {NEGMAX}, -1
        v_mov_b32 v12, s31
        v_mov_b32 v13, s31
        v_mov_b32 v14, s31
        v_mov_b32 v15, s31
        s_mov_b32 exec_lo, 0
        v_mov_b32 v12, s32
        v_mov_b32 v14, s32
        s_mov_b32 exec_lo, -1
        s_mov_b32 exec_hi, 0xffffff
        buffer_store_dwordx4 v[12:15], v4, s[4:7], s30 offen sc1
        s_mov_b64 exec, -1
        s_cmp_ge_u32 s2, 128
        s_cbranch_scc1 {c1}
        s_lshl_b32 s31, s2, 10
        s_add_u32 s31, s31, {WS_T1S}
        s_mov_b32 s32, 1
        s_branch {lp}
        {c1}:
        s_cmp_ge_u32 s2, 192
        s_cbranch_scc1 {c2}
        s_lshl_b32 s31, s2, 11
        s_add_u32 s31, s31, {WS_QABS - 128 * 2048}
        s_mov_b32 s32, 2
        s_branch {lp}
        {c2}:
        s_and_b32 s31, s2, 31
        s_mul_i32 s31, s31, 9216
        s_add_u32 s31, s31, {WS_YB}
        s_cmp_ge_u32 s2, 224
        s_cselect_b32 s32, {WS_YB - WS_YA}, 0
        s_sub_u32 s31, s31, s32
        s_mov_b32 s32, 9
        {lp}:
        buffer_store_dwordx4 v[8:11], v4, s[4:7], s31 offen sc1
        s_add_u32 s31, s31, 1024
        s_sub_u32 s32, s32, 1
        s_cmp_lg_u32 s32, 0
        s_cbranch_scc1 {lp}
        {done}:
        """)
    def clear_finish(self):
        a = self.a; L = self.L
        done = a.new_label(L("L_clrf"))
        a(f"""
        s_cmp_lg_u32 s3, 4
        s_cbranch_scc1 {done}
        s_waitcnt lgkmcnt(0)
        s_mul_i32 s{S_TAG}, s{S_TAG}, 0x9E3779B1
        s_add_u32 s{S_TAG}, s{S_TAG}, 0x7F4A7C15
        v_mov_b32 v8, s{S_TAG}
        v_mov_b32 v9, s{S_TAG}
        v_mov_b32 v10, s{S_TAG}
        v_mov_b32 v11, s{S_TAG}
        v_mov_b32 v12, 1
        v_mov_b32 v13, s{S_TAG}
        v_mov_b32 v14, {L_CNT + 4 * 12}
        s_lshl_b32 s31, s2, 7
        s_add_u32 s31, s31, {WS_FLG}
        s_waitcnt vmcnt(0)
        s_mov_b64 exec, 0xff
        buffer_store_dwordx4 v[8:11], v4, s[4:7], s30 offen offset:896 sc1
        buffer_store_dwordx4 v[8:11], v4, s[4:7], s31 offen sc1
        s_mov_b64 exec, 1
        ds_write_b64 v14, v[12:13]
        s_mov_b64 exec, -1
        s_setprio 0
        """)
        self.stamp(8)
        a.label(done)

    def role_t1(self):
        a = self.a; L = self.L
        f = lambda x: ((x & 7) << 1) | (x >> 3)
        PQ = "PQ" in self.en; BA = "BA" in self.en
        T2 = 192
        def c_setup():
            self.srd(20, P_CKV, 16 << 20)
            for r in range(16): a(f"v_xor_b32 v{24+r}, {f(r) << 4}, v4")
            a("s_sub_u32 s33, s2, 64\ns_lshl_b32 s36, s33, 18")
        def c_loads(s_row16):
            a(f"s_lshl_b32 s37, {s_row16}, 14\ns_add_u32 s34, s36, s37")
            for r in range(16):
                if r % 4 == 0: a("s_mov_b32 m0, s37")
                self.dma(24 + r, "s[20:23]", "s34", (r % 4) * 1024, self.o.DC)
                if r % 4 == 3: a("s_add_u32 s34, s34, 4096\ns_add_u32 s37, s37, 4096")
            a("s_lshl_b32 s37, s3, 14\ns_add_u32 s35, s36, s37\ns_add_u32 s35, s35, 131072")
            for r in range(self.o.t2e): t2_load(r, True)
        def t2_load(r, throttle=False):
            if r >= 16: return
            a(f"v_xor_b32 v23, {f(r) << 4}, v4")
            if throttle: a(f"s_waitcnt vmcnt({self.o.DC - 1})")
            a(f"buffer_load_dwordx4 {vr(T2 + 4*r)}, v23, s[20:23], s35 offen offset:{(r % 4) * 1024} nt")
            if r % 4 == 3: a("s_add_u32 s35, s35, 4096")
        if PQ:
            X = 64
            L_X = L_SM + 1024
            a(f"""
            s_cmp_lt_u32 s2, 64
            s_cselect_b32 s12, s{P_BWQ}, s{P_WQ}
            s_cselect_b32 s13, s{P_BWQ+1}, s{P_WQ+1}
            s_mov_b32 s14, {576 * 8192}
            s_mov_b32 s15, 0x20000
            s_cselect_b32 s16, s{P_BX}, s{P_AX}
            s_cselect_b32 s17, s{P_BX+1}, s{P_AX+1}
            s_mov_b32 s18, {4 * 1152}
            s_mov_b32 s19, 0x20000
            s_and_b32 s34, s2, 63
            s_lshl_b32 s34, s34, 7               ; h*256 + ch*128
            s_mul_i32 s35, s3, {18 * 65536}
            s_add_u32 s34, s34, s35
            s_mul_i32 s35, s3, {18 * 1024}
            s_add_u32 s35, s35, {L_PQ}
            v_lshlrev_b32 v5, 1, v1
            v_and_b32 v6, 7, v0
            v_xor_b32 v5, v5, v6
            v_lshlrev_b32 v5, 4, v5
            v_lshrrev_b32 v6, 3, v0
            v_lshl_add_u32 v5, v6, 13, v5
            s_mov_b32 m0, {L_X}
            v_and_b32 v6, 3, v2
            buffer_load_dwordx4 v4, s[16:19], 0 offen lds
            buffer_load_dwordx4 v4, s[16:19], 0 offen offset:1024 lds
            buffer_load_dwordx4 v4, s[16:19], 0 offen offset:2048 lds
            buffer_load_dwordx4 v4, s[16:19], 0 offen offset:3072 lds
            s_mov_b32 m0, {L_X + 4096}
            s_mov_b32 s38, 4096
            buffer_load_dwordx4 v4, s[16:19], s38 offen lds
            """)
            for i in range(18):
                a("s_mov_b32 m0, s35")
                self.dma(5, "s[12:15]", "s34", 0, 60)
                if i != 17: a("s_add_u32 s34, s34, 65536\ns_add_u32 s35, s35, 1024")
            if self.o.gpq == 0: self.gate(4, 16)
            a(f"""
            v_mul_u32_u24 v6, 1152, v6
            v_lshl_add_u32 v6, v1, 3, v6
            v_add_u32 v6, {L_X}, v6
            s_waitcnt vmcnt(18)
            """)
            for s in range(18):
                a(f"ds_read2_b64 {vr(X + 4*s)}, v6 offset0:{8*s} offset1:{8*s+4}")
                if s == 12: a("s_waitcnt lgkmcnt(8)")
            a(f"""
            v_lshrrev_b32 v7, 2, v0
            v_bfe_u32 v8, v0, 3, 2
            v_xor_b32 v8, s3, v8
            v_lshlrev_b32 v8, 5, v8
            v_lshl_add_u32 v8, v7, 7, v8
            v_and_b32 v7, 3, v0
            v_lshl_add_u32 v8, v7, 3, v8
            v_add_u32 v8, {L_PQ}, v8
            v_add_u32 v9, 0x8000, v8
            v_and_b32 v6, 3, v2
            v_lshlrev_b32 v6, 7, v6
            v_lshl_add_u32 v6, v1, 3, v6
            s_lshl_b32 s38, s3, 5
            s_add_u32 s38, s38, {L_SM}
            v_add_u32 v6, s38, v6
            """)
            self.get_tag(16)
            if self.o.gpq == 1:
                a("s_waitcnt vmcnt(8)"); self.gate(4, 16)
            a("s_waitcnt vmcnt(0)")
            if self.o.gpq == 2: self.gate(4, 16)
            self.stamp(0, 20)
            self.sbar(0, 16)
            W = 140; NB = 8; PRE = 6
            def rd(s):
                base, off = (8, s * 4096) if s < 8 else (9, (s - 8) * 4096)
                r = W + 4 * (s % NB)
                a(f"ds_read_b64_tr_b16 v[{r}:{r+1}], v{base} offset:{off}")
                a(f"ds_read_b64_tr_b16 v[{r+2}:{r+3}], v{base} offset:{off + 2048}")
            for s in range(PRE): rd(s)
            for s in range(18):
                if s + PRE < 18: rd(s + PRE)
                a(f"s_waitcnt lgkmcnt({2 * min(PRE, 17 - s)})")
                acc = 40 + 4 * (s & 1)
                a(f"{MF} {vr(acc)}, {vr(W + 4 * (s % NB))}, {vr(X + 4*s)}, {'0' if s < 2 else vr(acc)}")
            a(f"""
            v_add_f32 v40, v40, v44
            v_add_f32 v41, v41, v45
            v_add_f32 v42, v42, v46
            v_add_f32 v43, v43, v47
            v_cvt_pk_bf16_f32 v44, v40, v41
            v_cvt_pk_bf16_f32 v45, v42, v43
            """)
            self.sanitize([44, 45])
            a("ds_write_b64 v6, v[44:45]")
            self.sbar(1, 16)
            sk = a.new_label(L("L_pqs"))
            a(f"""
            s_cmp_lg_u32 s3, 0
            s_cbranch_scc1 {sk}
            v_add_u32 v6, {L_SM}, v4
            s_lshl_b32 s38, s2, 10
            s_add_u32 s38, s38, {WS_T1S}
            s_mov_b32 exec_hi, 0
            ds_read_b128 v[40:43], v6
            s_waitcnt lgkmcnt(0)
            buffer_store_dwordx4 v[40:43], v4, s[4:7], s38 offen sc1
            s_mov_b64 exec, -1
            """)
            if self.o.gpq == 3: self.gate(4, 16)
            self.stamp(1, 20)
            a.label(sk)
        a(f"s_cmp_lt_u32 s2, 64\ns_cbranch_scc1 {L('L_fin')}")
        if not BA:
            a(f"s_branch {L('L_fin')}")
            a.label(L("L_ba_a"))
            a(f"s_branch {L('L_amain')}")
            return
        c_setup()
        a("s_add_u32 s38, s3, 4")
        c_loads("s38")
        a(f"s_branch {L('L_ba_c')}")
        a.label(L("L_ba_a"))
        c_setup()
        if self.fused: self.wait_lds(10, 1, 16, 1)
        c_loads("s44")
        self.get_tag(16)
        if "A" in self.en:
            sk = a.new_label(L("L_noq"))
            a(f"""
            s_cmp_lg_u32 s3, 4
            s_cbranch_scc1 {sk}
            s_and_b32 s52, s45, 15
            s_lshl_b32 s53, s52, 2
            s_add_u32 s53, s53, 64
            v_bfe_u32 v10, v0, 3, 2
            v_add_u32 v11, s53, v10
            """)
            self.flag_wg(11)
            a(f"""
            s_lshl_b32 s53, s45, 12
            s_add_u32 s53, s53, {WS_OP + 896}
            v_mov_b32 v12, s53
            v_cmp_lt_u32 vcc, 31, v0
            v_cndmask_b32 v11, v11, v12, vcc
            v_and_b32 v12, 7, v0
            v_lshlrev_b32 v12, 4, v12
            v_lshl_add_u32 v12, v10, 10, v12
            s_lshl_b32 s52, s52, 12
            s_lshr_b32 s53, s45, 4
            s_lshl_b32 s53, s53, 7
            s_add_u32 s52, s52, s53
            s_add_u32 s52, s52, {WS_T1S + 64 * 1024}
            v_add_u32 v13, {L_QA}, v4
            """)
            self.check_flags(11, 16)
            a("s_mov_b32 exec_hi, 0")
            self.poll(["buffer_load_dwordx4 v[40:43], v12, s[4:7], s52 offen sc1"], range(40, 44), 16, sleep=4)
            a(f"s_mov_b32 exec_hi, 0\nds_write_b128 v13, v[40:43]\ns_mov_b64 exec, -1\n{sk}:")
        a(f"s_setprio {self.o.sprio}")
        a.label(L("L_ba_c"))
        L_QS = L_P
        a(f"""
        s_and_b32 s38, s3, 1             ; hg
        s_lshr_b32 s43, s3, 1            ; kq
        v_and_b32 v5, 7, v2
        v_lshlrev_b32 v5, 1, v5
        v_lshrrev_b32 v6, 3, v2
        v_or_b32 v5, v5, v6
        v_lshlrev_b32 v5, 4, v5
        v_lshl_add_u32 v5, v1, 8, v5
        v_lshl_add_u32 v5, v2, 10, v5
        s_lshl_b32 s37, s43, 15
        v_add_u32 v5, s37, v5
        s_lshr_b32 s39, s33, 4           ; b
        s_lshl_b32 s39, s39, 9
        s_lshl_b32 s40, s3, 13
        s_add_u32 s39, s39, s40
        s_add_u32 s39, s39, {WS_QABS}    ; heads 2w,2w+1
        s_add_u32 s40, s39, 4096
        s_add_u32 s41, s39, 65536
        s_add_u32 s42, s39, {65536 + 4096}
        v_lshrrev_b32 v10, 5, v0
        v_lshlrev_b32 v10, 11, v10
        v_and_b32 v11, 31, v0
        v_lshl_add_u32 v10, v11, 4, v10  ; (l>>5)*2048 + (l&31)*16
        v_mov_b32 v3, {CSC}
        v_add_u32 v11, 128, v0
        s_lshl_b32 s37, s3, 5            ; n0*16 with n0 = 2w
        v_xor_b32 v12, s37, v4
        s_lshl_b32 s37, s3, 11
        s_add_u32 s37, s37, {L_QS}
        v_add_u32 v12, s37, v12
        v_xor_b32 v13, 16, v12
        v_add_u32 v13, 1024, v13         ; head 2w+1
        v_xor_b32 v14, v1, v2
        v_lshlrev_b32 v14, 4, v14
        v_lshl_add_u32 v14, v2, 10, v14
        v_add_u32 v14, {L_QS}, v14
        v_xor_b32 v15, 64, v14
        v_xor_b32 v18, 0x80, v14
        v_xor_b32 v19, 0xc0, v14
        """)
        self.flag_wg(11)
        self.check_flags(11, 16)
        a("s_waitcnt vmcnt(0)\ns_barrier")
        self.stamp(2, 20)
        G = 40; Q = 64
        self.fpoll([f"buffer_load_dwordx4 {vr(G + 4*k)}, v10, s[4:7], s{39+k} offen sc1" for k in range(4)], range(G, G + 16), 16, depth=2, sleep=2)
        nt2 = [self.o.t2e]
        def t2_more(n):
            for _ in range(n):
                t2_load(nt2[0]); nt2[0] += 1
        t2_more(4)
        self.stamp(3, 20)
        def qread():
            for j in range(16):
                a(f"ds_read_b128 {vr(Q + 4*j)}, v{[14, 15, 18, 19][j & 3]} offset:{(j >> 2) * 256}")
                if j == 11: a("s_waitcnt lgkmcnt(8)")
        for hg in range(2):
            sk = a.new_label(L("L_qs"))
            a(f"""
            ds_write_b128 v12, {vr(G + 8*hg)}
            ds_write_b128 v13, {vr(G + 8*hg + 4)}
            s_waitcnt lgkmcnt(0)
            s_barrier
            s_cmp_lg_u32 s38, {hg}
            s_cbranch_scc1 {sk}
            """)
            qread()
            a(f"s_waitcnt lgkmcnt(0)\n{sk}:")
            t2_more(2)
            if hg == 0: a("s_barrier")
        a(f"""
        v_lshlrev_b32 v12, 4, v2
        v_add_u32 v12, {L_SM}, v12
        s_lshl_b32 s37, s38, 8
        s_lshl_b32 s39, s43, 2
        s_add_u32 s37, s37, s39
        v_add_u32 v13, s37, v12
        s_lshl_b32 s37, s38, 12
        s_lshl_b32 s39, s43, 10
        s_add_u32 s37, s37, s39
        s_add_u32 s37, s37, {L_P}
        v_add_u32 v14, s37, v4               ; P write
        v_add_u32 v15, {L_P}, v4             ; P read
        v_lshrrev_b32 v6, 2, v0
        v_and_b32 v7, 7, v6
        v_lshlrev_b32 v7, 1, v7
        v_lshrrev_b32 v8, 3, v6
        v_or_b32 v7, v7, v8
        v_bfe_u32 v8, v0, 1, 1
        v_xor_b32 v7, v7, v8
        v_lshlrev_b32 v7, 4, v7
        v_lshl_add_u32 v7, v6, 10, v7
        v_and_b32 v8, 1, v0
        v_lshl_add_u32 v7, v8, 3, v7
        s_lshl_b32 s41, s3, 7
        v_xor_b32 v7, s41, v7
        s_lshl_b32 s37, s3, 14
        v_add_u32 v18, s37, v4
        v_mov_b32 v10, {NEGMAX}              ; m hg0
        v_mov_b32 v11, {NEGMAX}              ; m hg1
        v_mov_b32 v19, 0                     ; l partial
        s_waitcnt vmcnt({max(0, min(16, nt2[0]) - self.o.t2e)})
        """)
        for ct in range(4):
            a(f"v_xor_b32 v{24+ct}, {ct << 5}, v7\nv_add_u32 v{28+ct}, 0x10000, v{24+ct}")
        self.stamp(4, 20)
        S = 40; A = 128; NB = 8; ACC = 160; PB = 40
        for ps in range(2):
            seq = [(j, t) for j in range(16) for t in range(2)]
            def rd(i):
                j, t = seq[i]
                if t == 0: a(f"v_xor_b32 v{32 + (j & 3)}, {j << 4}, v5")
                a(f"ds_read_b128 {vr(A + 4 * (i % NB))}, v{32 + (j & 3)} offset:{t * 16384}")
            PRE = 6
            for i in range(PRE): rd(i)
            for i, (j, t) in enumerate(seq):
                if i + PRE < len(seq): rd(i + PRE)
                a(f"s_waitcnt lgkmcnt({min(PRE, len(seq) - 1 - i)})")
                acc = S + 4 * t
                a(f"{MF} {vr(acc)}, {vr(A + 4 * (i % NB))}, {vr(Q + 4*j)}, {'0' if j == 0 else vr(acc)}")
                if ps == 0 and i % 4 == 3: t2_more(1)
            for e in range(8): a(f"v_mul_f32 v{S+e}, v3, v{S+e}")
            a(f"""
            v_max3_f32 v8, v{S}, v{S+1}, v{S+2}
            v_max3_f32 v8, v8, v{S+3}, v{S+4}
            v_max3_f32 v8, v8, v{S+5}, v{S+6}
            v_max_f32 v8, v8, v{S+7}
            """)
            self.xg_reduce("v_max_f32", 8, 9)
            a(f"""
            ds_write_b32 v13, v8
            s_waitcnt lgkmcnt(0)
            s_barrier
            ds_read_b128 v[52:55], v12
            ds_read_b128 v[56:59], v12 offset:256
            s_cmp_eq_u32 s38, 0
            s_cselect_b64 s[26:27], -1, 0
            s_waitcnt lgkmcnt(0)
            v_max3_f32 v52, v52, v53, v54
            v_max3_f32 v56, v56, v57, v58
            v_max3_f32 v52, v52, v55, v10
            v_max3_f32 v56, v56, v59, v11
            v_sub_f32 v60, v10, v52
            v_sub_f32 v61, v11, v56
            v_mov_b32 v10, v52
            v_mov_b32 v11, v56
            v_cndmask_b32 v8, v56, v52, s[26:27]
            v_exp_f32 v60, v60
            v_exp_f32 v61, v61
            """)
            for e in range(8): a(f"v_sub_f32 v{S+e}, v{S+e}, v8")
            for e in range(8): a(f"v_exp_f32 v{S+e}, v{S+e}")
            a("v_cndmask_b32 v9, v61, v60, s[26:27]")
            for e in range(4): a(f"v_cvt_pk_bf16_f32 v{48+e}, v{S+2*e}, v{S+2*e+1}")
            a(f"ds_write_b128 v14, v[48:51]\nv_fma_f32 v19, v19, v9, v{S}")
            for e in range(1, 8): a(f"v_add_f32 v19, v19, v{S+e}")
            if ps == 1:
                for r in range(32): a(f"v_mul_f32 v{ACC+r}, v{60 + (r >> 4)}, v{ACC+r}")
                self.xg_reduce("v_add_f32", 19, 9)
                a("ds_write_b32 v13, v19 offset:512")
            a("s_waitcnt lgkmcnt(0)\ns_barrier")
            seq = [(u, ct) for u in range(4) for ct in range(4)]
            def rd2(i):
                u, ct = seq[i]
                if ct == 0:
                    for hg in range(2): a(f"ds_read_b128 {vr(PB + 8 * (u & 1) + 4 * hg)}, v15 offset:{hg * 4096 + u * 1024}")
                base = (24 if u < 2 else 28) + ct; off = (u & 1) * 32768; r = A + 4 * (i % NB)
                a(f"ds_read_b64_tr_b16 v[{r}:{r+1}], v{base} offset:{off}")
                a(f"ds_read_b64_tr_b16 v[{r+2}:{r+3}], v{base} offset:{off + 16384}")
            cnt = lambda i: 2 + (2 if seq[i][1] == 0 else 0)
            PRE = 4
            for i in range(PRE): rd2(i)
            for i, (u, ct) in enumerate(seq):
                if i + PRE < len(seq): rd2(i + PRE)
                a(f"s_waitcnt lgkmcnt({sum(cnt(k) for k in range(i + 1, min(i + PRE + 1, len(seq))))})")
                for hg in range(2):
                    acc = ACC + 16 * hg + 4 * ct
                    a(f"{MF} {vr(acc)}, {vr(A + 4 * (i % NB))}, {vr(PB + 8 * (u & 1) + 4 * hg)}, {'0' if (u == 0 and ps == 0) else vr(acc)}")
            if ps == 0:
                self.stamp(5, 20)
                a("s_waitcnt vmcnt(0)\ns_barrier")
                self.stamp(13, 20)
                for r in range(16): a(f"ds_write_b128 v18, {vr(T2 + 4*r)} offset:{r * 1024}")
                a("s_waitcnt lgkmcnt(0)\ns_barrier")
        a(f"""
        v_and_b32 v6, 7, v2
        v_lshlrev_b32 v6, 10, v6
        v_lshrrev_b32 v8, 3, v2
        v_lshl_add_u32 v6, v8, 6, v6
        v_lshl_add_u32 v6, v1, 4, v6
        s_lshl_b32 s39, s33, 15
        s_add_u32 s39, s39, s41
        s_add_u32 s39, s39, {WS_BP}
        """)
        for hg in range(2):
            acc = ACC + 16 * hg; X0 = 64 + 8 * hg; X1 = X0 + 4
            for w in range(8): a(f"v_cvt_pk_bf16_f32 v{X0+w}, v{acc+2*w}, v{acc+2*w+1}")
            for w in range(4): a(f"v_mov_b32 v{80+w}, v{X0+w}")
            for w in range(4): a(f"v_mov_b32_dpp v{X0+w}, v{X1+w} row_ror:8 row_mask:0xf bank_mask:0xc")
            for w in range(4): a(f"v_mov_b32_dpp v{X1+w}, v{80+w} row_ror:8 row_mask:0xf bank_mask:0x3")
            a(f"buffer_store_dwordx4 {vr(X0)}, v6, s[4:7], s39 offen sc1\ns_add_u32 s39, s39, 8192")
            a(f"buffer_store_dwordx4 {vr(X1)}, v6, s[4:7], s39 offen sc1\ns_add_u32 s39, s39, 8192")
        self.stamp(6, 20)
        a(f"""
        s_waitcnt vmcnt(0)
        s_barrier
        s_setprio 0
        s_cmp_ge_u32 s3, 4
        s_cbranch_scc1 {L('L_amain')}
        s_cmp_lg_u32 s3, 0
        s_cbranch_scc1 {L('L_fin')}
        s_setprio 3
        v_and_b32 v6, 31, v0
        v_lshlrev_b32 v7, 4, v6
        v_add_u32 v7, {L_SM + 512}, v7
        ds_read_b128 v[40:43], v7
        v_lshlrev_b32 v6, 3, v6
        s_lshl_b32 s39, s2, 10
        s_add_u32 s39, s39, {WS_T1S + 512}
        v_cmp_eq_u32 vcc, 0, v1
        v_cndmask_b32 v8, v11, v10, vcc
        s_waitcnt lgkmcnt(0)
        v_add_f32 v9, v40, v41
        v_add_f32 v42, v42, v43
        v_add_f32 v9, v9, v42
        """)
        self.sanitize([8, 9])
        a(f"""
        s_mov_b32 exec_hi, 0
        buffer_store_dwordx2 v[8:9], v6, s[4:7], s39 offen sc1
        s_mov_b64 exec, -1
        """)
        self.stamp(7, 20)
        a(f"s_branch {L('L_fin')}")

    def stage_lin(self, srd, s_base, s_lds, n, voff):
        a = self.a
        for i in range(n):
            if i % 4 == 0: a(f"s_mov_b32 m0, {s_lds}")
            self.dma(voff, srd, s_base, (i % 4) * 1024)
            if i % 4 == 3 and i != n - 1:
                a(f"s_add_u32 {s_base}, {s_base}, 4096\ns_add_u32 {s_lds}, {s_lds}, 4096")
    def store_y(self, ys, s_y, s_y8, vt):
        a = self.a
        self.sanitize(range(ys, ys + 9))
        a(f"""
        v_lshlrev_b32 v{vt}, 2, v0
        buffer_store_dwordx4 {vr(ys)}, v4, s[4:7], {s_y} offen sc1
        buffer_store_dwordx4 {vr(ys+4)}, v4, s[4:7], {s_y} offen offset:1024 sc1
        buffer_store_dword v{ys+8}, v{vt}, s[4:7], {s_y8} offen sc1
        """)
    def y_addr(self, ybase):
        self.a(f"""
        s_mul_i32 s38, s33, 9216
        s_add_u32 s38, s38, {ybase}
        s_lshl_b32 s39, s3, 8
        s_add_u32 s39, s39, s38
        s_add_u32 s39, s39, 8192
        s_lshl_b32 s40, s3, 11
        s_add_u32 s38, s38, s40
        """)

    def role_at(self):
        a = self.a
        if "AT" not in self.en: return
        self.srd(12, P_WO, 4096 * 1152)
        a(f"""
        s_and_b32 s33, s2, 31
        s_mul_i32 s36, s33, {128 * 1152}
        s_mul_i32 s37, s3, {36 * 1024}
        s_add_u32 s36, s36, s37
        """)
        self.gate(self.o.gat, 16)
        self.stage_lin("s[12:15]", "s36", "s37", 36, 4)
        self.gate(4, 16)
        a(f"""
        v_lshrrev_b32 v5, 2, v0
        v_mul_u32_u24 v5, {8 * 1152}, v5
        v_and_b32 v6, 3, v0
        v_lshl_add_u32 v5, v6, 3, v5
        s_lshl_b32 s38, s3, 5
        s_add_u32 s38, s38, 1024
        v_add_u32 v6, s38, v5
        s_lshl_b32 s38, s3, 8
        v_add_u32 v5, s38, v5
        s_waitcnt vmcnt(0)
        """)
        self.sbar(0, 16)
        WO = 64
        for ct in range(9):
            for j in range(4):
                r = WO + 16 * ct + 4 * j
                base, co = (5, ct * 32) if ct < 8 else (6, 0)
                a(f"ds_read_b64_tr_b16 v[{r}:{r+1}], v{base} offset:{(2*j) * 1152 + co}")
                a(f"ds_read_b64_tr_b16 v[{r+2}:{r+3}], v{base} offset:{(2*j+1) * 1152 + co}")
            a("s_waitcnt lgkmcnt(7)")
        a(f"""
        s_lshr_b32 s36, s33, 1
        s_lshl_b32 s36, s36, 2               ; 4*hkv
        v_lshrrev_b32 v6, 2, v2
        v_lshlrev_b32 v6, 6, v6
        v_and_b32 v7, 3, v2
        v_add_u32 v6, v6, v7
        v_add_u32 v8, s36, v6
        v_lshlrev_b32 v6, 10, v6
        v_lshl_add_u32 v6, v1, 4, v6         ; o voffset
        v_lshl_add_u32 v7, v1, 6, v7
        v_lshlrev_b32 v7, 10, v7
        s_lshl_b32 s36, s36, 10
        s_add_u32 s36, s36, {WS_OP}
        s_and_b32 s37, s33, 1
        s_lshl_b32 s40, s37, 3
        s_add_u32 s41, s36, s40
        s_add_u32 s41, s41, 512
        s_lshl_b32 s37, s37, 8
        s_add_u32 s36, s36, s37              ; o soffset
        """)
        self.y_addr(WS_YA)
        self.get_tag(16)
        self.flag_aid(8)
        self.check_flags(8, 16)
        self.stamp(0)
        if self.fused: self.wait_lds(15, self.o.atw, 16, 1)
        O = 24; ST = 40
        loads = [f"buffer_load_dwordx4 {vr(O + 4*j)}, v6, s[4:7], s36 offen offset:{64*j} sc1" for j in range(4)]
        loads += [f"buffer_load_dwordx2 v[{ST}:{ST+1}], v7, s[4:7], s41 offen sc1"]
        self.fpoll(loads, range(O, O + 18), 16, depth=self.o.pd)
        self.stamp(1)
        ACC = 208
        for ct in range(9):
            for j in range(4):
                acc = ACC + 4 * ct
                a(f"{MF} {vr(acc)}, {vr(O + 4*j)}, {vr(WO + 16*ct + 4*j)}, {'0' if j == 0 else vr(acc)}")
            if ct == 0:
                a(f"""
                v_max_f32_dpp v16, v{ST}, v{ST} quad_perm:[1,0,3,2] {DPPM}
                v_max_f32_dpp v16, v16, v16 quad_perm:[2,3,0,1] {DPPM}
                v_sub_f32 v17, v{ST}, v16
                v_exp_f32 v17, v17
                v_mul_f32 v18, v17, v{ST+1}
                """)
            if ct == 1:
                a(f"""
                v_add_f32_dpp v18, v18, v18 quad_perm:[1,0,3,2] {DPPM}
                v_add_f32_dpp v18, v18, v18 quad_perm:[2,3,0,1] {DPPM}
                v_rcp_f32 v18, v18
                v_mul_f32 v17, v17, v18
                """)
            if ct == 2:
                for t in range(4): a(f"v_mov_b32_dpp v{48+t}, v17 quad_perm:[{t},{t},{t},{t}] {DPPM}")
        Y = 52
        for ct in range(9):
            acc = ACC + 4 * ct
            a(f"""
            v_mul_f32 v{Y+ct}, v48, v{acc}
            v_fmac_f32 v{Y+ct}, v49, v{acc+1}
            v_fmac_f32 v{Y+ct}, v50, v{acc+2}
            v_fmac_f32 v{Y+ct}, v51, v{acc+3}
            """)
        self.store_y(Y, "s38", "s39", 16)
        self.stamp(2)

    def role_bh1(self):
        a = self.a
        if "BH1" not in self.en: return
        self.srd(12, P_WUK, 512 * 8192)
        a(f"""
        s_sub_u32 s33, s2, 128               ; 2h+cf
        s_lshr_b32 s36, s33, 1
        s_lshl_b32 s37, s36, 8               ; h*256
        s_and_b32 s38, s33, 1
        s_lshl_b32 s38, s38, 2
        s_add_u32 s38, s38, s3
        s_lshl_b32 s38, s38, 17              ; (64cf+16sw)*8192
        s_add_u32 s37, s37, s38
        s_lshl_b32 s35, s3, 14
        v_xor_b32 v5, v1, v2
        v_lshlrev_b32 v5, 4, v5
        v_lshl_add_u32 v8, v1, 13, v5
        v_xor_b32 v9, 64, v8
        v_xor_b32 v10, 0x80, v8
        v_xor_b32 v11, 0xc0, v8
        """)
        for i in range(16):
            p, g, half = i >> 3, (i >> 1) & 3, i & 1
            a(f"s_add_u32 s34, s37, {(128 * g + 8 * p + 4 * half) * 8192}\ns_add_u32 m0, s35, {i * 1024}")
            self.dma(8 + g, "s[12:15]", "s34", 0, 32)
        a(f"""
        v_lshrrev_b32 v6, 2, v2
        v_lshlrev_b32 v6, 3, v6
        v_and_b32 v7, 3, v2
        v_add_u32 v6, v6, v7
        v_lshl_add_u32 v12, v6, 8, v5
        v_add_u32 v12, s35, v12
        v_xor_b32 v13, 64, v12
        v_xor_b32 v14, 0x80, v12
        v_xor_b32 v15, 0xc0, v12
        v_lshlrev_b32 v18, 7, v7
        v_lshl_add_u32 v18, v1, 4, v18       ; q_B voffset: b*128 + g*16
        s_lshl_b32 s39, s36, 11
        s_add_u32 s39, s39, {WS_T1S}
        v_lshlrev_b32 v19, 9, v7             ; out: b*512 + p*64 + g*16
        v_bfe_u32 v6, v0, 2, 1
        v_lshl_add_u32 v19, v6, 6, v19
        v_lshl_add_u32 v19, v1, 4, v19
        v_cmp_eq_u32 s[42:43], 1, v6
        s_lshl_b32 s40, s33, 11
        s_lshl_b32 s41, s3, 7
        s_add_u32 s40, s40, s41
        s_add_u32 s40, s40, {WS_QABS}
        s_lshl_b32 s41, s36, 1
        v_and_b32 v20, 1, v0
        v_add_u32 v20, s41, v20
        """)
        self.gate(self.o.gbh1, 16)
        self.flag_wg(20)
        self.get_tag(16)
        self.check_flags(20, 16)
        a("s_waitcnt vmcnt(0)")
        W = 64; ACC = 40; Q = 24
        for T in range(4):
            p, half = T >> 1, T & 1
            for k in range(4):
                a(f"ds_read_b128 {vr(W + 16*T + 4*k)}, v{12+k} offset:{(32*p + 4*half) * 256}")
            if T == 2: a("s_waitcnt lgkmcnt(8)")
        self.stamp(0)
        self.fpoll([f"buffer_load_dwordx4 {vr(Q + 4*k)}, v18, s[4:7], s39 offen offset:{(k >> 1) * 1024 + (k & 1) * 64} sc1" for k in range(4)], range(Q, Q + 16), 16, depth=2)
        self.stamp(1)
        a("s_waitcnt lgkmcnt(0)")
        for k in range(4):
            for T in range(4):
                acc = ACC + 4 * T
                a(f"{MF} {vr(acc)}, {vr(W + 16*T + 4*k)}, {vr(Q + 4*k)}, {'0' if k == 0 else vr(acc)}")
        for w in range(8): a(f"v_cvt_pk_bf16_f32 v{56+w}, v{ACC+2*w}, v{ACC+2*w+1}")
        for w in range(4): a(f"v_cndmask_b32 v{56+w}, v{56+w}, v{60+w}, s[42:43]")
        self.sanitize(range(56, 60))
        a("""
        s_mov_b32 exec_lo, 0x00ff00ff
        s_mov_b32 exec_hi, 0x00ff00ff
        buffer_store_dwordx4 v[56:59], v19, s[4:7], s40 offen sc1
        s_mov_b64 exec, -1
        """)
        self.gate(4, 16)
        self.stamp(2)

    def role_bh2(self):
        a = self.a
        if "BH2" not in self.en: return
        self.srd(12, P_WUV, 512 * 8192)
        self.srd(16, P_BWO, 4096 * 1152)
        a(f"""
        s_and_b32 s33, s2, 31
        s_lshl_b32 s34, s33, 8
        s_lshl_b32 s35, s3, 19
        s_add_u32 s34, s34, s35
        s_lshl_b32 s35, s3, 14
        v_lshlrev_b32 v5, 1, v1
        v_xor_b32 v5, v5, v2
        v_lshlrev_b32 v5, 4, v5
        v_lshl_add_u32 v5, v1, 13, v5
        v_xor_b32 v6, 0x80, v5
        """)
        for i in range(16):
            a("s_mov_b32 m0, s35")
            self.dma(5 + (i & 1), "s[12:15]", "s34", 0, self.o.DB)
            if i != 15: a("s_add_u32 s34, s34, 32768\ns_add_u32 s35, s35, 1024")
        a(f"""
        v_lshrrev_b32 v10, 2, v0
        v_and_b32 v11, 7, v10
        v_xor_b32 v11, s3, v11
        v_lshlrev_b32 v11, 5, v11
        v_lshl_add_u32 v11, v10, 8, v11
        v_and_b32 v10, 3, v0
        v_lshl_add_u32 v8, v10, 3, v11
        v_add_u32 v9, 0x10000, v8
        s_waitcnt vmcnt(0)
        s_barrier
        """)
        WV = 192
        for s in range(16):
            off = s * 8192; base = 9 if off >> 16 else 8; off &= 0xffff
            r = WV + 4 * s
            a(f"ds_read_b64_tr_b16 v[{r}:{r+1}], v{base} offset:{off}")
            a(f"ds_read_b64_tr_b16 v[{r+2}:{r+3}], v{base} offset:{off + 4096}")
            if s % 4 == 3: a("s_waitcnt lgkmcnt(7)")
        a("s_waitcnt lgkmcnt(0)\ns_barrier")
        self.stamp(0, 20)
        a(f"""
        s_mul_i32 s36, s33, {128 * 1152}
        s_mul_i32 s37, s3, {18 * 1024}
        s_add_u32 s36, s36, s37
        """)
        for i in range(18):
            if i % 2 == 0: a("s_mov_b32 m0, s37")
            self.dma(4, "s[16:19]", "s36", (i % 2) * 1024, self.o.DB)
            if i % 2 == 1: a("s_add_u32 s36, s36, 2048\ns_add_u32 s37, s37, 2048")
        a(f"""
        v_lshlrev_b32 v5, 3, v1
        v_bfe_u32 v8, v0, 2, 2
        v_add_u32 v5, v5, v8
        v_mul_u32_u24 v5, 1152, v5
        v_and_b32 v8, 3, v0
        v_lshl_add_u32 v5, v8, 3, v5
        s_and_b32 s39, s3, 3
        s_lshl_b32 s39, s39, 5
        s_add_u32 s39, s39, 1024
        v_add_u32 v10, s39, v5
        s_lshl_b32 s39, s3, 7
        v_add_u32 v5, s39, v5
        v_add_u32 v9, {64 * 1152}, v5
        v_add_u32 v11, {64 * 1152}, v10
        s_waitcnt vmcnt(0)
        s_barrier
        """)
        WO = 112
        for ct in range(5):
            for j in range(4):
                r = WO + 16 * ct + 4 * j
                if ct < 4: base = 5 if j < 2 else 9; off = ct * 32
                else: base = 10 if j < 2 else 11; off = 0
                off += (j & 1) * 32 * 1152
                a(f"ds_read_b64_tr_b16 v[{r}:{r+1}], v{base} offset:{off}")
                a(f"ds_read_b64_tr_b16 v[{r+2}:{r+3}], v{base} offset:{off + 4 * 1152}")
            a("s_waitcnt lgkmcnt(7)")
        CTXC = L_SM; CST = 1088
        CTX = L_SM + 8 * CST; XST = 272
        a(f"""
        s_lshr_b32 s40, s3, 1                ; b
        s_lshl_b32 s36, s40, 4
        s_add_u32 s36, s36, 64
        v_add_u32 v6, s36, v2
        v_lshlrev_b32 v5, 10, v6
        s_lshl_b32 s36, s33, 3
        s_add_u32 s36, s36, {WS_T1S + 512}
        s_lshl_b32 s37, s3, 18               ; (16b + 8half) * 32768
        s_lshl_b32 s39, s33, 10
        s_add_u32 s37, s37, s39
        s_add_u32 s37, s37, {WS_BP}
        s_mul_i32 s39, s3, {CST}
        s_add_u32 s39, s39, {CTXC}
        v_add_u32 v8, s39, v4
        v_and_b32 v9, 3, v2
        v_lshlrev_b32 v9, 1, v9
        v_bfe_u32 v10, v0, 2, 1
        v_add_u32 v9, v9, v10
        v_mul_u32_u24 v9, {CST}, v9
        v_lshl_add_u32 v9, v1, 4, v9
        v_add_u32 v9, {CTXC}, v9
        v_and_b32 v10, 3, v2
        v_mul_u32_u24 v10, {XST}, v10
        v_lshl_add_u32 v10, v1, 3, v10
        s_lshl_b32 s39, s3, 5
        s_add_u32 s39, s39, {CTX}
        v_add_u32 v10, s39, v10
        v_lshrrev_b32 v11, 2, v2
        v_mul_u32_u24 v11, {XST}, v11
        v_lshl_add_u32 v11, v1, 4, v11
        v_add_u32 v11, {CTX}, v11
        s_mul_i32 s38, s33, 9216
        s_add_u32 s38, s38, {WS_YB}
        s_lshl_b32 s39, s3, 8
        s_add_u32 s39, s39, s38
        s_add_u32 s39, s39, 8192
        s_lshl_b32 s42, s3, 10
        s_add_u32 s38, s38, s42
        v_lshlrev_b32 v12, 2, v0
        s_and_b32 s42, s3, 1
        s_lshl_b32 s42, s42, 3
        """)
        self.get_tag(16)
        self.flag_wg(6)
        self.check_flags(6, 16)
        self.stamp(1, 20)
        a("s_mov_b64 exec, 0xffff")
        self.poll(["buffer_load_dwordx2 v[18:19], v5, s[4:7], s36 offen sc1"], [18, 19], 16, sleep=2)
        G = 48
        for s in range(8):
            a(f"buffer_load_dwordx4 {vr(G + 4*s)}, v4, s[4:7], s37 offen sc1\ns_add_u32 s37, s37, 32768")
        self.stamp(2, 24)
        a("v_mov_b32 v20, v18")
        for d in ("quad_perm:[1,0,3,2]", "quad_perm:[2,3,0,1]", "row_ror:4", "row_ror:8"):
            a(f"v_max_f32_dpp v20, v20, v20 {d} {DPPM}")
        a("v_sub_f32 v21, v18, v20\nv_exp_f32 v21, v21\nv_mul_f32 v22, v21, v19")
        for d in ("quad_perm:[1,0,3,2]", "quad_perm:[2,3,0,1]", "row_ror:4", "row_ror:8"):
            a(f"v_add_f32_dpp v22, v22, v22 {d} {DPPM}")
        a("v_rcp_f32 v22, v22\nv_mul_f32 v21, v21, v22")
        AC = 24
        ext = 1 if self.stamps else 0
        for s in range(8):
            r = G + 4 * s
            a(f"v_readlane_b32 s41, v21, s42\ns_add_u32 s42, s42, 1")
            a(f"s_waitcnt vmcnt({7 - s + ext})")
            for w in range(4):
                a(f"v_lshlrev_b32 v{32+2*w}, 16, v{r+w}\nv_and_b32 v{33+2*w}, 0xffff0000, v{r+w}")
            for e in range(8):
                if s == 0: a(f"v_mul_f32 v{AC+e}, s41, v{32+e}")
                else: a(f"v_fmac_f32 v{AC+e}, s41, v{32+e}")
        for w in range(4): a(f"v_cvt_pk_bf16_f32 v{32+w}, v{AC+2*w}, v{AC+2*w+1}")
        a("ds_write_b128 v8, v[32:35]")
        self.stamp(3, 20)
        a("s_waitcnt lgkmcnt(0)\ns_barrier")
        for s in range(12):
            a(f"ds_read_b128 {vr(G + 4*s)}, v9 offset:{64*s}")
        for s in range(16):
            if s + 12 < 16: a(f"ds_read_b128 {vr(G + 4*(s+12))}, v9 offset:{64*(s+12)}")
            a(f"s_waitcnt lgkmcnt({min(12, 15 - s)})")
            acc = 24 + 4 * (s & 1)
            a(f"{MF} {vr(acc)}, {vr(WV + 4*s)}, {vr(G + 4*s)}, {'0' if s < 2 else vr(acc)}")
        for r in range(4): a(f"v_add_f32 v{24+r}, v{24+r}, v{28+r}")
        for r in range(4): a(f"v_add_f32_dpp v{24+r}, v{24+r}, v{24+r} row_ror:4 {DPPM}")
        a("""
        v_cvt_pk_bf16_f32 v32, v24, v25
        v_cvt_pk_bf16_f32 v33, v26, v27
        ds_write_b64 v10, v[32:33]
        s_waitcnt lgkmcnt(0)
        s_barrier
        """)
        O = 24
        for j in range(4): a(f"ds_read_b128 {vr(O + 4*j)}, v11 offset:{64*j}")
        ACC = 64
        for j in range(4):
            a(f"s_waitcnt lgkmcnt({3 - j})")
            for ct in range(5):
                acc = ACC + 4 * ct
                a(f"{MF} {vr(acc)}, {vr(O + 4*j)}, {vr(WO + 16*ct + 4*j)}, {'0' if j == 0 else vr(acc)}")
        Y = 48
        for ct in range(5): a(f"v_min_u32 v{Y+ct}, -2, v{ACC + 4*ct}")
        sk = a.new_label(self.L("L_bh2s"))
        a(f"""
        buffer_store_dwordx4 {vr(Y)}, v4, s[4:7], s38 offen sc1
        s_cmp_ge_u32 s3, 4
        s_cbranch_scc1 {sk}
        buffer_store_dword v{Y+4}, v12, s[4:7], s39 offen sc1
        {sk}:
        """)
        self.stamp(4, 20)

    def role_a(self):
        a = self.a; L = self.L
        a("s_sub_u32 s44, s3, 4")
        if "CLR" in self.en and self.fused: self.clear_finish()
        a(f"""
        s_lshr_b32 s28, s2, 5
        s_cmp_eq_u32 s28, 6
        s_cbranch_scc1 {L('L_bh2')}
        s_lshr_b32 s28, s2, 6
        s_cmp_eq_u32 s28, 1
        s_cbranch_scc1 {L('L_ba_a')}
        """)
        a.label(L("L_amain"))
        if "A" in self.en:
            self.a_main()
        elif "RED" in self.en:
            a(f"s_cmp_lg_u32 s44, 0\ns_cbranch_scc1 {L('L_fin')}")
        if "RED" in self.en:
            self.reducer()

    def a_main(self):
        a = self.a; L = self.L; D = self.o.D
        assert D <= 16
        self.srd(12, P_K, 64 << 20); self.srd(16, P_V, 64 << 20)
        a(f"""
        s_lshl_b32 s49, s45, 20
        s_mul_i32 s33, s45, {self.o.rot}      ; rotation
        s_cmp_lt_u32 s45, 32
        s_cselect_b32 s32, 12, 16
        s_cselect_b32 s34, 1, 0
        s_lshl_b32 s30, s46, 2
        s_add_u32 s30, s30, s44
        s_add_u32 s30, s30, s33
        s_add_u32 s31, s30, s32
        s_and_b32 s30, s30, 127
        s_and_b32 s31, s31, 127
        s_lshl_b32 s30, s30, 13
        s_lshl_b32 s31, s31, 13
        s_add_u32 s30, s30, s49
        s_add_u32 s31, s31, s49
        s_lshl_b32 s32, s32, 1
        s_add_u32 s33, s33, s32
        s_sub_u32 s32, 128, s32
        s_lshl_b32 s48, s45, 12
        s_add_u32 s48, s48, {WS_OP + 768}
        s_mov_b32 s50, 0x05040100
        s_mov_b32 s51, 0x07060302
        v_lshlrev_b32 v4, 4, v0
        v_mov_b32 v1, v4
        v_add_u32 v2, 4096, v4
        v_mov_b32 v3, {CSC}
        v_mov_b32 v4, {NEGMAX}
        v_mov_b32 v5, 0
        v_and_b32 v6, 7, v0
        v_lshlrev_b32 v6, 4, v6
        v_and_b32 v7, 1, v0
        v_lshl_add_u32 v6, v7, 11, v6
        v_bfe_u32 v28, v0, 3, 1
        v_lshl_add_u32 v6, v28, 10, v6
        v_lshl_add_u32 v30, v7, 1, v28        ; 2*(n&1) + ch
        v_xor_b32 v7, 16, v6
        s_and_b32 s52, s45, 15
        s_lshl_b32 s53, s52, 2
        s_add_u32 s53, s53, 64
        v_add_u32 v30, s53, v30
        s_add_u32 s53, s48, 128
        v_mov_b32 v31, s53
        v_cmp_lt_u32 vcc, 31, v0
        s_lshl_b32 s52, s52, 12
        s_lshr_b32 s53, s45, 4
        s_lshl_b32 s53, s53, 7
        s_add_u32 s52, s52, s53
        s_add_u32 s52, s52, {WS_T1S + 64 * 1024}
        v_mov_b32 v226, 0
        v_mov_b32 v227, {L_CNT + 4 * 10}
        """)
        self.flag_wg(30)
        a("v_cndmask_b32 v30, v30, v31, vcc")
        for r in range(32, 64): a(f"v_mov_b32 v{r}, 0")
        a(f"""
        v_lshrrev_b32 v228, 4, v0
        v_and_b32 v229, 1, v0
        v_lshl_add_u32 v228, v228, 1, v229
        v_lshlrev_b32 v228, 4, v228
        s_lshl_b32 s53, s44, 10
        s_add_u32 s53, s53, {L_ACOMB}
        v_add_u32 v228, s53, v228
        s_lshl_b32 s53, s44, 4
        s_add_u32 s53, s53, {L_AST}
        v_lshlrev_b32 v229, 3, v229
        v_add_u32 v230, s53, v229
        v_add_u32 v231, {L_AST}, v229
        v_bfe_u32 v232, v0, 3, 2
        v_and_b32 v233, 7, v0
        v_lshlrev_b32 v233, 4, v233
        v_lshl_add_u32 v233, v232, 8, v233
        v_add_u32 v233, {L_ACOMB}, v233
        v_and_b32 v234, 1, v0
        v_lshlrev_b32 v234, 8, v234
        v_lshl_add_u32 v234, v232, 6, v234
        v_bfe_u32 v232, v0, 1, 2
        v_lshl_add_u32 v234, v232, 4, v234   ; h*256 + j*64 + g'*16
        v_cndmask_b32 v234, v234, v1, vcc
        v_mov_b32 v236, {L_CNT + 4 * 15}
        v_mov_b32 v237, 1
        s_lshl_b32 s54, s47, 10
        s_add_u32 s54, s54, {WS_OP}
        """)
        KA, VA, KB, VB = 96, 128, 160, 192
        def issue(srd, base, e, soff, d=None):
            a(f"s_waitcnt vmcnt({(d or D) - 1})")
            a(f"buffer_load_dwordx4 {vr(base + 4*e)}, v{1 if e < 4 else 2}, {srd}, {soff} offen offset:{(e & 3) * 1024} nt")
        def issues(srd, base, es, soff):
            if self.o.Dlo == D:
                for e in es: issue(srd, base, e, soff)
                return
            lo = a.new_label(L("L_ilo")); en = a.new_label(L("L_ien"))
            a(f"s_cmp_lg_u32 s34, 0\ns_cbranch_scc1 {lo}")
            for e in es: issue(srd, base, e, soff)
            a(f"s_branch {en}\n{lo}:")
            for e in es: issue(srd, base, e, soff, self.o.Dlo)
            a.label(en)
        def grab():
            a(f"""
            v_mov_b32 v224, 1
            s_mov_b64 exec, 1
            buffer_atomic_add v224, v226, s[4:7], s48 offen sc0 sc1
            s_mov_b64 exec, -1
            """)
        def gate_wait():
            if not self.fused: return
            lab = a.new_label(L("L_gw"))
            a(f"""
            s_mov_b32 s29, {SPIN * 8}
            {lab}:
            ds_read_b32 v225, v227
            s_sub_u32 s29, s29, 1
            s_cbranch_scc1 {lab}_x
            s_waitcnt lgkmcnt(0)
            v_readfirstlane_b32 s28, v225
            s_cmp_gt_u32 s28, s44
            s_cbranch_scc1 {lab}_x
            s_sleep 1
            s_branch {lab}
            {lab}_x:
            s_waitcnt lgkmcnt(0)
            """)
        def ring(d):
            for e in range(8): issue("s[12:15]", KA, e, "s30", d)
            for e in range(8): issue("s[16:19]", VA, e, "s30", d)
            grab()
            for e in range(8): issue("s[12:15]", KB, e, "s31", d)
            for e in range(8): issue("s[16:19]", VB, e, "s31", d)
        def getq(sl):
            self.poll(["buffer_load_dwordx4 v[8:11], v6, s[4:7], s52 offen sc1", "buffer_load_dwordx4 v[12:15], v7, s[4:7], s52 offen sc1"], range(8, 16), 28, sleep=sl)
        if self.fused:
            l1 = a.new_label(L("L_ord1")); l2 = a.new_label(L("L_ord2")); l3 = a.new_label(L("L_ord3")); l4 = a.new_label(L("L_ord4"))
            a(f"""
            s_lshr_b32 s28, s2, 6
            s_cmp_lg_u32 s28, 1
            s_cbranch_scc1 {l3}
            v_and_b32 v28, 15, v0
            v_and_b32 v29, 1, v0
            v_lshlrev_b32 v28, 4, v28
            v_lshl_add_u32 v28, v29, 8, v28
            v_add_u32 v28, {L_QA}, v28
            v_xor_b32 v29, 16, v28
            ds_read_b128 v[8:11], v28
            ds_read_b128 v[12:15], v29
            s_branch {l4}
            {l3}:
            """)
            self.get_tag(28)
            self.check_flags(30, 28)
            a(f"s_cmp_lg_u32 s46, 2\ns_cbranch_scc1 {l1}")
            getq(16)
            self.stamp(9)
            gate_wait()
            a.label(l4)
            self.stamp(10)
            ring(D)
            a(f"s_waitcnt lgkmcnt(0)\ns_branch {l2}")
            a.label(l1)
            gate_wait()
            ring(self.o.D0)
            self.stamp(9)
            getq(4)
            self.stamp(10)
            a.label(l2)
        else:
            ring(D); getq(4)
        U = 16; P = 24; ACC = 32; T = 64
        def body(K, V, mode):
            if mode == "e1": a("s_waitcnt vmcnt(8)")
            for half in range(2):
                es = range(4 * half, 4 * half + 4)
                for e in es: a(f"v_dot2_f32_bf16 v{U+e}, v{K+4*e}, v8, 0")
                for w in range(1, 4):
                    for e in es: a(f"v_dot2c_f32_bf16 v{U+e}, v{K+4*e+w}, v{8+w}")
                for w in range(4):
                    for e in es: a(f"v_dot2c_f32_bf16_dpp v{U+e}, v{K+4*e+w}, v{12+w} quad_perm:[1,0,3,2] {DPPM}")
                if mode == "loop":
                    if half == 0: grab()
                    issues("s[12:15]", K, es, "s30")
            for d in ("quad_perm:[2,3,0,1]", "row_ror:4", "row_ror:8"):
                for e in range(8): a(f"v_add_f32_dpp v{U+e}, v{U+e}, v{U+e} {d} {DPPM}")
            for e in range(8): a(f"v_mul_f32 v{U+e}, v{U+e}, v3")
            a(f"""
            v_max3_f32 v28, v{U}, v{U+1}, v{U+2}
            v_max3_f32 v28, v28, v{U+3}, v{U+4}
            v_max3_f32 v28, v28, v{U+5}, v{U+6}
            v_max3_f32 v28, v28, v{U+7}, v4
            """)
            self.xg_reduce("v_max_f32", 28, 29)
            a("v_sub_f32 v29, v4, v28")
            for e in range(8): a(f"v_sub_f32 v{U+e}, v{U+e}, v28")
            a("v_exp_f32 v29, v29")
            for e in range(8): a(f"v_exp_f32 v{U+e}, v{U+e}")
            a(f"""
            v_mov_b32 v4, v28
            v_cmp_neq_f32 vcc, 1.0, v29
            v_fma_f32 v5, v5, v29, v{U}
            v_add_f32 v30, v{U+1}, v{U+2}
            v_add_f32 v31, v{U+3}, v{U+4}
            v_add_f32 v5, v5, v{U+5}
            v_add_f32 v30, v30, v{U+6}
            v_add_f32 v31, v31, v{U+7}
            v_add_f32 v5, v5, v30
            v_add_f32 v5, v5, v31
            """)
            for w in range(4): a(f"v_cvt_pk_bf16_f32 v{P+w}, v{U+2*w}, v{U+2*w+1}")
            sk = a.new_label(L("L_nors"))
            a(f"s_cbranch_vccz {sk}")
            for r in range(32): a(f"v_mul_f32 v{ACC+r}, v29, v{ACC+r}")
            a.label(sk)
            if mode == "e1": self.xg_reduce("v_add_f32", 5, 29)
            for q in range(4):
                if mode == "e1": a(f"s_waitcnt vmcnt({6 - 2*q})")
                for i in range(8):
                    a(f"v_perm_b32 v{T+4*i+q}, v{V + 4*(2*q+1) + (i >> 1)}, v{V + 4*(2*q) + (i >> 1)}, s{50 + (i & 1)}")
                if mode == "loop":
                    issues("s[16:19]", V, (2*q, 2*q+1), "s30")
            for i in range(8):
                a(f"{MF} {vr(ACC+4*i)}, {vr(T+4*i)}, {vr(P)}, {vr(ACC+4*i)}")
        def head(exit_label):
            a(f"""
            s_waitcnt vmcnt(16)
            v_readfirstlane_b32 s30, v224
            s_add_u32 s28, s30, 1
            s_cmp_ge_u32 s28, s32
            s_cbranch_scc1 {exit_label}
            s_add_u32 s30, s28, s33
            s_and_b32 s30, s30, 127
            s_lshl_b32 s30, s30, 13
            s_add_u32 s30, s30, s49
            """)
        lp = a.new_label(L("L_aloop")); eA = a.new_label(L("L_aeA")); eB = a.new_label(L("L_aeB")); dn = a.new_label(L("L_adone"))
        a.label(lp)
        head(eA); body(KA, VA, "loop")
        head(eB); body(KB, VB, "loop")
        a(f"s_branch {lp}")
        a.label(eA)
        body(KA, VA, "e0"); body(KB, VB, "e1")
        a(f"s_branch {dn}")
        a.label(eB)
        body(KB, VB, "e0"); body(KA, VA, "e1")
        a.label(dn)
        a("s_mov_b64 exec, 3\nds_write_b64 v230, v[4:5]")
        a("s_mov_b32 exec_lo, 0x00030003\ns_mov_b32 exec_hi, 0x00030003")
        for i in range(8): a(f"ds_write_b128 v228, {vr(ACC+4*i)} offset:{128*i}")
        nc = a.new_label(L("L_nocomb"))
        a(f"""
        s_mov_b64 exec, 1
        ds_add_rtn_u32 v238, v236, v237
        s_mov_b64 exec, -1
        s_waitcnt lgkmcnt(0)
        v_readfirstlane_b32 s55, v238
        s_cmp_lg_u32 s55, 3
        s_cbranch_scc1 {nc}
        """)
        for w in range(4): a(f"ds_read_b64 v[{16+2*w}:{17+2*w}], v231 offset:{16*w}")
        for w in range(4):
            a(f"ds_read_b128 {vr(32+8*w)}, v233 offset:{1024*w}\nds_read_b128 {vr(36+8*w)}, v233 offset:{1024*w+128}")
        a(f"""
        s_waitcnt lgkmcnt(8)
        v_max3_f32 v24, v16, v18, v20
        v_max_f32 v24, v24, v22
        v_sub_f32 v16, v16, v24
        v_sub_f32 v18, v18, v24
        v_sub_f32 v20, v20, v24
        v_sub_f32 v22, v22, v24
        v_exp_f32 v16, v16
        v_exp_f32 v18, v18
        v_exp_f32 v20, v20
        v_exp_f32 v22, v22
        v_mul_f32 v25, v16, v17
        v_fmac_f32 v25, v18, v19
        v_fmac_f32 v25, v20, v21
        v_fmac_f32 v25, v22, v23
        s_waitcnt lgkmcnt(6)
        """)
        for e in range(8): a(f"v_mul_f32 v{64+e}, v16, v{32+e}")
        for w in range(1, 4):
            a(f"s_waitcnt lgkmcnt({6 - 2*w})")
            for e in range(8): a(f"v_fmac_f32 v{64+e}, v{16+2*w}, v{32+8*w+e}")
        for w in range(4): a(f"v_cvt_pk_bf16_f32 v{72+w}, v{64+2*w}, v{65+2*w}")
        a(f"""
        v_mov_b32_dpp v72, v24 quad_perm:[0,0,0,0] row_mask:0xc bank_mask:0xf
        v_mov_b32_dpp v73, v25 quad_perm:[0,0,0,0] row_mask:0xc bank_mask:0xf
        v_mov_b32_dpp v74, v24 quad_perm:[1,1,1,1] row_mask:0xc bank_mask:0xf
        v_mov_b32_dpp v75, v25 quad_perm:[1,1,1,1] row_mask:0xc bank_mask:0xf
        """)
        self.sanitize([72, 73, 74, 75])
        a(f"""
        s_mov_b32 exec_hi, 0xff
        buffer_store_dwordx4 v[72:75], v234, s[4:7], s54 offen sc1
        s_mov_b64 exec, -1
        """)
        self.stamp(11)
        a(f"s_branch {L('L_fin')}")
        a.label(nc)
        a(f"s_cmp_lg_u32 s55, 0\ns_cbranch_scc1 {L('L_fin')}")

    def reducer(self):
        a = self.a; L = self.L
        self.srd(12, P_OUT, 4608 * 2)
        t2 = a.new_label(L("L_rt2")); tj = a.new_label(L("L_rtj"))
        a(f"""
        s_cmp_ge_u32 s2, 72
        s_cbranch_scc1 {L('L_fin')}
        s_cmp_ge_u32 s2, 36
        s_cselect_b32 s56, 36, 0
        s_cselect_b32 s57, {WS_YB - WS_YA}, 0
        s_cselect_b32 s60, 1152, 0
        s_movk_i32 s61, 224
        s_cselect_b32 s61, 192, s61
        s_sub_u32 s56, s2, s56               ; r
        s_add_u32 s57, s57, {WS_YA}
        s_mul_i32 s58, s56, 7282
        s_lshr_b32 s58, s58, 16              ; b = r/9
        s_mul_i32 s59, s58, 9
        s_sub_u32 s59, s56, s59              ; grp
        s_mul_i32 s62, s58, 2304
        s_add_u32 s60, s60, s62
        s_lshl_b32 s62, s59, 7
        s_add_u32 s60, s60, s62
        s_lshl_b32 s62, s59, 10
        s_add_u32 s57, s57, s62
        v_lshrrev_b32 v1, 4, v0
        v_and_b32 v2, 15, v0
        v_mul_u32_u24 v3, 9216, v1
        v_and_b32 v6, 31, v0
        v_add_u32 v6, s61, v6
        s_cmp_eq_u32 s59, 8
        s_cbranch_scc1 {t2}
        s_lshl_b32 s62, s58, 8
        v_lshl_add_u32 v3, v2, 4, v3
        v_lshlrev_b32 v5, 1, v0
        s_branch {tj}
        {t2}:
        s_lshl_b32 s62, s58, 6
        v_lshrrev_b32 v4, 2, v2
        v_lshl_add_u32 v3, v4, 8, v3
        v_and_b32 v4, 3, v2
        v_lshl_add_u32 v3, v4, 4, v3
        v_lshl_add_u32 v5, v2, 2, v1
        v_lshlrev_b32 v5, 1, v5
        {tj}:
        s_add_u32 s57, s57, s62
        """)
        for k in range(8): a(f"s_add_u32 s{16+k}, s57, {k * 4 * 9216}")
        self.flag_wg(6)
        self.check_flags(6, 44)
        self.stamp(12)
        self.fpoll([f"buffer_load_dwordx4 {vr(8+4*k)}, v3, s[4:7], s{16+k} offen sc1" for k in range(8)], range(8, 40), 44, depth=self.o.pd)
        for c in range(16): a(f"v_add_f32 v{48+c}, v{8+c}, v{24+c}")
        for st in (8, 4):
            for c in range(st): a(f"v_add_f32 v{48+c}, v{48+c}, v{48+st+c}")
        a("""
        v_permlane32_swap_b32 v48, v50
        v_permlane32_swap_b32 v49, v51
        v_add_f32 v48, v48, v50
        v_add_f32 v49, v49, v51
        v_permlane16_swap_b32 v48, v49
        v_add_f32 v48, v48, v49
        v_cvt_pk_bf16_f32 v48, v48, v48
        buffer_store_short v48, v5, s[12:15], s60 offen
        """)
        if self.fused:
            a(f"""
            s_cmp_lg_u32 s2, 0
            s_cbranch_scc1 {L('L_fin')}
            v_mov_b32 v52, s{S_TAG}
            v_mov_b32 v53, 0
            s_mov_b64 exec, 1
            buffer_store_dword v52, v53, s[4:7], 0 offen sc1
            s_mov_b64 exec, -1
            """)

def emit(fname, o):
    if o.mode == "fused":
        g = Gen({"CLR", "PQ", "AT", "BH1", "BH2", "BA", "A", "RED"}, True, o)
        a = g.build()
        txt = kernel_file([(NAME + "_kernel", (256, 1, 1), (512, 1, 1), LDS_SIZE)], [(NAME + "_kernel", a.text(), 256, 102, 256)])
    else:
        phases = [("k0", {"CLR"}), ("k1", {"PQ"}), ("k2", {"BH1", "A"}), ("k3", {"BA", "AT"}), ("k4", {"BH2"}), ("k5", {"RED"})]
        ks = []; ls = []
        for nm, en in phases:
            g = Gen(en, False, o, tag="_" + nm)
            a = g.build()
            ks.append((nm + "_kernel", a.text(), 256, 102, 256)); ls.append((nm + "_kernel", (256, 1, 1), (512, 1, 1), LDS_SIZE))
        txt = kernel_file(ls, ks)
    open(fname, "w").write(txt)

if __name__ == "__main__":
    import argparse
    ap = argparse.ArgumentParser()
    ap.add_argument("out"); ap.add_argument("--mode", default="fused"); ap.add_argument("-D", type=int, default=10); ap.add_argument("--DS", type=int, default=16)
    ap.add_argument("--stamps", action="store_true"); ap.add_argument("--D0", type=int, default=10); ap.add_argument("--g", default="2,2,4"); ap.add_argument("--gat", type=int, default=0); ap.add_argument("--gbh1", type=int, default=0); ap.add_argument("--gbh2", type=int, default=0); ap.add_argument("--pd", type=int, default=2); ap.add_argument("--t2e", type=int, default=0); ap.add_argument("--rot", type=int, default=0); ap.add_argument("--Dlo", type=int, default=0); ap.add_argument("--gpq", type=int, default=0); ap.add_argument("--DC", type=int, default=8); ap.add_argument("--DB", type=int, default=8); ap.add_argument("--atw", type=int, default=4); ap.add_argument("--cap", type=int, default=1000); ap.add_argument("--qfirst", type=int, default=192); ap.add_argument("--cheap", type=int, default=1); ap.add_argument("--sprio", type=int, default=2); ap.add_argument("--bh2hold", type=int, default=0); ap.add_argument("--sh1", default=""); ap.add_argument("--sh2", default=""); ap.add_argument("--NC0", type=int, default=16)
    x = ap.parse_args()
    x.Dlo = x.Dlo or x.D
    x.g = [int(v) for v in x.g.split(",")]
    if x.sh1: SH1 = tuple(int(v) for v in x.sh1.split(","))
    if x.sh2: SH2 = tuple(int(v) for v in x.sh2.split(","))
    assert sum(SH1) == 128 and sum(SH2) == 128
    emit(x.out, x)
```

```python
import sys, math, struct
from asmlib import *

WS_EP   = 0x00000
WS_OP   = 0x10000
WS_T1S  = 0x50000
WS_QABS = 0x70000
WS_FLG  = 0x08000
WS_YA   = 0x90000
WS_YB   = 0xD8000
WS_BP   = 0x200000
WS_SIZE = 0x10000000
STAMPOFF = 200 << 20
PH_OFF = 201 << 20
L_PQ    = 73728
L_P     = 131072
L_MX    = 139264
L_ACOMB = 147456
L_AST   = 151552
L_CNT   = 151616
L_SM    = 151680
L_QA    = L_SM + 6400
LDS_SIZE = 163840
OOB = 0x40000000
NEGMAX = 0xFF7FFFFF
CSC = struct.unpack("<I", struct.pack("<f", (128 ** -0.5) * math.log2(math.e)))[0]
DPPM = "row_mask:0xf bank_mask:0xf"
SPIN = 200000
P_AX, P_K, P_V, P_WQ, P_WO, P_BX, P_CKV, P_BWQ, P_WUK, P_WUV, P_BWO, P_OUT, P_DBG, P_WS = [64 + 2 * i for i in range(14)]
S_TAG = 63
NSPLIT_B = 16
SH1 = (30, 30, 45, 23)
SH2 = (26, 26, 41, 35)
def share(pair, t):
    sh = SH1 if pair < 32 else SH2
    u0 = sum(sh[:t])
    return 32 * u0, 32 * (u0 + sh[t])
def vr(b, n=4): return f"v[{b}:{b+n-1}]"
MF = "v_mfma_f32_16x16x32_bf16"

class Gen:
    def __init__(self, en, fused, opt, tag=""):
        self.a = Asm(); self.en = en; self.fused = fused; self.o = opt; self.stamps = opt.stamps and fused; self.tag = tag
        self.role = ""
        self.dbgmap = {("a", 8): 2, ("t1", 1): 3, ("bh1", 2): 4, ("t1", 7): 5, ("bh2", 4): 6, ("a", 11): 7, ("at", 2): 8, ("a", 14): 9}
    def L(self, s): return s + self.tag
    def srd(self, d, p, size):
        self.a(f"s_mov_b32 s{d}, s{p}\ns_mov_b32 s{d+1}, s{p+1}\ns_mov_b32 s{d+2}, {size}\ns_mov_b32 s{d+3}, 0x20000")
    def stamp(self, k, vt=250):
        if self.o.dbg and self.fused:
            slot = self.dbgmap.get((self.role, k))
            if slot is None: return
            self.a(f"""
            s_memrealtime s[92:93]
            s_mov_b32 s8, s{P_DBG}
            s_mov_b32 s9, s{P_DBG+1}
            s_mov_b32 s10, 256
            s_mov_b32 s11, 0x20000
            s_waitcnt lgkmcnt(0)
            v_mov_b32 v{vt}, s92
            v_mov_b32 v{vt+2}, 0
            s_mov_b64 s[96:97], exec
            s_mov_b64 exec, 1
            buffer_atomic_umax v{vt}, v{vt+2}, s[8:11], 0 offen offset:{4 * slot} sc1
            s_mov_b64 exec, s[96:97]
            """)
            return
        if not self.stamps: return
        self.a(f"""
        s_memrealtime s[92:93]
        s_lshl_b32 s94, s2, 7
        s_add_u32 s94, s94, {PH_OFF + 8 * k}
        s_waitcnt lgkmcnt(0)
        v_mov_b32 v{vt}, s92
        v_mov_b32 v{vt+1}, s93
        v_mov_b32 v{vt+2}, 0
        s_mov_b64 s[96:97], exec
        s_mov_b64 exec, 1
        buffer_store_dwordx2 v[{vt}:{vt+1}], v{vt+2}, s[4:7], s94 offen
        s_mov_b64 exec, s[96:97]
        """)
    def wait_lds(self, slot, target, vt, sleep=0):
        a = self.a; lab = a.new_label(self.L("L_wl"))
        a(f"""
        v_mov_b32 v{vt}, {L_CNT + 4 * slot}
        s_mov_b32 s29, {SPIN * 8}
        {lab}:
        ds_read_b32 v{vt+1}, v{vt}
        s_sub_u32 s29, s29, 1
        s_cbranch_scc1 {lab}_x
        s_waitcnt lgkmcnt(0)
        v_readfirstlane_b32 s28, v{vt+1}
        s_cmp_ge_u32 s28, {target}
        s_cbranch_scc1 {lab}_x
        """)
        if sleep: a(f"s_sleep {sleep}")
        a(f"s_branch {lab}\n{lab}_x:\ns_waitcnt lgkmcnt(0)")
    def sbar(self, k, vt):
        self.a(f"""
        s_waitcnt lgkmcnt(0)
        v_mov_b32 v{vt}, {L_CNT + 4 * k}
        v_mov_b32 v{vt+1}, 1
        s_mov_b64 exec, 1
        ds_add_u32 v{vt}, v{vt+1}
        s_mov_b64 exec, -1
        """)
        self.wait_lds(k, 4, vt)
    def signal(self, k, vt):
        if not self.fused: return
        self.a(f"""
        v_mov_b32 v{vt}, {L_CNT + 4 * k}
        v_mov_b32 v{vt+1}, 1
        s_mov_b64 exec, 1
        ds_add_u32 v{vt}, v{vt+1}
        s_mov_b64 exec, -1
        """)
    def get_tag(self, vt):
        if not self.fused: return
        self.wait_lds(12, 1, vt, 1)
        self.a(f"ds_read_b32 v{vt+1}, v{vt} offset:4\ns_waitcnt lgkmcnt(0)\nv_readfirstlane_b32 s{S_TAG}, v{vt+1}")
    def check_flags(self, voff, vt):
        if not self.fused: return
        a = self.a; lab = a.new_label(self.L("L_cf"))
        a(f"""
        s_mov_b32 s29, {SPIN}
        {lab}:
        buffer_load_dword v{vt+1}, v{voff}, s[4:7], 0 offen sc1
        s_sub_u32 s29, s29, 1
        s_cbranch_scc1 {lab}_x
        s_waitcnt vmcnt(0)
        v_cmp_ne_u32 vcc, s{S_TAG}, v{vt+1}
        s_cbranch_vccz {lab}_x
        s_mov_b64 exec, vcc
        s_sleep 4
        s_branch {lab}
        {lab}_x:
        s_mov_b64 exec, -1
        s_waitcnt vmcnt(0)
        """)
    def flag_wg(self, v):
        self.a(f"v_lshlrev_b32 v{v}, 7, v{v}\nv_add_u32 v{v}, {WS_FLG}, v{v}")
    def flag_aid(self, v):
        self.a(f"v_lshlrev_b32 v{v}, 10, v{v}\nv_add_u32 v{v}, {WS_OP + 896}, v{v}")
    def gate(self, val, vt):
        if not self.fused: return
        a = self.a; lab = a.new_label(self.L("L_gate"))
        a(f"""
        s_cmp_lg_u32 s3, 0
        s_cbranch_scc1 {lab}
        v_mov_b32 v{vt}, {L_CNT + 4 * 10}
        v_mov_b32 v{vt+1}, {val}
        ds_write_b32 v{vt}, v{vt+1}
        {lab}:
        """)
    def maxchain(self, regs, vt):
        a = self.a
        rs = list(regs); cur = rs[0]; rest = rs[1:]
        while rest:
            if len(rest) >= 2:
                a(f"v_max3_u32 v{vt}, v{cur}, v{rest[0]}, v{rest[1]}"); rest = rest[2:]
            else:
                a(f"v_max_u32 v{vt}, v{cur}, v{rest[0]}"); rest = rest[1:]
            cur = vt
        a(f"v_cmp_eq_u32 vcc, -1, v{cur}")
    def fpoll(self, loads, regs, vt, depth=2, sleep=0):
        a = self.a; lab = a.new_label(self.L("L_fp")); n = len(loads)
        a(f"s_mov_b32 s29, {SPIN}")
        for _ in range(depth - 1):
            for l in loads: a(l)
            if sleep: a(f"s_sleep {sleep}")
        a.label(lab)
        for l in loads: a(l)
        a(f"s_sub_u32 s29, s29, 1\ns_cbranch_scc1 {lab}_x\ns_waitcnt vmcnt({n * (depth - 1)})")
        self.maxchain(regs, vt)
        a(f"s_cbranch_vccz {lab}_x\ns_mov_b64 exec, vcc\ns_branch {lab}\n{lab}_x:\ns_mov_b64 exec, -1")
    def poll(self, loads, regs, vt, sleep=4):
        a = self.a; lab = a.new_label(self.L("L_poll"))
        a(f"s_mov_b32 s29, {SPIN}\n{lab}:")
        for l in loads: a(l)
        a(f"s_sub_u32 s29, s29, 1\ns_cbranch_scc1 {lab}_x\ns_waitcnt vmcnt(0)")
        self.maxchain(regs, vt)
        a(f"s_cbranch_vccz {lab}_x\ns_mov_b64 exec, vcc")
        if sleep: a(f"s_sleep {sleep}")
        a(f"s_branch {lab}\n{lab}_x:\ns_mov_b64 exec, -1\ns_waitcnt vmcnt(0)")
    def sanitize(self, regs):
        for r in regs: self.a(f"v_min_u32 v{r}, -2, v{r}")
    def xg_reduce(self, op, x, y):
        self.a(f"""
        v_mov_b32 v{y}, v{x}
        v_permlane16_swap_b32 v{x}, v{y}
        {op} v{x}, v{x}, v{y}
        v_mov_b32 v{y}, v{x}
        v_permlane32_swap_b32 v{x}, v{y}
        {op} v{x}, v{x}, v{y}
        """)
    def dma(self, voff, srd, soff, imm=0, depth=None):
        self.a(f"s_waitcnt vmcnt({(depth or self.o.DS) - 1})")
        self.a(f"buffer_load_dwordx4 v{voff}, {srd}, {soff} offen offset:{imm} nt lds")

    def build(self):
        a = self.a; L = self.L
        a(f"""
        s_cmp_ge_u32 s2, 256
        s_cbranch_scc1 {L('L_end')}
        s_load_dwordx16 s[64:79], s[0:1], 0
        s_load_dwordx8 s[80:87], s[0:1], 64
        s_load_dwordx4 s[88:91], s[0:1], 96
        """)
        if self.stamps or self.o.dbg: a("s_memrealtime s[98:99]")
        l1 = a.new_label(L("L_id1")); l2 = a.new_label(L("L_id2"))
        a(f"""
        v_lshrrev_b32 v1, 6, v0
        v_and_b32 v0, 63, v0
        v_readfirstlane_b32 s3, v1
        v_lshlrev_b32 v1, 2, v0
        v_add_u32 v1, {L_CNT}, v1
        v_mov_b32 v2, 0
        s_mov_b64 exec, 0xffff
        ds_write_b32 v1, v2
        s_mov_b64 exec, -1
        s_lshr_b32 s28, s2, 5                ; 0..7
        s_lshl_b32 s29, s28, 2
        s_lshr_b32 s46, 0x13220030, s29
        s_and_b32 s46, s46, 15
        s_lshr_b32 s45, 0x20440000, s29
        s_and_b32 s45, s45, 15               ; rotation : T3 4, AT 2
        s_add_u32 s45, s45, s2
        s_and_b32 s45, s45, 31
        s_lshr_b32 s29, 0x22, s28
        s_and_b32 s29, s29, 1
        s_lshl_b32 s29, s29, 5
        s_add_u32 s45, s45, s29
        s_lshr_b32 s28, s2, 6
        s_cmp_lg_u32 s28, 1
        s_cbranch_scc1 {l2}
        s_lshr_b32 s45, s2, 1
        s_and_b32 s46, s2, 1
        {l2}:
        s_lshl_b32 s47, s45, 2
        s_add_u32 s47, s47, s46
        v_lshrrev_b32 v1, 4, v0
        v_and_b32 v2, 15, v0
        v_lshlrev_b32 v4, 4, v0
        s_waitcnt lgkmcnt(0)
        """)
        self.srd(4, P_WS, WS_SIZE)
        if "CLR" in self.en: self.clear()
        a(f"""
        s_barrier
        s_cmp_ge_u32 s3, 4
        s_cbranch_scc1 {L('L_awave')}
        s_setprio {self.o.sprio}
        s_cmp_ge_u32 s2, 224
        s_cbranch_scc1 {L('L_at')}
        s_cmp_ge_u32 s2, 192
        s_cbranch_scc1 {L('L_bh2')}
        s_cmp_ge_u32 s2, 128
        s_cbranch_scc1 {L('L_bh1')}
        """)
        self.role_t1()
        a.label(L("L_at"));  self.role_at();  a(f"s_branch {L('L_fin')}")
        a.label(L("L_bh1")); self.role_bh1(); a(f"s_branch {L('L_fin')}")
        a.label(L("L_bh2")); self.role_bh2(); a(f"s_branch {L('L_fin')}")
        a.label(L("L_awave")); self.role_a()
        a.label(L("L_fin"))
        if self.stamps:
            a(f"""
            s_mov_b64 exec, -1
            s_waitcnt vmcnt(0)
            s_memrealtime s[92:93]
            s_lshl_b32 s94, s2, 3
            s_add_u32 s94, s94, s3
            s_lshl_b32 s94, s94, 4
            s_add_u32 s94, s94, {STAMPOFF}
            s_waitcnt lgkmcnt(0)
            v_mov_b32 v4, s98
            v_mov_b32 v5, s99
            v_mov_b32 v6, s92
            v_mov_b32 v7, s93
            v_mov_b32 v1, 0
            s_mov_b64 exec, 1
            buffer_store_dwordx4 v[4:7], v1, s[4:7], s94 offen
            """)
        a.label(L("L_end"))
        a("s_endpgm")
        return a

    def clear(self):
        a = self.a; L = self.L
        done = a.new_label(L("L_clrd")); c1 = a.new_label(L("L_clr1")); c2 = a.new_label(L("L_clr2")); lp = a.new_label(L("L_clrl"))
        a(f"""
        s_cmp_lg_u32 s3, 4
        s_cbranch_scc1 {done}
        s_setprio 3
        s_load_dword s{S_TAG}, s[{P_WS}:{P_WS+1}], 0
        v_mov_b32 v8, -1
        v_mov_b32 v9, -1
        v_mov_b32 v10, -1
        v_mov_b32 v11, -1
        s_lshl_b32 s30, s47, 10
        s_add_u32 s30, s30, {WS_OP}
        s_lshr_b32 s31, s2, 5
        s_cmp_eq_u32 s31, 6
        s_cselect_b32 s31, 0, -1
        s_cselect_b32 s32, {NEGMAX}, -1
        v_mov_b32 v12, s31
        v_mov_b32 v13, s31
        v_mov_b32 v14, s31
        v_mov_b32 v15, s31
        s_mov_b32 exec_lo, 0
        v_mov_b32 v12, s32
        v_mov_b32 v14, s32
        s_mov_b32 exec_lo, -1
        s_mov_b32 exec_hi, 0xffffff
        buffer_store_dwordx4 v[12:15], v4, s[4:7], s30 offen sc1
        s_mov_b64 exec, -1
        s_cmp_ge_u32 s2, 128
        s_cbranch_scc1 {c1}
        s_lshl_b32 s31, s2, 10
        s_add_u32 s31, s31, {WS_T1S}
        s_mov_b32 s32, 1
        s_branch {lp}
        {c1}:
        s_cmp_ge_u32 s2, 192
        s_cbranch_scc1 {c2}
        s_lshl_b32 s31, s2, 11
        s_add_u32 s31, s31, {WS_QABS - 128 * 2048}
        s_mov_b32 s32, 2
        s_branch {lp}
        {c2}:
        s_and_b32 s31, s2, 31
        s_mul_i32 s31, s31, 9216
        s_add_u32 s31, s31, {WS_YB}
        s_cmp_ge_u32 s2, 224
        s_cselect_b32 s32, {WS_YB - WS_YA}, 0
        s_sub_u32 s31, s31, s32
        s_mov_b32 s32, 9
        {lp}:
        buffer_store_dwordx4 v[8:11], v4, s[4:7], s31 offen sc1
        s_add_u32 s31, s31, 1024
        s_sub_u32 s32, s32, 1
        s_cmp_lg_u32 s32, 0
        s_cbranch_scc1 {lp}
        {done}:
        """)
    def clear_finish(self):
        a = self.a; L = self.L
        done = a.new_label(L("L_clrf"))
        a(f"""
        s_cmp_lg_u32 s3, 4
        s_cbranch_scc1 {done}
        s_waitcnt lgkmcnt(0)
        s_mul_i32 s{S_TAG}, s{S_TAG}, 0x9E3779B1
        s_add_u32 s{S_TAG}, s{S_TAG}, 0x7F4A7C15
        v_mov_b32 v8, s{S_TAG}
        v_mov_b32 v9, s{S_TAG}
        v_mov_b32 v10, s{S_TAG}
        v_mov_b32 v11, s{S_TAG}
        v_mov_b32 v12, 1
        v_mov_b32 v13, s{S_TAG}
        v_mov_b32 v14, {L_CNT + 4 * 12}
        s_lshl_b32 s31, s2, 7
        s_add_u32 s31, s31, {WS_FLG}
        s_waitcnt vmcnt(0)
        s_mov_b64 exec, 0xff
        buffer_store_dwordx4 v[8:11], v4, s[4:7], s30 offen offset:896 sc1
        buffer_store_dwordx4 v[8:11], v4, s[4:7], s31 offen sc1
        s_mov_b64 exec, 1
        ds_write_b64 v14, v[12:13]
        s_mov_b64 exec, -1
        s_setprio 0
        """)
        self.stamp(8)
        if self.o.dbg:
            a(f"""
            s_not_b32 s92, s98
            v_mov_b32 v250, s92
            v_mov_b32 v251, s98
            s_mov_b64 exec, 1
            buffer_atomic_umax v250, v252, s[8:11], 0 offen sc1
            buffer_atomic_umax v251, v252, s[8:11], 0 offen offset:4 sc1
            s_mov_b64 exec, -1
            """)
        a.label(done)

    def role_t1(self):
        self.role = "t1"
        a = self.a; L = self.L
        f = lambda x: ((x & 7) << 1) | (x >> 3)
        PQ = "PQ" in self.en; BA = "BA" in self.en
        T2 = 192
        def c_setup():
            self.srd(20, P_CKV, 16 << 20)
            for r in range(16): a(f"v_xor_b32 v{24+r}, {f(r) << 4}, v4")
            a("s_sub_u32 s33, s2, 64\ns_lshl_b32 s36, s33, 18")
        def c_loads(s_row16):
            a(f"s_lshl_b32 s37, {s_row16}, 14\ns_add_u32 s34, s36, s37")
            for r in range(16):
                if r % 4 == 0: a("s_mov_b32 m0, s37")
                self.dma(24 + r, "s[20:23]", "s34", (r % 4) * 1024, self.o.DC)
                if r % 4 == 3: a("s_add_u32 s34, s34, 4096\ns_add_u32 s37, s37, 4096")
            a("s_lshl_b32 s37, s3, 14\ns_add_u32 s35, s36, s37\ns_add_u32 s35, s35, 131072")
            for r in range(self.o.t2e): t2_load(r, True)
        def t2_load(r, throttle=False):
            if r >= 16: return
            a(f"v_xor_b32 v23, {f(r) << 4}, v4")
            if throttle: a(f"s_waitcnt vmcnt({self.o.DC - 1})")
            a(f"buffer_load_dwordx4 {vr(T2 + 4*r)}, v23, s[20:23], s35 offen offset:{(r % 4) * 1024} nt")
            if r % 4 == 3: a("s_add_u32 s35, s35, 4096")
        if PQ:
            X = 64
            L_X = L_SM + 1024
            a(f"""
            s_cmp_lt_u32 s2, 64
            s_cselect_b32 s12, s{P_BWQ}, s{P_WQ}
            s_cselect_b32 s13, s{P_BWQ+1}, s{P_WQ+1}
            s_mov_b32 s14, {576 * 8192}
            s_mov_b32 s15, 0x20000
            s_cselect_b32 s16, s{P_BX}, s{P_AX}
            s_cselect_b32 s17, s{P_BX+1}, s{P_AX+1}
            s_mov_b32 s18, {4 * 1152}
            s_mov_b32 s19, 0x20000
            s_and_b32 s34, s2, 63
            s_lshl_b32 s34, s34, 7               ; h*256 + ch*128
            s_mul_i32 s35, s3, {18 * 65536}
            s_add_u32 s34, s34, s35
            s_mul_i32 s35, s3, {18 * 1024}
            s_add_u32 s35, s35, {L_PQ}
            v_lshlrev_b32 v5, 1, v1
            v_and_b32 v6, 7, v0
            v_xor_b32 v5, v5, v6
            v_lshlrev_b32 v5, 4, v5
            v_lshrrev_b32 v6, 3, v0
            v_lshl_add_u32 v5, v6, 13, v5
            s_mov_b32 m0, {L_X}
            v_and_b32 v6, 3, v2
            buffer_load_dwordx4 v4, s[16:19], 0 offen lds
            buffer_load_dwordx4 v4, s[16:19], 0 offen offset:1024 lds
            buffer_load_dwordx4 v4, s[16:19], 0 offen offset:2048 lds
            buffer_load_dwordx4 v4, s[16:19], 0 offen offset:3072 lds
            s_mov_b32 m0, {L_X + 4096}
            s_mov_b32 s38, 4096
            buffer_load_dwordx4 v4, s[16:19], s38 offen lds
            """)
            for i in range(18):
                a("s_mov_b32 m0, s35")
                self.dma(5, "s[12:15]", "s34", 0, 60)
                if i != 17: a("s_add_u32 s34, s34, 65536\ns_add_u32 s35, s35, 1024")
            if self.o.gpq == 0: self.gate(4, 16)
            a(f"""
            v_mul_u32_u24 v6, 1152, v6
            v_lshl_add_u32 v6, v1, 3, v6
            v_add_u32 v6, {L_X}, v6
            s_waitcnt vmcnt(18)
            """)
            for s in range(18):
                a(f"ds_read2_b64 {vr(X + 4*s)}, v6 offset0:{8*s} offset1:{8*s+4}")
                if s == 12: a("s_waitcnt lgkmcnt(8)")
            a(f"""
            v_lshrrev_b32 v7, 2, v0
            v_bfe_u32 v8, v0, 3, 2
            v_xor_b32 v8, s3, v8
            v_lshlrev_b32 v8, 5, v8
            v_lshl_add_u32 v8, v7, 7, v8
            v_and_b32 v7, 3, v0
            v_lshl_add_u32 v8, v7, 3, v8
            v_add_u32 v8, {L_PQ}, v8
            v_add_u32 v9, 0x8000, v8
            v_and_b32 v6, 3, v2
            v_lshlrev_b32 v6, 7, v6
            v_lshl_add_u32 v6, v1, 3, v6
            s_lshl_b32 s38, s3, 5
            s_add_u32 s38, s38, {L_SM}
            v_add_u32 v6, s38, v6
            """)
            self.get_tag(16)
            if self.o.gpq == 1:
                a("s_waitcnt vmcnt(8)"); self.gate(4, 16)
            a("s_waitcnt vmcnt(0)")
            if self.o.gpq == 2: self.gate(4, 16)
            self.stamp(0, 20)
            self.sbar(0, 16)
            W = 140; NB = 8; PRE = 6
            def rd(s):
                base, off = (8, s * 4096) if s < 8 else (9, (s - 8) * 4096)
                r = W + 4 * (s % NB)
                a(f"ds_read_b64_tr_b16 v[{r}:{r+1}], v{base} offset:{off}")
                a(f"ds_read_b64_tr_b16 v[{r+2}:{r+3}], v{base} offset:{off + 2048}")
            for s in range(PRE): rd(s)
            for s in range(18):
                if s + PRE < 18: rd(s + PRE)
                a(f"s_waitcnt lgkmcnt({2 * min(PRE, 17 - s)})")
                acc = 40 + 4 * (s & 1)
                a(f"{MF} {vr(acc)}, {vr(W + 4 * (s % NB))}, {vr(X + 4*s)}, {'0' if s < 2 else vr(acc)}")
            a(f"""
            v_add_f32 v40, v40, v44
            v_add_f32 v41, v41, v45
            v_add_f32 v42, v42, v46
            v_add_f32 v43, v43, v47
            v_cvt_pk_bf16_f32 v44, v40, v41
            v_cvt_pk_bf16_f32 v45, v42, v43
            """)
            self.sanitize([44, 45])
            a("ds_write_b64 v6, v[44:45]")
            self.sbar(1, 16)
            sk = a.new_label(L("L_pqs"))
            a(f"""
            s_cmp_lg_u32 s3, 0
            s_cbranch_scc1 {sk}
            v_add_u32 v6, {L_SM}, v4
            s_lshl_b32 s38, s2, 10
            s_add_u32 s38, s38, {WS_T1S}
            s_mov_b32 exec_hi, 0
            ds_read_b128 v[40:43], v6
            s_waitcnt lgkmcnt(0)
            buffer_store_dwordx4 v[40:43], v4, s[4:7], s38 offen sc1
            s_mov_b64 exec, -1
            """)
            if self.o.gpq == 3: self.gate(4, 16)
            self.stamp(1, 20)
            a.label(sk)
        a(f"s_cmp_lt_u32 s2, 64\ns_cbranch_scc1 {L('L_fin')}")
        if not BA:
            a(f"s_branch {L('L_fin')}")
            a.label(L("L_ba_a"))
            a(f"s_branch {L('L_amain')}")
            return
        c_setup()
        a("s_add_u32 s38, s3, 4")
        c_loads("s38")
        a(f"s_branch {L('L_ba_c')}")
        a.label(L("L_ba_a"))
        c_setup()
        if self.fused: self.wait_lds(10, 1, 16, 1)
        c_loads("s44")
        self.get_tag(16)
        if "A" in self.en:
            sk = a.new_label(L("L_noq"))
            a(f"""
            s_cmp_lg_u32 s3, 4
            s_cbranch_scc1 {sk}
            s_and_b32 s52, s45, 15
            s_lshl_b32 s53, s52, 2
            s_add_u32 s53, s53, 64
            v_bfe_u32 v10, v0, 3, 2
            v_add_u32 v11, s53, v10
            """)
            self.flag_wg(11)
            a(f"""
            s_lshl_b32 s53, s45, 12
            s_add_u32 s53, s53, {WS_OP + 896}
            v_mov_b32 v12, s53
            v_cmp_lt_u32 vcc, 31, v0
            v_cndmask_b32 v11, v11, v12, vcc
            v_and_b32 v12, 7, v0
            v_lshlrev_b32 v12, 4, v12
            v_lshl_add_u32 v12, v10, 10, v12
            s_lshl_b32 s52, s52, 12
            s_lshr_b32 s53, s45, 4
            s_lshl_b32 s53, s53, 7
            s_add_u32 s52, s52, s53
            s_add_u32 s52, s52, {WS_T1S + 64 * 1024}
            v_add_u32 v13, {L_QA}, v4
            """)
            self.check_flags(11, 16)
            a("s_mov_b32 exec_hi, 0")
            self.poll(["buffer_load_dwordx4 v[40:43], v12, s[4:7], s52 offen sc1"], range(40, 44), 16, sleep=4)
            a(f"s_mov_b32 exec_hi, 0\nds_write_b128 v13, v[40:43]\ns_mov_b64 exec, -1\n{sk}:")
        a(f"s_setprio {self.o.sprio}")
        a.label(L("L_ba_c"))
        L_QS = L_P
        a(f"""
        s_and_b32 s38, s3, 1             ; hg
        s_lshr_b32 s43, s3, 1            ; kq
        v_and_b32 v5, 7, v2
        v_lshlrev_b32 v5, 1, v5
        v_lshrrev_b32 v6, 3, v2
        v_or_b32 v5, v5, v6
        v_lshlrev_b32 v5, 4, v5
        v_lshl_add_u32 v5, v1, 8, v5
        v_lshl_add_u32 v5, v2, 10, v5
        s_lshl_b32 s37, s43, 15
        v_add_u32 v5, s37, v5
        s_lshr_b32 s39, s33, 4           ; b
        s_lshl_b32 s39, s39, 9
        s_lshl_b32 s40, s3, 13
        s_add_u32 s39, s39, s40
        s_add_u32 s39, s39, {WS_QABS}    ; heads 2w,2w+1
        s_add_u32 s40, s39, 4096
        s_add_u32 s41, s39, 65536
        s_add_u32 s42, s39, {65536 + 4096}
        v_lshrrev_b32 v10, 5, v0
        v_lshlrev_b32 v10, 11, v10
        v_and_b32 v11, 31, v0
        v_lshl_add_u32 v10, v11, 4, v10  ; (l>>5)*2048 + (l&31)*16
        v_mov_b32 v3, {CSC}
        v_add_u32 v11, 128, v0
        s_lshl_b32 s37, s3, 5            ; n0*16 with n0 = 2w
        v_xor_b32 v12, s37, v4
        s_lshl_b32 s37, s3, 11
        s_add_u32 s37, s37, {L_QS}
        v_add_u32 v12, s37, v12
        v_xor_b32 v13, 16, v12
        v_add_u32 v13, 1024, v13         ; head 2w+1
        v_xor_b32 v14, v1, v2
        v_lshlrev_b32 v14, 4, v14
        v_lshl_add_u32 v14, v2, 10, v14
        v_add_u32 v14, {L_QS}, v14
        v_xor_b32 v15, 64, v14
        v_xor_b32 v18, 0x80, v14
        v_xor_b32 v19, 0xc0, v14
        """)
        self.flag_wg(11)
        self.check_flags(11, 16)
        a("s_waitcnt vmcnt(0)\ns_barrier")
        self.stamp(2, 20)
        G = 40; Q = 64
        self.fpoll([f"buffer_load_dwordx4 {vr(G + 4*k)}, v10, s[4:7], s{39+k} offen sc1" for k in range(4)], range(G, G + 16), 16, depth=2, sleep=2)
        nt2 = [self.o.t2e]
        def t2_more(n):
            for _ in range(n):
                t2_load(nt2[0]); nt2[0] += 1
        t2_more(4)
        self.stamp(3, 20)
        def qread():
            for j in range(16):
                a(f"ds_read_b128 {vr(Q + 4*j)}, v{[14, 15, 18, 19][j & 3]} offset:{(j >> 2) * 256}")
                if j == 11: a("s_waitcnt lgkmcnt(8)")
        for hg in range(2):
            sk = a.new_label(L("L_qs"))
            a(f"""
            ds_write_b128 v12, {vr(G + 8*hg)}
            ds_write_b128 v13, {vr(G + 8*hg + 4)}
            s_waitcnt lgkmcnt(0)
            s_barrier
            s_cmp_lg_u32 s38, {hg}
            s_cbranch_scc1 {sk}
            """)
            qread()
            a(f"s_waitcnt lgkmcnt(0)\n{sk}:")
            t2_more(2)
            if hg == 0: a("s_barrier")
        a(f"""
        v_lshlrev_b32 v12, 4, v2
        v_add_u32 v12, {L_SM}, v12
        s_lshl_b32 s37, s38, 8
        s_lshl_b32 s39, s43, 2
        s_add_u32 s37, s37, s39
        v_add_u32 v13, s37, v12
        s_lshl_b32 s37, s38, 12
        s_lshl_b32 s39, s43, 10
        s_add_u32 s37, s37, s39
        s_add_u32 s37, s37, {L_P}
        v_add_u32 v14, s37, v4               ; P write
        v_add_u32 v15, {L_P}, v4             ; P read
        v_lshrrev_b32 v6, 2, v0
        v_and_b32 v7, 7, v6
        v_lshlrev_b32 v7, 1, v7
        v_lshrrev_b32 v8, 3, v6
        v_or_b32 v7, v7, v8
        v_bfe_u32 v8, v0, 1, 1
        v_xor_b32 v7, v7, v8
        v_lshlrev_b32 v7, 4, v7
        v_lshl_add_u32 v7, v6, 10, v7
        v_and_b32 v8, 1, v0
        v_lshl_add_u32 v7, v8, 3, v7
        s_lshl_b32 s41, s3, 7
        v_xor_b32 v7, s41, v7
        s_lshl_b32 s37, s3, 14
        v_add_u32 v18, s37, v4
        v_mov_b32 v10, {NEGMAX}              ; m hg0
        v_mov_b32 v11, {NEGMAX}              ; m hg1
        v_mov_b32 v19, 0                     ; l partial
        s_waitcnt vmcnt({max(0, min(16, nt2[0]) - self.o.t2e)})
        """)
        for ct in range(4):
            a(f"v_xor_b32 v{24+ct}, {ct << 5}, v7\nv_add_u32 v{28+ct}, 0x10000, v{24+ct}")
        self.stamp(4, 20)
        S = 40; A = 128; NB = 8; ACC = 160; PB = 40
        for ps in range(2):
            seq = [(j, t) for j in range(16) for t in range(2)]
            def rd(i):
                j, t = seq[i]
                if t == 0: a(f"v_xor_b32 v{32 + (j & 3)}, {j << 4}, v5")
                a(f"ds_read_b128 {vr(A + 4 * (i % NB))}, v{32 + (j & 3)} offset:{t * 16384}")
            PRE = 6
            for i in range(PRE): rd(i)
            for i, (j, t) in enumerate(seq):
                if i + PRE < len(seq): rd(i + PRE)
                a(f"s_waitcnt lgkmcnt({min(PRE, len(seq) - 1 - i)})")
                acc = S + 4 * t
                a(f"{MF} {vr(acc)}, {vr(A + 4 * (i % NB))}, {vr(Q + 4*j)}, {'0' if j == 0 else vr(acc)}")
                if ps == 0 and i % 4 == 3: t2_more(1)
            for e in range(8): a(f"v_mul_f32 v{S+e}, v3, v{S+e}")
            a(f"""
            v_max3_f32 v8, v{S}, v{S+1}, v{S+2}
            v_max3_f32 v8, v8, v{S+3}, v{S+4}
            v_max3_f32 v8, v8, v{S+5}, v{S+6}
            v_max_f32 v8, v8, v{S+7}
            """)
            self.xg_reduce("v_max_f32", 8, 9)
            a(f"""
            ds_write_b32 v13, v8
            s_waitcnt lgkmcnt(0)
            s_barrier
            ds_read_b128 v[52:55], v12
            ds_read_b128 v[56:59], v12 offset:256
            s_cmp_eq_u32 s38, 0
            s_cselect_b64 s[26:27], -1, 0
            s_waitcnt lgkmcnt(0)
            v_max3_f32 v52, v52, v53, v54
            v_max3_f32 v56, v56, v57, v58
            v_max3_f32 v52, v52, v55, v10
            v_max3_f32 v56, v56, v59, v11
            v_sub_f32 v60, v10, v52
            v_sub_f32 v61, v11, v56
            v_mov_b32 v10, v52
            v_mov_b32 v11, v56
            v_cndmask_b32 v8, v56, v52, s[26:27]
            v_exp_f32 v60, v60
            v_exp_f32 v61, v61
            """)
            for e in range(8): a(f"v_sub_f32 v{S+e}, v{S+e}, v8")
            for e in range(8): a(f"v_exp_f32 v{S+e}, v{S+e}")
            a("v_cndmask_b32 v9, v61, v60, s[26:27]")
            for e in range(4): a(f"v_cvt_pk_bf16_f32 v{48+e}, v{S+2*e}, v{S+2*e+1}")
            a(f"ds_write_b128 v14, v[48:51]\nv_fma_f32 v19, v19, v9, v{S}")
            for e in range(1, 8): a(f"v_add_f32 v19, v19, v{S+e}")
            if ps == 1:
                for r in range(32): a(f"v_mul_f32 v{ACC+r}, v{60 + (r >> 4)}, v{ACC+r}")
                self.xg_reduce("v_add_f32", 19, 9)
                a("ds_write_b32 v13, v19 offset:512")
            a("s_waitcnt lgkmcnt(0)\ns_barrier")
            seq = [(u, ct) for u in range(4) for ct in range(4)]
            def rd2(i):
                u, ct = seq[i]
                if ct == 0:
                    for hg in range(2): a(f"ds_read_b128 {vr(PB + 8 * (u & 1) + 4 * hg)}, v15 offset:{hg * 4096 + u * 1024}")
                base = (24 if u < 2 else 28) + ct; off = (u & 1) * 32768; r = A + 4 * (i % NB)
                a(f"ds_read_b64_tr_b16 v[{r}:{r+1}], v{base} offset:{off}")
                a(f"ds_read_b64_tr_b16 v[{r+2}:{r+3}], v{base} offset:{off + 16384}")
            cnt = lambda i: 2 + (2 if seq[i][1] == 0 else 0)
            PRE = 4
            for i in range(PRE): rd2(i)
            for i, (u, ct) in enumerate(seq):
                if i + PRE < len(seq): rd2(i + PRE)
                a(f"s_waitcnt lgkmcnt({sum(cnt(k) for k in range(i + 1, min(i + PRE + 1, len(seq))))})")
                for hg in range(2):
                    acc = ACC + 16 * hg + 4 * ct
                    a(f"{MF} {vr(acc)}, {vr(A + 4 * (i % NB))}, {vr(PB + 8 * (u & 1) + 4 * hg)}, {'0' if (u == 0 and ps == 0) else vr(acc)}")
            if ps == 0:
                self.stamp(5, 20)
                a("s_waitcnt vmcnt(0)\ns_barrier")
                self.stamp(13, 20)
                for r in range(16): a(f"ds_write_b128 v18, {vr(T2 + 4*r)} offset:{r * 1024}")
                a("s_waitcnt lgkmcnt(0)\ns_barrier")
        a(f"""
        v_and_b32 v6, 7, v2
        v_lshlrev_b32 v6, 10, v6
        v_lshrrev_b32 v8, 3, v2
        v_lshl_add_u32 v6, v8, 6, v6
        v_lshl_add_u32 v6, v1, 4, v6
        s_lshl_b32 s39, s33, 15
        s_add_u32 s39, s39, s41
        s_add_u32 s39, s39, {WS_BP}
        """)
        for hg in range(2):
            acc = ACC + 16 * hg; X0 = 64 + 8 * hg; X1 = X0 + 4
            for w in range(8): a(f"v_cvt_pk_bf16_f32 v{X0+w}, v{acc+2*w}, v{acc+2*w+1}")
            for w in range(4): a(f"v_mov_b32 v{80+w}, v{X0+w}")
            for w in range(4): a(f"v_mov_b32_dpp v{X0+w}, v{X1+w} row_ror:8 row_mask:0xf bank_mask:0xc")
            for w in range(4): a(f"v_mov_b32_dpp v{X1+w}, v{80+w} row_ror:8 row_mask:0xf bank_mask:0x3")
            a(f"buffer_store_dwordx4 {vr(X0)}, v6, s[4:7], s39 offen sc1\ns_add_u32 s39, s39, 8192")
            a(f"buffer_store_dwordx4 {vr(X1)}, v6, s[4:7], s39 offen sc1\ns_add_u32 s39, s39, 8192")
        self.stamp(6, 20)
        a(f"""
        s_waitcnt vmcnt(0)
        s_barrier
        s_setprio 0
        s_cmp_ge_u32 s3, 4
        s_cbranch_scc1 {L('L_amain')}
        s_cmp_lg_u32 s3, 0
        s_cbranch_scc1 {L('L_fin')}
        s_setprio 3
        v_and_b32 v6, 31, v0
        v_lshlrev_b32 v7, 4, v6
        v_add_u32 v7, {L_SM + 512}, v7
        ds_read_b128 v[40:43], v7
        v_lshlrev_b32 v6, 3, v6
        s_lshl_b32 s39, s2, 10
        s_add_u32 s39, s39, {WS_T1S + 512}
        v_cmp_eq_u32 vcc, 0, v1
        v_cndmask_b32 v8, v11, v10, vcc
        s_waitcnt lgkmcnt(0)
        v_add_f32 v9, v40, v41
        v_add_f32 v42, v42, v43
        v_add_f32 v9, v9, v42
        """)
        self.sanitize([8, 9])
        a(f"""
        s_mov_b32 exec_hi, 0
        buffer_store_dwordx2 v[8:9], v6, s[4:7], s39 offen sc1
        s_mov_b64 exec, -1
        """)
        self.stamp(7, 20)
        a(f"s_branch {L('L_fin')}")

    def stage_lin(self, srd, s_base, s_lds, n, voff):
        a = self.a
        for i in range(n):
            if i % 4 == 0: a(f"s_mov_b32 m0, {s_lds}")
            self.dma(voff, srd, s_base, (i % 4) * 1024)
            if i % 4 == 3 and i != n - 1:
                a(f"s_add_u32 {s_base}, {s_base}, 4096\ns_add_u32 {s_lds}, {s_lds}, 4096")
    def store_y(self, ys, s_y, s_y8, vt):
        a = self.a
        self.sanitize(range(ys, ys + 9))
        a(f"""
        v_lshlrev_b32 v{vt}, 2, v0
        buffer_store_dwordx4 {vr(ys)}, v4, s[4:7], {s_y} offen sc1
        buffer_store_dwordx4 {vr(ys+4)}, v4, s[4:7], {s_y} offen offset:1024 sc1
        buffer_store_dword v{ys+8}, v{vt}, s[4:7], {s_y8} offen sc1
        """)
    def y_addr(self, ybase):
        self.a(f"""
        s_mul_i32 s38, s33, 9216
        s_add_u32 s38, s38, {ybase}
        s_lshl_b32 s39, s3, 8
        s_add_u32 s39, s39, s38
        s_add_u32 s39, s39, 8192
        s_lshl_b32 s40, s3, 11
        s_add_u32 s38, s38, s40
        """)

    def role_at(self):
        self.role = "at"
        a = self.a
        if "AT" not in self.en: return
        self.srd(12, P_WO, 4096 * 1152)
        a(f"""
        s_and_b32 s33, s2, 31
        s_mul_i32 s36, s33, {128 * 1152}
        s_mul_i32 s37, s3, {36 * 1024}
        s_add_u32 s36, s36, s37
        """)
        self.gate(self.o.gat, 16)
        self.stage_lin("s[12:15]", "s36", "s37", 36, 4)
        self.gate(4, 16)
        a(f"""
        v_lshrrev_b32 v5, 2, v0
        v_mul_u32_u24 v5, {8 * 1152}, v5
        v_and_b32 v6, 3, v0
        v_lshl_add_u32 v5, v6, 3, v5
        s_lshl_b32 s38, s3, 5
        s_add_u32 s38, s38, 1024
        v_add_u32 v6, s38, v5
        s_lshl_b32 s38, s3, 8
        v_add_u32 v5, s38, v5
        s_waitcnt vmcnt(0)
        """)
        self.sbar(0, 16)
        WO = 64
        for ct in range(9):
            for j in range(4):
                r = WO + 16 * ct + 4 * j
                base, co = (5, ct * 32) if ct < 8 else (6, 0)
                a(f"ds_read_b64_tr_b16 v[{r}:{r+1}], v{base} offset:{(2*j) * 1152 + co}")
                a(f"ds_read_b64_tr_b16 v[{r+2}:{r+3}], v{base} offset:{(2*j+1) * 1152 + co}")
            a("s_waitcnt lgkmcnt(7)")
        a(f"""
        s_lshr_b32 s36, s33, 1
        s_lshl_b32 s36, s36, 2               ; 4*hkv
        v_lshrrev_b32 v6, 2, v2
        v_lshlrev_b32 v6, 6, v6
        v_and_b32 v7, 3, v2
        v_add_u32 v6, v6, v7
        v_add_u32 v8, s36, v6
        v_lshlrev_b32 v6, 10, v6
        v_lshl_add_u32 v6, v1, 4, v6         ; o voffset
        v_lshl_add_u32 v7, v1, 6, v7
        v_lshlrev_b32 v7, 10, v7
        s_lshl_b32 s36, s36, 10
        s_add_u32 s36, s36, {WS_OP}
        s_and_b32 s37, s33, 1
        s_lshl_b32 s40, s37, 3
        s_add_u32 s41, s36, s40
        s_add_u32 s41, s41, 512
        s_lshl_b32 s37, s37, 8
        s_add_u32 s36, s36, s37              ; o soffset
        """)
        self.y_addr(WS_YA)
        self.get_tag(16)
        self.flag_aid(8)
        self.check_flags(8, 16)
        self.stamp(0)
        if self.fused: self.wait_lds(15, self.o.atw, 16, 1)
        O = 24; ST = 40
        loads = [f"buffer_load_dwordx4 {vr(O + 4*j)}, v6, s[4:7], s36 offen offset:{64*j} sc1" for j in range(4)]
        loads += [f"buffer_load_dwordx2 v[{ST}:{ST+1}], v7, s[4:7], s41 offen sc1"]
        self.fpoll(loads, range(O, O + 18), 16, depth=self.o.pd)
        self.stamp(1)
        ACC = 208
        for ct in range(9):
            for j in range(4):
                acc = ACC + 4 * ct
                a(f"{MF} {vr(acc)}, {vr(O + 4*j)}, {vr(WO + 16*ct + 4*j)}, {'0' if j == 0 else vr(acc)}")
            if ct == 0:
                a(f"""
                v_max_f32_dpp v16, v{ST}, v{ST} quad_perm:[1,0,3,2] {DPPM}
                v_max_f32_dpp v16, v16, v16 quad_perm:[2,3,0,1] {DPPM}
                v_sub_f32 v17, v{ST}, v16
                v_exp_f32 v17, v17
                v_mul_f32 v18, v17, v{ST+1}
                """)
            if ct == 1:
                a(f"""
                v_add_f32_dpp v18, v18, v18 quad_perm:[1,0,3,2] {DPPM}
                v_add_f32_dpp v18, v18, v18 quad_perm:[2,3,0,1] {DPPM}
                v_rcp_f32 v18, v18
                v_mul_f32 v17, v17, v18
                """)
            if ct == 2:
                for t in range(4): a(f"v_mov_b32_dpp v{48+t}, v17 quad_perm:[{t},{t},{t},{t}] {DPPM}")
        Y = 52
        for ct in range(9):
            acc = ACC + 4 * ct
            a(f"""
            v_mul_f32 v{Y+ct}, v48, v{acc}
            v_fmac_f32 v{Y+ct}, v49, v{acc+1}
            v_fmac_f32 v{Y+ct}, v50, v{acc+2}
            v_fmac_f32 v{Y+ct}, v51, v{acc+3}
            """)
        self.store_y(Y, "s38", "s39", 16)
        self.stamp(2)

    def role_bh1(self):
        self.role = "bh1"
        a = self.a
        if "BH1" not in self.en: return
        self.srd(12, P_WUK, 512 * 8192)
        a(f"""
        s_sub_u32 s33, s2, 128               ; 2h+cf
        s_lshr_b32 s36, s33, 1
        s_lshl_b32 s37, s36, 8               ; h*256
        s_and_b32 s38, s33, 1
        s_lshl_b32 s38, s38, 2
        s_add_u32 s38, s38, s3
        s_lshl_b32 s38, s38, 17              ; (64cf+16sw)*8192
        s_add_u32 s37, s37, s38
        s_lshl_b32 s35, s3, 14
        v_xor_b32 v5, v1, v2
        v_lshlrev_b32 v5, 4, v5
        v_lshl_add_u32 v8, v1, 13, v5
        v_xor_b32 v9, 64, v8
        v_xor_b32 v10, 0x80, v8
        v_xor_b32 v11, 0xc0, v8
        """)
        for i in range(16):
            p, g, half = i >> 3, (i >> 1) & 3, i & 1
            a(f"s_add_u32 s34, s37, {(128 * g + 8 * p + 4 * half) * 8192}\ns_add_u32 m0, s35, {i * 1024}")
            self.dma(8 + g, "s[12:15]", "s34", 0, 32)
        a(f"""
        v_lshrrev_b32 v6, 2, v2
        v_lshlrev_b32 v6, 3, v6
        v_and_b32 v7, 3, v2
        v_add_u32 v6, v6, v7
        v_lshl_add_u32 v12, v6, 8, v5
        v_add_u32 v12, s35, v12
        v_xor_b32 v13, 64, v12
        v_xor_b32 v14, 0x80, v12
        v_xor_b32 v15, 0xc0, v12
        v_lshlrev_b32 v18, 7, v7
        v_lshl_add_u32 v18, v1, 4, v18       ; q_B voffset: b*128 + g*16
        s_lshl_b32 s39, s36, 11
        s_add_u32 s39, s39, {WS_T1S}
        v_lshlrev_b32 v19, 9, v7             ; out: b*512 + p*64 + g*16
        v_bfe_u32 v6, v0, 2, 1
        v_lshl_add_u32 v19, v6, 6, v19
        v_lshl_add_u32 v19, v1, 4, v19
        v_cmp_eq_u32 s[42:43], 1, v6
        s_lshl_b32 s40, s33, 11
        s_lshl_b32 s41, s3, 7
        s_add_u32 s40, s40, s41
        s_add_u32 s40, s40, {WS_QABS}
        s_lshl_b32 s41, s36, 1
        v_and_b32 v20, 1, v0
        v_add_u32 v20, s41, v20
        """)
        self.gate(self.o.gbh1, 16)
        self.flag_wg(20)
        self.get_tag(16)
        self.check_flags(20, 16)
        a("s_waitcnt vmcnt(0)")
        W = 64; ACC = 40; Q = 24
        for T in range(4):
            p, half = T >> 1, T & 1
            for k in range(4):
                a(f"ds_read_b128 {vr(W + 16*T + 4*k)}, v{12+k} offset:{(32*p + 4*half) * 256}")
            if T == 2: a("s_waitcnt lgkmcnt(8)")
        self.stamp(0)
        self.fpoll([f"buffer_load_dwordx4 {vr(Q + 4*k)}, v18, s[4:7], s39 offen offset:{(k >> 1) * 1024 + (k & 1) * 64} sc1" for k in range(4)], range(Q, Q + 16), 16, depth=2)
        self.stamp(1)
        a("s_waitcnt lgkmcnt(0)")
        for k in range(4):
            for T in range(4):
                acc = ACC + 4 * T
                a(f"{MF} {vr(acc)}, {vr(W + 16*T + 4*k)}, {vr(Q + 4*k)}, {'0' if k == 0 else vr(acc)}")
        for w in range(8): a(f"v_cvt_pk_bf16_f32 v{56+w}, v{ACC+2*w}, v{ACC+2*w+1}")
        for w in range(4): a(f"v_cndmask_b32 v{56+w}, v{56+w}, v{60+w}, s[42:43]")
        self.sanitize(range(56, 60))
        a("""
        s_mov_b32 exec_lo, 0x00ff00ff
        s_mov_b32 exec_hi, 0x00ff00ff
        buffer_store_dwordx4 v[56:59], v19, s[4:7], s40 offen sc1
        s_mov_b64 exec, -1
        """)
        self.gate(4, 16)
        self.stamp(2)

    def role_bh2(self):
        self.role = "bh2"
        a = self.a
        if "BH2" not in self.en: return
        self.srd(12, P_WUV, 512 * 8192)
        self.srd(16, P_BWO, 4096 * 1152)
        a(f"""
        s_and_b32 s33, s2, 31
        s_lshl_b32 s34, s33, 8
        s_lshl_b32 s35, s3, 19
        s_add_u32 s34, s34, s35
        s_lshl_b32 s35, s3, 14
        v_lshlrev_b32 v5, 1, v1
        v_xor_b32 v5, v5, v2
        v_lshlrev_b32 v5, 4, v5
        v_lshl_add_u32 v5, v1, 13, v5
        v_xor_b32 v6, 0x80, v5
        """)
        for i in range(16):
            a("s_mov_b32 m0, s35")
            self.dma(5 + (i & 1), "s[12:15]", "s34", 0, self.o.DB)
            if i != 15: a("s_add_u32 s34, s34, 32768\ns_add_u32 s35, s35, 1024")
        a(f"""
        v_lshrrev_b32 v10, 2, v0
        v_and_b32 v11, 7, v10
        v_xor_b32 v11, s3, v11
        v_lshlrev_b32 v11, 5, v11
        v_lshl_add_u32 v11, v10, 8, v11
        v_and_b32 v10, 3, v0
        v_lshl_add_u32 v8, v10, 3, v11
        v_add_u32 v9, 0x10000, v8
        s_waitcnt vmcnt(0)
        s_barrier
        """)
        WV = 192
        for s in range(16):
            off = s * 8192; base = 9 if off >> 16 else 8; off &= 0xffff
            r = WV + 4 * s
            a(f"ds_read_b64_tr_b16 v[{r}:{r+1}], v{base} offset:{off}")
            a(f"ds_read_b64_tr_b16 v[{r+2}:{r+3}], v{base} offset:{off + 4096}")
            if s % 4 == 3: a("s_waitcnt lgkmcnt(7)")
        a("s_waitcnt lgkmcnt(0)\ns_barrier")
        self.stamp(0, 20)
        a(f"""
        s_mul_i32 s36, s33, {128 * 1152}
        s_mul_i32 s37, s3, {18 * 1024}
        s_add_u32 s36, s36, s37
        """)
        for i in range(18):
            if i % 2 == 0: a("s_mov_b32 m0, s37")
            self.dma(4, "s[16:19]", "s36", (i % 2) * 1024, self.o.DB)
            if i % 2 == 1: a("s_add_u32 s36, s36, 2048\ns_add_u32 s37, s37, 2048")
        a(f"""
        v_lshlrev_b32 v5, 3, v1
        v_bfe_u32 v8, v0, 2, 2
        v_add_u32 v5, v5, v8
        v_mul_u32_u24 v5, 1152, v5
        v_and_b32 v8, 3, v0
        v_lshl_add_u32 v5, v8, 3, v5
        s_and_b32 s39, s3, 3
        s_lshl_b32 s39, s39, 5
        s_add_u32 s39, s39, 1024
        v_add_u32 v10, s39, v5
        s_lshl_b32 s39, s3, 7
        v_add_u32 v5, s39, v5
        v_add_u32 v9, {64 * 1152}, v5
        v_add_u32 v11, {64 * 1152}, v10
        s_waitcnt vmcnt(0)
        s_barrier
        """)
        WO = 112
        for ct in range(5):
            for j in range(4):
                r = WO + 16 * ct + 4 * j
                if ct < 4: base = 5 if j < 2 else 9; off = ct * 32
                else: base = 10 if j < 2 else 11; off = 0
                off += (j & 1) * 32 * 1152
                a(f"ds_read_b64_tr_b16 v[{r}:{r+1}], v{base} offset:{off}")
                a(f"ds_read_b64_tr_b16 v[{r+2}:{r+3}], v{base} offset:{off + 4 * 1152}")
            a("s_waitcnt lgkmcnt(7)")
        CTXC = L_SM; CST = 1088
        CTX = L_SM + 8 * CST; XST = 272
        a(f"""
        s_lshr_b32 s40, s3, 1                ; b
        s_lshl_b32 s36, s40, 4
        s_add_u32 s36, s36, 64
        v_add_u32 v6, s36, v2
        v_lshlrev_b32 v5, 10, v6
        s_lshl_b32 s36, s33, 3
        s_add_u32 s36, s36, {WS_T1S + 512}
        s_lshl_b32 s37, s3, 18               ; (16b + 8half) * 32768
        s_lshl_b32 s39, s33, 10
        s_add_u32 s37, s37, s39
        s_add_u32 s37, s37, {WS_BP}
        s_mul_i32 s39, s3, {CST}
        s_add_u32 s39, s39, {CTXC}
        v_add_u32 v8, s39, v4
        v_and_b32 v9, 3, v2
        v_lshlrev_b32 v9, 1, v9
        v_bfe_u32 v10, v0, 2, 1
        v_add_u32 v9, v9, v10
        v_mul_u32_u24 v9, {CST}, v9
        v_lshl_add_u32 v9, v1, 4, v9
        v_add_u32 v9, {CTXC}, v9
        v_and_b32 v10, 3, v2
        v_mul_u32_u24 v10, {XST}, v10
        v_lshl_add_u32 v10, v1, 3, v10
        s_lshl_b32 s39, s3, 5
        s_add_u32 s39, s39, {CTX}
        v_add_u32 v10, s39, v10
        v_lshrrev_b32 v11, 2, v2
        v_mul_u32_u24 v11, {XST}, v11
        v_lshl_add_u32 v11, v1, 4, v11
        v_add_u32 v11, {CTX}, v11
        s_mul_i32 s38, s33, 9216
        s_add_u32 s38, s38, {WS_YB}
        s_lshl_b32 s39, s3, 8
        s_add_u32 s39, s39, s38
        s_add_u32 s39, s39, 8192
        s_lshl_b32 s42, s3, 10
        s_add_u32 s38, s38, s42
        v_lshlrev_b32 v12, 2, v0
        s_and_b32 s42, s3, 1
        s_lshl_b32 s42, s42, 3
        """)
        self.get_tag(16)
        self.flag_wg(6)
        self.check_flags(6, 16)
        self.stamp(1, 20)
        a("s_mov_b64 exec, 0xffff")
        self.poll(["buffer_load_dwordx2 v[18:19], v5, s[4:7], s36 offen sc1"], [18, 19], 16, sleep=2)
        G = 48
        for s in range(8):
            a(f"buffer_load_dwordx4 {vr(G + 4*s)}, v4, s[4:7], s37 offen sc1\ns_add_u32 s37, s37, 32768")
        self.stamp(2, 24)
        a("v_mov_b32 v20, v18")
        for d in ("quad_perm:[1,0,3,2]", "quad_perm:[2,3,0,1]", "row_ror:4", "row_ror:8"):
            a(f"v_max_f32_dpp v20, v20, v20 {d} {DPPM}")
        a("v_sub_f32 v21, v18, v20\nv_exp_f32 v21, v21\nv_mul_f32 v22, v21, v19")
        for d in ("quad_perm:[1,0,3,2]", "quad_perm:[2,3,0,1]", "row_ror:4", "row_ror:8"):
            a(f"v_add_f32_dpp v22, v22, v22 {d} {DPPM}")
        a("v_rcp_f32 v22, v22\nv_mul_f32 v21, v21, v22")
        AC = 24
        ext = 1 if self.stamps else 0
        for s in range(8):
            r = G + 4 * s
            a(f"v_readlane_b32 s41, v21, s42\ns_add_u32 s42, s42, 1")
            a(f"s_waitcnt vmcnt({7 - s + ext})")
            for w in range(4):
                a(f"v_lshlrev_b32 v{32+2*w}, 16, v{r+w}\nv_and_b32 v{33+2*w}, 0xffff0000, v{r+w}")
            for e in range(8):
                if s == 0: a(f"v_mul_f32 v{AC+e}, s41, v{32+e}")
                else: a(f"v_fmac_f32 v{AC+e}, s41, v{32+e}")
        for w in range(4): a(f"v_cvt_pk_bf16_f32 v{32+w}, v{AC+2*w}, v{AC+2*w+1}")
        a("ds_write_b128 v8, v[32:35]")
        self.stamp(3, 20)
        a("s_waitcnt lgkmcnt(0)\ns_barrier")
        for s in range(12):
            a(f"ds_read_b128 {vr(G + 4*s)}, v9 offset:{64*s}")
        for s in range(16):
            if s + 12 < 16: a(f"ds_read_b128 {vr(G + 4*(s+12))}, v9 offset:{64*(s+12)}")
            a(f"s_waitcnt lgkmcnt({min(12, 15 - s)})")
            acc = 24 + 4 * (s & 1)
            a(f"{MF} {vr(acc)}, {vr(WV + 4*s)}, {vr(G + 4*s)}, {'0' if s < 2 else vr(acc)}")
        for r in range(4): a(f"v_add_f32 v{24+r}, v{24+r}, v{28+r}")
        for r in range(4): a(f"v_add_f32_dpp v{24+r}, v{24+r}, v{24+r} row_ror:4 {DPPM}")
        a("""
        v_cvt_pk_bf16_f32 v32, v24, v25
        v_cvt_pk_bf16_f32 v33, v26, v27
        ds_write_b64 v10, v[32:33]
        s_waitcnt lgkmcnt(0)
        s_barrier
        """)
        O = 24
        for j in range(4): a(f"ds_read_b128 {vr(O + 4*j)}, v11 offset:{64*j}")
        ACC = 64
        for j in range(4):
            a(f"s_waitcnt lgkmcnt({3 - j})")
            for ct in range(5):
                acc = ACC + 4 * ct
                a(f"{MF} {vr(acc)}, {vr(O + 4*j)}, {vr(WO + 16*ct + 4*j)}, {'0' if j == 0 else vr(acc)}")
        Y = 48
        for ct in range(5): a(f"v_min_u32 v{Y+ct}, -2, v{ACC + 4*ct}")
        sk = a.new_label(self.L("L_bh2s"))
        a(f"""
        buffer_store_dwordx4 {vr(Y)}, v4, s[4:7], s38 offen sc1
        s_cmp_ge_u32 s3, 4
        s_cbranch_scc1 {sk}
        buffer_store_dword v{Y+4}, v12, s[4:7], s39 offen sc1
        {sk}:
        """)
        self.stamp(4, 20)

    def role_a(self):
        self.role = "a"
        a = self.a; L = self.L
        a("s_sub_u32 s44, s3, 4")
        if "CLR" in self.en and self.fused: self.clear_finish()
        a(f"""
        s_lshr_b32 s28, s2, 5
        s_cmp_eq_u32 s28, 6
        s_cbranch_scc1 {L('L_bh2')}
        s_lshr_b32 s28, s2, 6
        s_cmp_eq_u32 s28, 1
        s_cbranch_scc1 {L('L_ba_a')}
        """)
        a.label(L("L_amain"))
        if "A" in self.en:
            self.a_main()
        elif "RED" in self.en:
            a(f"s_cmp_lg_u32 s44, 0\ns_cbranch_scc1 {L('L_fin')}")
        if "RED" in self.en:
            self.reducer()

    def a_main(self):
        a = self.a; L = self.L; D = self.o.D
        assert D <= 16
        self.srd(12, P_K, 64 << 20); self.srd(16, P_V, 64 << 20)
        a(f"""
        s_lshl_b32 s49, s45, 20
        s_mul_i32 s33, s45, {self.o.rot}      ; rotation
        s_cmp_lt_u32 s45, 32
        s_cselect_b32 s32, 12, 16
        s_cselect_b32 s34, 1, 0
        s_lshl_b32 s30, s46, 2
        s_add_u32 s30, s30, s44
        s_add_u32 s30, s30, s33
        s_add_u32 s31, s30, s32
        s_and_b32 s30, s30, 127
        s_and_b32 s31, s31, 127
        s_lshl_b32 s30, s30, 13
        s_lshl_b32 s31, s31, 13
        s_add_u32 s30, s30, s49
        s_add_u32 s31, s31, s49
        s_lshl_b32 s32, s32, 1
        s_add_u32 s33, s33, s32
        s_sub_u32 s32, 128, s32
        s_lshl_b32 s48, s45, 12
        s_add_u32 s48, s48, {WS_OP + 768}
        s_mov_b32 s50, 0x05040100
        s_mov_b32 s51, 0x07060302
        v_lshlrev_b32 v4, 4, v0
        v_mov_b32 v1, v4
        v_add_u32 v2, 4096, v4
        v_mov_b32 v3, {CSC}
        v_mov_b32 v4, {NEGMAX}
        v_mov_b32 v5, 0
        v_and_b32 v6, 7, v0
        v_lshlrev_b32 v6, 4, v6
        v_and_b32 v7, 1, v0
        v_lshl_add_u32 v6, v7, 11, v6
        v_bfe_u32 v28, v0, 3, 1
        v_lshl_add_u32 v6, v28, 10, v6
        v_lshl_add_u32 v30, v7, 1, v28        ; 2*(n&1) + ch
        v_xor_b32 v7, 16, v6
        s_and_b32 s52, s45, 15
        s_lshl_b32 s53, s52, 2
        s_add_u32 s53, s53, 64
        v_add_u32 v30, s53, v30
        s_add_u32 s53, s48, 128
        v_mov_b32 v31, s53
        v_cmp_lt_u32 vcc, 31, v0
        s_lshl_b32 s52, s52, 12
        s_lshr_b32 s53, s45, 4
        s_lshl_b32 s53, s53, 7
        s_add_u32 s52, s52, s53
        s_add_u32 s52, s52, {WS_T1S + 64 * 1024}
        v_mov_b32 v226, 0
        v_mov_b32 v227, {L_CNT + 4 * 10}
        """)
        self.flag_wg(30)
        a("v_cndmask_b32 v30, v30, v31, vcc")
        for r in range(32, 64): a(f"v_mov_b32 v{r}, 0")
        a(f"""
        v_lshrrev_b32 v228, 4, v0
        v_and_b32 v229, 1, v0
        v_lshl_add_u32 v228, v228, 1, v229
        v_lshlrev_b32 v228, 4, v228
        s_lshl_b32 s53, s44, 10
        s_add_u32 s53, s53, {L_ACOMB}
        v_add_u32 v228, s53, v228
        s_lshl_b32 s53, s44, 4
        s_add_u32 s53, s53, {L_AST}
        v_lshlrev_b32 v229, 3, v229
        v_add_u32 v230, s53, v229
        v_add_u32 v231, {L_AST}, v229
        v_bfe_u32 v232, v0, 3, 2
        v_and_b32 v233, 7, v0
        v_lshlrev_b32 v233, 4, v233
        v_lshl_add_u32 v233, v232, 8, v233
        v_add_u32 v233, {L_ACOMB}, v233
        v_and_b32 v234, 1, v0
        v_lshlrev_b32 v234, 8, v234
        v_lshl_add_u32 v234, v232, 6, v234
        v_bfe_u32 v232, v0, 1, 2
        v_lshl_add_u32 v234, v232, 4, v234   ; h*256 + j*64 + g'*16
        v_cndmask_b32 v234, v234, v1, vcc
        v_mov_b32 v236, {L_CNT + 4 * 15}
        v_mov_b32 v237, 1
        s_lshl_b32 s54, s47, 10
        s_add_u32 s54, s54, {WS_OP}
        """)
        KA, VA, KB, VB = 96, 128, 160, 192
        def issue(srd, base, e, soff, d=None):
            a(f"s_waitcnt vmcnt({(d or D) - 1})")
            a(f"buffer_load_dwordx4 {vr(base + 4*e)}, v{1 if e < 4 else 2}, {srd}, {soff} offen offset:{(e & 3) * 1024} nt")
        def issues(srd, base, es, soff):
            if self.o.Dlo == D:
                for e in es: issue(srd, base, e, soff)
                return
            lo = a.new_label(L("L_ilo")); en = a.new_label(L("L_ien"))
            a(f"s_cmp_lg_u32 s34, 0\ns_cbranch_scc1 {lo}")
            for e in es: issue(srd, base, e, soff)
            a(f"s_branch {en}\n{lo}:")
            for e in es: issue(srd, base, e, soff, self.o.Dlo)
            a.label(en)
        def grab():
            a(f"""
            v_mov_b32 v224, 1
            s_mov_b64 exec, 1
            buffer_atomic_add v224, v226, s[4:7], s48 offen sc0 sc1
            s_mov_b64 exec, -1
            """)
        def gate_wait():
            if not self.fused: return
            lab = a.new_label(L("L_gw"))
            a(f"""
            s_mov_b32 s29, {SPIN * 8}
            {lab}:
            ds_read_b32 v225, v227
            s_sub_u32 s29, s29, 1
            s_cbranch_scc1 {lab}_x
            s_waitcnt lgkmcnt(0)
            v_readfirstlane_b32 s28, v225
            s_cmp_gt_u32 s28, s44
            s_cbranch_scc1 {lab}_x
            s_sleep 1
            s_branch {lab}
            {lab}_x:
            s_waitcnt lgkmcnt(0)
            """)
        def ring(d):
            for e in range(8): issue("s[12:15]", KA, e, "s30", d)
            for e in range(8): issue("s[16:19]", VA, e, "s30", d)
            grab()
            for e in range(8): issue("s[12:15]", KB, e, "s31", d)
            for e in range(8): issue("s[16:19]", VB, e, "s31", d)
        def getq(sl):
            self.poll(["buffer_load_dwordx4 v[8:11], v6, s[4:7], s52 offen sc1", "buffer_load_dwordx4 v[12:15], v7, s[4:7], s52 offen sc1"], range(8, 16), 28, sleep=sl)
        if self.fused:
            l1 = a.new_label(L("L_ord1")); l2 = a.new_label(L("L_ord2")); l3 = a.new_label(L("L_ord3")); l4 = a.new_label(L("L_ord4"))
            a(f"""
            s_lshr_b32 s28, s2, 6
            s_cmp_lg_u32 s28, 1
            s_cbranch_scc1 {l3}
            v_and_b32 v28, 15, v0
            v_and_b32 v29, 1, v0
            v_lshlrev_b32 v28, 4, v28
            v_lshl_add_u32 v28, v29, 8, v28
            v_add_u32 v28, {L_QA}, v28
            v_xor_b32 v29, 16, v28
            ds_read_b128 v[8:11], v28
            ds_read_b128 v[12:15], v29
            s_branch {l4}
            {l3}:
            """)
            self.get_tag(28)
            self.check_flags(30, 28)
            a(f"s_cmp_lg_u32 s46, 2\ns_cbranch_scc1 {l1}")
            getq(16)
            self.stamp(9)
            gate_wait()
            a.label(l4)
            self.stamp(10)
            ring(D)
            a(f"s_waitcnt lgkmcnt(0)\ns_branch {l2}")
            a.label(l1)
            gate_wait()
            ring(self.o.D0)
            self.stamp(9)
            getq(4)
            self.stamp(10)
            a.label(l2)
        else:
            ring(D); getq(4)
        U = 16; P = 24; ACC = 32; T = 64
        def body(K, V, mode):
            if mode == "e1": a("s_waitcnt vmcnt(8)")
            for half in range(2):
                es = range(4 * half, 4 * half + 4)
                for e in es: a(f"v_dot2_f32_bf16 v{U+e}, v{K+4*e}, v8, 0")
                for w in range(1, 4):
                    for e in es: a(f"v_dot2c_f32_bf16 v{U+e}, v{K+4*e+w}, v{8+w}")
                for w in range(4):
                    for e in es: a(f"v_dot2c_f32_bf16_dpp v{U+e}, v{K+4*e+w}, v{12+w} quad_perm:[1,0,3,2] {DPPM}")
                if mode == "loop":
                    if half == 0: grab()
                    issues("s[12:15]", K, es, "s30")
            for d in ("quad_perm:[2,3,0,1]", "row_ror:4", "row_ror:8"):
                for e in range(8): a(f"v_add_f32_dpp v{U+e}, v{U+e}, v{U+e} {d} {DPPM}")
            for e in range(8): a(f"v_mul_f32 v{U+e}, v{U+e}, v3")
            a(f"""
            v_max3_f32 v28, v{U}, v{U+1}, v{U+2}
            v_max3_f32 v28, v28, v{U+3}, v{U+4}
            v_max3_f32 v28, v28, v{U+5}, v{U+6}
            v_max3_f32 v28, v28, v{U+7}, v4
            """)
            self.xg_reduce("v_max_f32", 28, 29)
            a("v_sub_f32 v29, v4, v28")
            for e in range(8): a(f"v_sub_f32 v{U+e}, v{U+e}, v28")
            a("v_exp_f32 v29, v29")
            for e in range(8): a(f"v_exp_f32 v{U+e}, v{U+e}")
            a(f"""
            v_mov_b32 v4, v28
            v_cmp_neq_f32 vcc, 1.0, v29
            v_fma_f32 v5, v5, v29, v{U}
            v_add_f32 v30, v{U+1}, v{U+2}
            v_add_f32 v31, v{U+3}, v{U+4}
            v_add_f32 v5, v5, v{U+5}
            v_add_f32 v30, v30, v{U+6}
            v_add_f32 v31, v31, v{U+7}
            v_add_f32 v5, v5, v30
            v_add_f32 v5, v5, v31
            """)
            for w in range(4): a(f"v_cvt_pk_bf16_f32 v{P+w}, v{U+2*w}, v{U+2*w+1}")
            sk = a.new_label(L("L_nors"))
            a(f"s_cbranch_vccz {sk}")
            for r in range(32): a(f"v_mul_f32 v{ACC+r}, v29, v{ACC+r}")
            a.label(sk)
            if mode == "e1": self.xg_reduce("v_add_f32", 5, 29)
            for q in range(4):
                if mode == "e1": a(f"s_waitcnt vmcnt({6 - 2*q})")
                for i in range(8):
                    a(f"v_perm_b32 v{T+4*i+q}, v{V + 4*(2*q+1) + (i >> 1)}, v{V + 4*(2*q) + (i >> 1)}, s{50 + (i & 1)}")
                if mode == "loop":
                    issues("s[16:19]", V, (2*q, 2*q+1), "s30")
            for i in range(8):
                a(f"{MF} {vr(ACC+4*i)}, {vr(T+4*i)}, {vr(P)}, {vr(ACC+4*i)}")
        def head(exit_label):
            a(f"""
            s_waitcnt vmcnt(16)
            v_readfirstlane_b32 s30, v224
            s_add_u32 s28, s30, 1
            s_cmp_ge_u32 s28, s32
            s_cbranch_scc1 {exit_label}
            s_add_u32 s30, s28, s33
            s_and_b32 s30, s30, 127
            s_lshl_b32 s30, s30, 13
            s_add_u32 s30, s30, s49
            """)
        lp = a.new_label(L("L_aloop")); eA = a.new_label(L("L_aeA")); eB = a.new_label(L("L_aeB")); dn = a.new_label(L("L_adone"))
        a.label(lp)
        head(eA); body(KA, VA, "loop")
        head(eB); body(KB, VB, "loop")
        a(f"s_branch {lp}")
        a.label(eA)
        body(KA, VA, "e0"); body(KB, VB, "e1")
        a(f"s_branch {dn}")
        a.label(eB)
        body(KB, VB, "e0"); body(KA, VA, "e1")
        a.label(dn)
        a("s_mov_b64 exec, 3\nds_write_b64 v230, v[4:5]")
        a("s_mov_b32 exec_lo, 0x00030003\ns_mov_b32 exec_hi, 0x00030003")
        for i in range(8): a(f"ds_write_b128 v228, {vr(ACC+4*i)} offset:{128*i}")
        nc = a.new_label(L("L_nocomb"))
        a(f"""
        s_mov_b64 exec, 1
        ds_add_rtn_u32 v238, v236, v237
        s_mov_b64 exec, -1
        s_waitcnt lgkmcnt(0)
        v_readfirstlane_b32 s55, v238
        s_cmp_lg_u32 s55, 3
        s_cbranch_scc1 {nc}
        """)
        for w in range(4): a(f"ds_read_b64 v[{16+2*w}:{17+2*w}], v231 offset:{16*w}")
        for w in range(4):
            a(f"ds_read_b128 {vr(32+8*w)}, v233 offset:{1024*w}\nds_read_b128 {vr(36+8*w)}, v233 offset:{1024*w+128}")
        a(f"""
        s_waitcnt lgkmcnt(8)
        v_max3_f32 v24, v16, v18, v20
        v_max_f32 v24, v24, v22
        v_sub_f32 v16, v16, v24
        v_sub_f32 v18, v18, v24
        v_sub_f32 v20, v20, v24
        v_sub_f32 v22, v22, v24
        v_exp_f32 v16, v16
        v_exp_f32 v18, v18
        v_exp_f32 v20, v20
        v_exp_f32 v22, v22
        v_mul_f32 v25, v16, v17
        v_fmac_f32 v25, v18, v19
        v_fmac_f32 v25, v20, v21
        v_fmac_f32 v25, v22, v23
        s_waitcnt lgkmcnt(6)
        """)
        for e in range(8): a(f"v_mul_f32 v{64+e}, v16, v{32+e}")
        for w in range(1, 4):
            a(f"s_waitcnt lgkmcnt({6 - 2*w})")
            for e in range(8): a(f"v_fmac_f32 v{64+e}, v{16+2*w}, v{32+8*w+e}")
        for w in range(4): a(f"v_cvt_pk_bf16_f32 v{72+w}, v{64+2*w}, v{65+2*w}")
        a(f"""
        v_mov_b32_dpp v72, v24 quad_perm:[0,0,0,0] row_mask:0xc bank_mask:0xf
        v_mov_b32_dpp v73, v25 quad_perm:[0,0,0,0] row_mask:0xc bank_mask:0xf
        v_mov_b32_dpp v74, v24 quad_perm:[1,1,1,1] row_mask:0xc bank_mask:0xf
        v_mov_b32_dpp v75, v25 quad_perm:[1,1,1,1] row_mask:0xc bank_mask:0xf
        """)
        self.sanitize([72, 73, 74, 75])
        a(f"""
        s_mov_b32 exec_hi, 0xff
        buffer_store_dwordx4 v[72:75], v234, s[4:7], s54 offen sc1
        s_mov_b64 exec, -1
        """)
        self.stamp(11)
        a(f"s_branch {L('L_fin')}")
        a.label(nc)
        a(f"s_cmp_lg_u32 s55, 0\ns_cbranch_scc1 {L('L_fin')}")

    def reducer(self):
        a = self.a; L = self.L
        self.srd(12, P_OUT, 4608 * 2)
        t2 = a.new_label(L("L_rt2")); tj = a.new_label(L("L_rtj"))
        a(f"""
        s_cmp_ge_u32 s2, 72
        s_cbranch_scc1 {L('L_fin')}
        s_cmp_ge_u32 s2, 36
        s_cselect_b32 s56, 36, 0
        s_cselect_b32 s57, {WS_YB - WS_YA}, 0
        s_cselect_b32 s60, 1152, 0
        s_movk_i32 s61, 224
        s_cselect_b32 s61, 192, s61
        s_sub_u32 s56, s2, s56               ; r
        s_add_u32 s57, s57, {WS_YA}
        s_mul_i32 s58, s56, 7282
        s_lshr_b32 s58, s58, 16              ; b = r/9
        s_mul_i32 s59, s58, 9
        s_sub_u32 s59, s56, s59              ; grp
        s_mul_i32 s62, s58, 2304
        s_add_u32 s60, s60, s62
        s_lshl_b32 s62, s59, 7
        s_add_u32 s60, s60, s62
        s_lshl_b32 s62, s59, 10
        s_add_u32 s57, s57, s62
        v_lshrrev_b32 v1, 4, v0
        v_and_b32 v2, 15, v0
        v_mul_u32_u24 v3, 9216, v1
        v_and_b32 v6, 31, v0
        v_add_u32 v6, s61, v6
        s_cmp_eq_u32 s59, 8
        s_cbranch_scc1 {t2}
        s_lshl_b32 s62, s58, 8
        v_lshl_add_u32 v3, v2, 4, v3
        v_lshlrev_b32 v5, 1, v0
        s_branch {tj}
        {t2}:
        s_lshl_b32 s62, s58, 6
        v_lshrrev_b32 v4, 2, v2
        v_lshl_add_u32 v3, v4, 8, v3
        v_and_b32 v4, 3, v2
        v_lshl_add_u32 v3, v4, 4, v3
        v_lshl_add_u32 v5, v2, 2, v1
        v_lshlrev_b32 v5, 1, v5
        {tj}:
        s_add_u32 s57, s57, s62
        """)
        for k in range(8): a(f"s_add_u32 s{16+k}, s57, {k * 4 * 9216}")
        self.flag_wg(6)
        self.check_flags(6, 44)
        self.stamp(12)
        self.fpoll([f"buffer_load_dwordx4 {vr(8+4*k)}, v3, s[4:7], s{16+k} offen sc1" for k in range(8)], range(8, 40), 44, depth=self.o.pd)
        for c in range(16): a(f"v_add_f32 v{48+c}, v{8+c}, v{24+c}")
        for st in (8, 4):
            for c in range(st): a(f"v_add_f32 v{48+c}, v{48+c}, v{48+st+c}")
        a("""
        v_permlane32_swap_b32 v48, v50
        v_permlane32_swap_b32 v49, v51
        v_add_f32 v48, v48, v50
        v_add_f32 v49, v49, v51
        v_permlane16_swap_b32 v48, v49
        v_add_f32 v48, v48, v49
        v_cvt_pk_bf16_f32 v48, v48, v48
        buffer_store_short v48, v5, s[12:15], s60 offen
        """)
        self.stamp(14)
        if self.fused:
            a(f"""
            s_cmp_lg_u32 s2, 0
            s_cbranch_scc1 {L('L_fin')}
            v_mov_b32 v52, s{S_TAG}
            v_mov_b32 v53, 0
            s_mov_b64 exec, 1
            buffer_store_dword v52, v53, s[4:7], 0 offen sc1
            s_mov_b64 exec, -1
            """)

def emit(fname, o):
    if o.mode == "fused":
        g = Gen({"CLR", "PQ", "AT", "BH1", "BH2", "BA", "A", "RED"}, True, o)
        a = g.build()
        txt = kernel_file([(NAME + "_kernel", (256, 1, 1), (512, 1, 1), LDS_SIZE)], [(NAME + "_kernel", a.text(), 256, 102, 256)])
    else:
        phases = [("k0", {"CLR"}), ("k1", {"PQ"}), ("k2", {"BH1", "A"}), ("k3", {"BA", "AT"}), ("k4", {"BH2"}), ("k5", {"RED"})]
        ks = []; ls = []
        for nm, en in phases:
            g = Gen(en, False, o, tag="_" + nm)
            a = g.build()
            ks.append((nm + "_kernel", a.text(), 256, 102, 256)); ls.append((nm + "_kernel", (256, 1, 1), (512, 1, 1), LDS_SIZE))
        txt = kernel_file(ls, ks)
    open(fname, "w").write(txt)

if __name__ == "__main__":
    import argparse
    ap = argparse.ArgumentParser()
    ap.add_argument("out"); ap.add_argument("--mode", default="fused"); ap.add_argument("-D", type=int, default=10); ap.add_argument("--DS", type=int, default=16)
    ap.add_argument("--stamps", action="store_true"); ap.add_argument("--D0", type=int, default=10); ap.add_argument("--g", default="2,2,4"); ap.add_argument("--gat", type=int, default=0); ap.add_argument("--gbh1", type=int, default=0); ap.add_argument("--gbh2", type=int, default=0); ap.add_argument("--pd", type=int, default=2); ap.add_argument("--dbg", action="store_true"); ap.add_argument("--t2e", type=int, default=0); ap.add_argument("--rot", type=int, default=0); ap.add_argument("--Dlo", type=int, default=0); ap.add_argument("--gpq", type=int, default=0); ap.add_argument("--DC", type=int, default=8); ap.add_argument("--DB", type=int, default=8); ap.add_argument("--atw", type=int, default=4); ap.add_argument("--cap", type=int, default=1000); ap.add_argument("--qfirst", type=int, default=192); ap.add_argument("--cheap", type=int, default=1); ap.add_argument("--sprio", type=int, default=2); ap.add_argument("--bh2hold", type=int, default=0); ap.add_argument("--sh1", default=""); ap.add_argument("--sh2", default=""); ap.add_argument("--NC0", type=int, default=16)
    x = ap.parse_args()
    x.Dlo = x.Dlo or x.D
    x.g = [int(v) for v in x.g.split(",")]
    if x.sh1: SH1 = tuple(int(v) for v in x.sh1.split(","))
    if x.sh2: SH2 = tuple(int(v) for v in x.sh2.split(","))
    assert sum(SH1) == 128 and sum(SH2) == 128
    emit(x.out, x)
```

```python
import sys, math, struct
from asmlib import *

WS_EP   = 0x00000
WS_OP   = 0x10000
WS_T1S  = 0x50000
WS_QABS = 0x70000
WS_FLG  = 0x08000
WS_YA   = 0x90000
WS_YB   = 0xD8000
WS_BP   = 0x200000
WS_SIZE = 0x10000000
STAMPOFF = 200 << 20
PH_OFF = 201 << 20
L_PQ    = 73728
L_P     = 131072
L_MX    = 139264
L_ACOMB = 147456
L_AST   = 151552
L_CNT   = 151616
L_SM    = 151680
L_QA    = L_SM + 6400
LDS_SIZE = 163840
OOB = 0x40000000
NEGMAX = 0xFF7FFFFF
CSC = struct.unpack("<I", struct.pack("<f", (128 ** -0.5) * math.log2(math.e)))[0]
DPPM = "row_mask:0xf bank_mask:0xf"
SPIN = 200000
P_AX, P_K, P_V, P_WQ, P_WO, P_BX, P_CKV, P_BWQ, P_WUK, P_WUV, P_BWO, P_OUT, P_DBG, P_WS = [64 + 2 * i for i in range(14)]
S_TAG = 63
NSPLIT_B = 16
SH1 = (30, 30, 45, 23)
SH2 = (26, 26, 41, 35)
def share(pair, t):
    sh = SH1 if pair < 32 else SH2
    u0 = sum(sh[:t])
    return 32 * u0, 32 * (u0 + sh[t])
def vr(b, n=4): return f"v[{b}:{b+n-1}]"
MF = "v_mfma_f32_16x16x32_bf16"

class Gen:
    def __init__(self, en, fused, opt, tag=""):
        self.a = Asm(); self.en = en; self.fused = fused; self.o = opt; self.stamps = opt.stamps and fused; self.tag = tag
        self.role = ""
        self.dbgmap = {("a", 8): 2, ("t1", 1): 3, ("bh1", 2): 4, ("t1", 7): 5, ("bh2", 4): 6, ("a", 11): 7, ("at", 2): 8, ("a", 14): 9}
    def L(self, s): return s + self.tag
    def srd(self, d, p, size):
        self.a(f"s_mov_b32 s{d}, s{p}\ns_mov_b32 s{d+1}, s{p+1}\ns_mov_b32 s{d+2}, {size}\ns_mov_b32 s{d+3}, 0x20000")
    def stamp(self, k, vt=250):
        if self.o.dbg and self.fused:
            slot = self.dbgmap.get((self.role, k))
            if slot is None: return
            self.a(f"""
            s_memrealtime s[92:93]
            s_mov_b32 s8, s{P_DBG}
            s_mov_b32 s9, s{P_DBG+1}
            s_mov_b32 s10, 256
            s_mov_b32 s11, 0x20000
            s_waitcnt lgkmcnt(0)
            v_mov_b32 v{vt}, s92
            v_mov_b32 v{vt+2}, 0
            s_mov_b64 s[96:97], exec
            s_mov_b64 exec, 1
            buffer_atomic_umax v{vt}, v{vt+2}, s[8:11], 0 offen offset:{4 * slot} sc1
            s_mov_b64 exec, s[96:97]
            """)
            return
        if not self.stamps: return
        self.a(f"""
        s_memrealtime s[92:93]
        s_lshl_b32 s94, s2, 7
        s_add_u32 s94, s94, {PH_OFF + 8 * k}
        s_waitcnt lgkmcnt(0)
        v_mov_b32 v{vt}, s92
        v_mov_b32 v{vt+1}, s93
        v_mov_b32 v{vt+2}, 0
        s_mov_b64 s[96:97], exec
        s_mov_b64 exec, 1
        buffer_store_dwordx2 v[{vt}:{vt+1}], v{vt+2}, s[4:7], s94 offen
        s_mov_b64 exec, s[96:97]
        """)
    def wait_lds(self, slot, target, vt, sleep=0):
        a = self.a; lab = a.new_label(self.L("L_wl"))
        a(f"""
        v_mov_b32 v{vt}, {L_CNT + 4 * slot}
        s_mov_b32 s29, {SPIN * 8}
        {lab}:
        ds_read_b32 v{vt+1}, v{vt}
        s_sub_u32 s29, s29, 1
        s_cbranch_scc1 {lab}_x
        s_waitcnt lgkmcnt(0)
        v_readfirstlane_b32 s28, v{vt+1}
        s_cmp_ge_u32 s28, {target}
        s_cbranch_scc1 {lab}_x
        """)
        if sleep: a(f"s_sleep {sleep}")
        a(f"s_branch {lab}\n{lab}_x:\ns_waitcnt lgkmcnt(0)")
    def sbar(self, k, vt):
        self.a(f"""
        s_waitcnt lgkmcnt(0)
        v_mov_b32 v{vt}, {L_CNT + 4 * k}
        v_mov_b32 v{vt+1}, 1
        s_mov_b64 exec, 1
        ds_add_u32 v{vt}, v{vt+1}
        s_mov_b64 exec, -1
        """)
        self.wait_lds(k, 4, vt)
    def signal(self, k, vt):
        if not self.fused: return
        self.a(f"""
        v_mov_b32 v{vt}, {L_CNT + 4 * k}
        v_mov_b32 v{vt+1}, 1
        s_mov_b64 exec, 1
        ds_add_u32 v{vt}, v{vt+1}
        s_mov_b64 exec, -1
        """)
    def get_tag(self, vt):
        if not self.fused: return
        self.wait_lds(12, 1, vt, 1)
        self.a(f"ds_read_b32 v{vt+1}, v{vt} offset:4\ns_waitcnt lgkmcnt(0)\nv_readfirstlane_b32 s{S_TAG}, v{vt+1}")
    def check_flags(self, voff, vt):
        if not self.fused: return
        a = self.a; lab = a.new_label(self.L("L_cf"))
        a(f"""
        s_mov_b32 s29, {SPIN}
        {lab}:
        buffer_load_dword v{vt+1}, v{voff}, s[4:7], 0 offen sc1
        s_sub_u32 s29, s29, 1
        s_cbranch_scc1 {lab}_x
        s_waitcnt vmcnt(0)
        v_cmp_ne_u32 vcc, s{S_TAG}, v{vt+1}
        s_cbranch_vccz {lab}_x
        s_mov_b64 exec, vcc
        s_sleep 4
        s_branch {lab}
        {lab}_x:
        s_mov_b64 exec, -1
        s_waitcnt vmcnt(0)
        """)
    def flag_wg(self, v):
        self.a(f"v_lshlrev_b32 v{v}, 7, v{v}\nv_add_u32 v{v}, {WS_FLG}, v{v}")
    def flag_aid(self, v):
        self.a(f"v_lshlrev_b32 v{v}, 10, v{v}\nv_add_u32 v{v}, {WS_OP + 896}, v{v}")
    def gate(self, val, vt):
        if not self.fused: return
        a = self.a; lab = a.new_label(self.L("L_gate"))
        a(f"""
        s_cmp_lg_u32 s3, 0
        s_cbranch_scc1 {lab}
        v_mov_b32 v{vt}, {L_CNT + 4 * 10}
        v_mov_b32 v{vt+1}, {val}
        ds_write_b32 v{vt}, v{vt+1}
        {lab}:
        """)
    def fetch_q(self, vb, gate_after_flags=False):
        a = self.a
        if "A" not in self.en: return
        a(f"""
        s_and_b32 s52, s45, 15
        s_lshl_b32 s53, s52, 2
        s_add_u32 s53, s53, 64
        v_bfe_u32 v{vb}, v0, 3, 2
        v_add_u32 v{vb+1}, s53, v{vb}
        """)
        self.flag_wg(vb + 1)
        a(f"""
        s_lshl_b32 s53, s45, 12
        s_add_u32 s53, s53, {WS_OP + 896}
        v_mov_b32 v{vb+2}, s53
        v_cmp_lt_u32 vcc, 31, v0
        v_cndmask_b32 v{vb+1}, v{vb+1}, v{vb+2}, vcc
        v_and_b32 v{vb+2}, 7, v0
        v_lshlrev_b32 v{vb+2}, 4, v{vb+2}
        v_lshl_add_u32 v{vb+2}, v{vb}, 10, v{vb+2}
        s_lshl_b32 s52, s52, 12
        s_lshr_b32 s53, s45, 4
        s_lshl_b32 s53, s53, 7
        s_add_u32 s52, s52, s53
        s_add_u32 s52, s52, {WS_T1S + 64 * 1024}
        v_lshlrev_b32 v{vb+3}, 4, v0
        v_add_u32 v{vb+3}, {L_QA}, v{vb+3}
        """)
        self.check_flags(vb + 1, vb + 8)
        if gate_after_flags and self.fused:
            a(f"v_mov_b32 v{vb+8}, {L_CNT + 4 * 10}\nv_mov_b32 v{vb+9}, 4\nds_write_b32 v{vb+8}, v{vb+9}")
        a("s_mov_b32 exec_hi, 0")
        self.poll([f"buffer_load_dwordx4 {vr(vb+4)}, v{vb+2}, s[4:7], s52 offen sc1"], range(vb + 4, vb + 8), vb + 8, sleep=2)
        a(f"""
        s_mov_b32 exec_hi, 0
        ds_write_b128 v{vb+3}, {vr(vb+4)}
        v_mov_b32 v{vb+8}, {L_CNT + 4 * 9}
        v_mov_b32 v{vb+9}, 1
        ds_write_b32 v{vb+8}, v{vb+9}
        s_mov_b64 exec, -1
        """)
    def maxchain(self, regs, vt):
        a = self.a
        rs = list(regs); cur = rs[0]; rest = rs[1:]
        while rest:
            if len(rest) >= 2:
                a(f"v_max3_u32 v{vt}, v{cur}, v{rest[0]}, v{rest[1]}"); rest = rest[2:]
            else:
                a(f"v_max_u32 v{vt}, v{cur}, v{rest[0]}"); rest = rest[1:]
            cur = vt
        a(f"v_cmp_eq_u32 vcc, -1, v{cur}")
        if self.o.nowait: a("s_mov_b64 vcc, 0")
    def fpoll(self, loads, regs, vt, depth=2, sleep=0, lsleep=0):
        a = self.a; lab = a.new_label(self.L("L_fp")); n = len(loads)
        a(f"s_mov_b32 s29, {SPIN}")
        for _ in range(depth - 1):
            for l in loads: a(l)
            if sleep: a(f"s_sleep {sleep}")
        a.label(lab)
        for l in loads: a(l)
        a(f"s_sub_u32 s29, s29, 1\ns_cbranch_scc1 {lab}_x\ns_waitcnt vmcnt({n * (depth - 1)})")
        self.maxchain(regs, vt)
        a(f"s_cbranch_vccz {lab}_x\ns_mov_b64 exec, vcc")
        if lsleep: a(f"s_sleep {lsleep}")
        a(f"s_branch {lab}\n{lab}_x:\ns_mov_b64 exec, -1")
    def poll(self, loads, regs, vt, sleep=4):
        a = self.a; lab = a.new_label(self.L("L_poll"))
        a(f"s_mov_b32 s29, {SPIN}\n{lab}:")
        for l in loads: a(l)
        a(f"s_sub_u32 s29, s29, 1\ns_cbranch_scc1 {lab}_x\ns_waitcnt vmcnt(0)")
        self.maxchain(regs, vt)
        a(f"s_cbranch_vccz {lab}_x\ns_mov_b64 exec, vcc")
        if sleep: a(f"s_sleep {sleep}")
        a(f"s_branch {lab}\n{lab}_x:\ns_mov_b64 exec, -1\ns_waitcnt vmcnt(0)")
    def sanitize(self, regs):
        for r in regs: self.a(f"v_min_u32 v{r}, -2, v{r}")
    def xg_reduce(self, op, x, y):
        self.a(f"""
        v_mov_b32 v{y}, v{x}
        v_permlane16_swap_b32 v{x}, v{y}
        {op} v{x}, v{x}, v{y}
        v_mov_b32 v{y}, v{x}
        v_permlane32_swap_b32 v{x}, v{y}
        {op} v{x}, v{x}, v{y}
        """)
    def dma(self, voff, srd, soff, imm=0, depth=None):
        self.a(f"s_waitcnt vmcnt({(depth or self.o.DS) - 1})")
        self.a(f"buffer_load_dwordx4 v{voff}, {srd}, {soff} offen offset:{imm} nt lds")

    def build(self):
        a = self.a; L = self.L
        a(f"""
        s_cmp_ge_u32 s2, 256
        s_cbranch_scc1 {L('L_end')}
        s_load_dwordx16 s[64:79], s[0:1], 0
        s_load_dwordx8 s[80:87], s[0:1], 64
        s_load_dwordx4 s[88:91], s[0:1], 96
        """)
        if self.stamps or self.o.dbg: a("s_memrealtime s[98:99]")
        l1 = a.new_label(L("L_id1")); l2 = a.new_label(L("L_id2"))
        a(f"""
        v_lshrrev_b32 v1, 6, v0
        v_and_b32 v0, 63, v0
        v_readfirstlane_b32 s3, v1
        v_lshlrev_b32 v1, 2, v0
        v_add_u32 v1, {L_CNT}, v1
        v_mov_b32 v2, 0
        s_mov_b64 exec, 0xffff
        ds_write_b32 v1, v2
        s_mov_b64 exec, -1
        s_lshr_b32 s28, s2, 5                ; 0..7
        s_lshl_b32 s29, s28, 2
        s_lshr_b32 s46, 0x13220030, s29
        s_and_b32 s46, s46, 15
        s_lshr_b32 s45, 0x20440000, s29
        s_and_b32 s45, s45, 15               ; rotation : T3 4, AT 2
        s_add_u32 s45, s45, s2
        s_and_b32 s45, s45, 31
        s_lshr_b32 s29, 0x22, s28
        s_and_b32 s29, s29, 1
        s_lshl_b32 s29, s29, 5
        s_add_u32 s45, s45, s29
        s_lshr_b32 s28, s2, 6
        s_cmp_lg_u32 s28, 1
        s_cbranch_scc1 {l2}
        s_lshr_b32 s45, s2, 1
        s_and_b32 s46, s2, 1
        {l2}:
        s_lshl_b32 s47, s45, 2
        s_add_u32 s47, s47, s46
        v_lshrrev_b32 v1, 4, v0
        v_and_b32 v2, 15, v0
        v_lshlrev_b32 v4, 4, v0
        s_waitcnt lgkmcnt(0)
        """)
        self.srd(4, P_WS, WS_SIZE)
        if "CLR" in self.en: self.clear()
        a(f"""
        s_barrier
        s_cmp_ge_u32 s3, 4
        s_cbranch_scc1 {L('L_awave')}
        s_setprio {self.o.sprio}
        s_cmp_ge_u32 s2, 224
        s_cbranch_scc1 {L('L_at')}
        s_cmp_ge_u32 s2, 192
        s_cbranch_scc1 {L('L_bh2')}
        s_cmp_ge_u32 s2, 128
        s_cbranch_scc1 {L('L_bh1')}
        """)
        self.role_t1()
        a.label(L("L_at"));  self.role_at();  a(f"s_branch {L('L_fin')}")
        a.label(L("L_bh1")); self.role_bh1(); a(f"s_branch {L('L_fin')}")
        a.label(L("L_bh2")); self.role_bh2(); a(f"s_branch {L('L_fin')}")
        a.label(L("L_awave")); self.role_a()
        a.label(L("L_fin"))
        if self.stamps:
            a(f"""
            s_mov_b64 exec, -1
            s_waitcnt vmcnt(0)
            s_memrealtime s[92:93]
            s_lshl_b32 s94, s2, 3
            s_add_u32 s94, s94, s3
            s_lshl_b32 s94, s94, 4
            s_add_u32 s94, s94, {STAMPOFF}
            s_waitcnt lgkmcnt(0)
            v_mov_b32 v4, s98
            v_mov_b32 v5, s99
            v_mov_b32 v6, s92
            v_mov_b32 v7, s93
            v_mov_b32 v1, 0
            s_mov_b64 exec, 1
            buffer_store_dwordx4 v[4:7], v1, s[4:7], s94 offen
            """)
        a.label(L("L_end"))
        a("s_endpgm")
        return a

    def clear(self):
        a = self.a; L = self.L
        done = a.new_label(L("L_clrd")); c1 = a.new_label(L("L_clr1")); c2 = a.new_label(L("L_clr2")); lp = a.new_label(L("L_clrl"))
        a(f"""
        s_cmp_lg_u32 s3, 4
        s_cbranch_scc1 {done}
        s_setprio 3
        s_load_dword s{S_TAG}, s[{P_WS}:{P_WS+1}], 0
        v_mov_b32 v8, -1
        v_mov_b32 v9, -1
        v_mov_b32 v10, -1
        v_mov_b32 v11, -1
        s_lshl_b32 s30, s47, 10
        s_add_u32 s30, s30, {WS_OP}
        s_lshr_b32 s31, s2, 5
        s_cmp_eq_u32 s31, 6
        s_cselect_b32 s31, 0, -1
        s_cselect_b32 s32, {NEGMAX}, -1
        v_mov_b32 v12, s31
        v_mov_b32 v13, s31
        v_mov_b32 v14, s31
        v_mov_b32 v15, s31
        s_mov_b32 exec_lo, 0
        v_mov_b32 v12, s32
        v_mov_b32 v14, s32
        s_mov_b32 exec_lo, -1
        s_mov_b32 exec_hi, 0xffffff
        buffer_store_dwordx4 v[12:15], v4, s[4:7], s30 offen sc1
        s_mov_b64 exec, -1
        s_cmp_ge_u32 s2, 128
        s_cbranch_scc1 {c1}
        s_lshl_b32 s31, s2, 10
        s_add_u32 s31, s31, {WS_T1S}
        s_mov_b32 s32, 1
        s_branch {lp}
        {c1}:
        s_cmp_ge_u32 s2, 192
        s_cbranch_scc1 {c2}
        s_cmp_ge_u32 s2, 160
        s_cbranch_scc1 {done}
        s_sub_u32 s31, s2, 128
        s_lshl_b32 s31, s31, 12
        s_add_u32 s31, s31, {WS_QABS}
        s_mov_b32 s32, 4
        s_branch {lp}
        {c2}:
        s_and_b32 s31, s2, 31
        s_mul_i32 s31, s31, 9216
        s_add_u32 s31, s31, {WS_YB}
        s_cmp_ge_u32 s2, 224
        s_cselect_b32 s32, {WS_YB - WS_YA}, 0
        s_sub_u32 s31, s31, s32
        s_mov_b32 s32, 9
        {lp}:
        buffer_store_dwordx4 v[8:11], v4, s[4:7], s31 offen sc1
        s_add_u32 s31, s31, 1024
        s_sub_u32 s32, s32, 1
        s_cmp_lg_u32 s32, 0
        s_cbranch_scc1 {lp}
        {done}:
        """)
    def clear_finish(self):
        a = self.a; L = self.L
        done = a.new_label(L("L_clrf"))
        a(f"""
        s_cmp_lg_u32 s3, 4
        s_cbranch_scc1 {done}
        s_waitcnt lgkmcnt(0)
        s_mul_i32 s{S_TAG}, s{S_TAG}, 0x9E3779B1
        s_add_u32 s{S_TAG}, s{S_TAG}, 0x7F4A7C15
        v_mov_b32 v8, s{S_TAG}
        v_mov_b32 v9, s{S_TAG}
        v_mov_b32 v10, s{S_TAG}
        v_mov_b32 v11, s{S_TAG}
        v_mov_b32 v12, 1
        v_mov_b32 v13, s{S_TAG}
        v_mov_b32 v14, {L_CNT + 4 * 12}
        s_lshl_b32 s31, s2, 7
        s_add_u32 s31, s31, {WS_FLG}
        s_waitcnt vmcnt(0)
        s_mov_b64 exec, 0xff
        buffer_store_dwordx4 v[8:11], v4, s[4:7], s30 offen offset:896 sc1
        buffer_store_dwordx4 v[8:11], v4, s[4:7], s31 offen sc1
        s_mov_b64 exec, 1
        ds_write_b64 v14, v[12:13]
        s_mov_b64 exec, -1
        s_setprio 0
        """)
        self.stamp(8)
        if self.o.dbg:
            a(f"""
            s_not_b32 s92, s98
            v_mov_b32 v250, s92
            v_mov_b32 v251, s98
            s_mov_b64 exec, 1
            buffer_atomic_umax v250, v252, s[8:11], 0 offen sc1
            buffer_atomic_umax v251, v252, s[8:11], 0 offen offset:4 sc1
            s_mov_b64 exec, -1
            """)
        a.label(done)

    def role_t1(self):
        self.role = "t1"
        a = self.a; L = self.L
        f = lambda x: ((x & 7) << 1) | (x >> 3)
        PQ = "PQ" in self.en; BA = "BA" in self.en
        T2 = 192
        def c_setup():
            self.srd(20, P_CKV, 16 << 20)
            for r in range(16): a(f"v_xor_b32 v{24+r}, {f(r) << 4}, v4")
            a("s_sub_u32 s33, s2, 64\ns_lshl_b32 s36, s33, 18")
        def c_loads(s_row16):
            a(f"s_lshl_b32 s37, {s_row16}, 14\ns_add_u32 s34, s36, s37")
            for r in range(16):
                if r % 4 == 0: a("s_mov_b32 m0, s37")
                self.dma(24 + r, "s[20:23]", "s34", (r % 4) * 1024, self.o.DC)
                if r % 4 == 3: a("s_add_u32 s34, s34, 4096\ns_add_u32 s37, s37, 4096")
            a("s_lshl_b32 s37, s3, 14\ns_add_u32 s35, s36, s37\ns_add_u32 s35, s35, 131072")
            for r in range(self.o.t2e): t2_load(r, True)
        def t2_load(r, throttle=False):
            if r >= 16: return
            a(f"v_xor_b32 v23, {f(r) << 4}, v4")
            if throttle: a(f"s_waitcnt vmcnt({self.o.DC - 1})")
            a(f"buffer_load_dwordx4 {vr(T2 + 4*r)}, v23, s[20:23], s35 offen offset:{(r % 4) * 1024} nt")
            if r % 4 == 3: a("s_add_u32 s35, s35, 4096")
        if PQ:
            X = 64
            L_X = L_SM + 1024
            a(f"""
            s_cmp_lt_u32 s2, 64
            s_cselect_b32 s12, s{P_BWQ}, s{P_WQ}
            s_cselect_b32 s13, s{P_BWQ+1}, s{P_WQ+1}
            s_mov_b32 s14, {576 * 8192}
            s_mov_b32 s15, 0x20000
            s_cselect_b32 s16, s{P_BX}, s{P_AX}
            s_cselect_b32 s17, s{P_BX+1}, s{P_AX+1}
            s_mov_b32 s18, {4 * 1152}
            s_mov_b32 s19, 0x20000
            s_and_b32 s34, s2, 63
            s_lshl_b32 s34, s34, 7               ; h*256 + ch*128
            s_mul_i32 s35, s3, {18 * 65536}
            s_add_u32 s34, s34, s35
            s_mul_i32 s35, s3, {18 * 1024}
            s_add_u32 s35, s35, {L_PQ}
            v_lshlrev_b32 v5, 1, v1
            v_and_b32 v6, 7, v0
            v_xor_b32 v5, v5, v6
            v_lshlrev_b32 v5, 4, v5
            v_lshrrev_b32 v6, 3, v0
            v_lshl_add_u32 v5, v6, 13, v5
            s_mov_b32 m0, {L_X}
            v_and_b32 v6, 3, v2
            buffer_load_dwordx4 v4, s[16:19], 0 offen lds
            buffer_load_dwordx4 v4, s[16:19], 0 offen offset:1024 lds
            buffer_load_dwordx4 v4, s[16:19], 0 offen offset:2048 lds
            buffer_load_dwordx4 v4, s[16:19], 0 offen offset:3072 lds
            s_mov_b32 m0, {L_X + 4096}
            s_mov_b32 s38, 4096
            buffer_load_dwordx4 v4, s[16:19], s38 offen lds
            """)
            for i in range(18):
                a("s_mov_b32 m0, s35")
                self.dma(5, "s[12:15]", "s34", 0, 60)
                if i != 17: a("s_add_u32 s34, s34, 65536\ns_add_u32 s35, s35, 1024")
            if self.o.gpq == 0: self.gate(4, 16)
            a(f"""
            v_mul_u32_u24 v6, 1152, v6
            v_lshl_add_u32 v6, v1, 3, v6
            v_add_u32 v6, {L_X}, v6
            s_waitcnt vmcnt(18)
            """)
            for s in range(18):
                a(f"ds_read2_b64 {vr(X + 4*s)}, v6 offset0:{8*s} offset1:{8*s+4}")
                if s == 12: a("s_waitcnt lgkmcnt(8)")
            a(f"""
            v_lshrrev_b32 v7, 2, v0
            v_bfe_u32 v8, v0, 3, 2
            v_xor_b32 v8, s3, v8
            v_lshlrev_b32 v8, 5, v8
            v_lshl_add_u32 v8, v7, 7, v8
            v_and_b32 v7, 3, v0
            v_lshl_add_u32 v8, v7, 3, v8
            v_add_u32 v8, {L_PQ}, v8
            v_add_u32 v9, 0x8000, v8
            v_and_b32 v6, 3, v2
            v_lshlrev_b32 v6, 7, v6
            v_lshl_add_u32 v6, v1, 3, v6
            s_lshl_b32 s38, s3, 5
            s_add_u32 s38, s38, {L_SM}
            v_add_u32 v6, s38, v6
            """)
            self.get_tag(16)
            if self.o.gpq == 1:
                a("s_waitcnt vmcnt(8)"); self.gate(4, 16)
            a("s_waitcnt vmcnt(0)")
            if self.o.gpq == 2: self.gate(4, 16)
            self.stamp(0, 20)
            self.sbar(0, 16)
            W = 140; NB = 8; PRE = 6
            def rd(s):
                base, off = (8, s * 4096) if s < 8 else (9, (s - 8) * 4096)
                r = W + 4 * (s % NB)
                a(f"ds_read_b64_tr_b16 v[{r}:{r+1}], v{base} offset:{off}")
                a(f"ds_read_b64_tr_b16 v[{r+2}:{r+3}], v{base} offset:{off + 2048}")
            for s in range(PRE): rd(s)
            for s in range(18):
                if s + PRE < 18: rd(s + PRE)
                a(f"s_waitcnt lgkmcnt({2 * min(PRE, 17 - s)})")
                acc = 40 + 4 * (s & 1)
                a(f"{MF} {vr(acc)}, {vr(W + 4 * (s % NB))}, {vr(X + 4*s)}, {'0' if s < 2 else vr(acc)}")
            a(f"""
            v_add_f32 v40, v40, v44
            v_add_f32 v41, v41, v45
            v_add_f32 v42, v42, v46
            v_add_f32 v43, v43, v47
            v_cvt_pk_bf16_f32 v44, v40, v41
            v_cvt_pk_bf16_f32 v45, v42, v43
            """)
            self.sanitize([44, 45])
            a("ds_write_b64 v6, v[44:45]")
            self.sbar(1, 16)
            sk = a.new_label(L("L_pqs"))
            a(f"""
            s_cmp_lg_u32 s3, 0
            s_cbranch_scc1 {sk}
            v_add_u32 v6, {L_SM}, v4
            s_lshl_b32 s38, s2, 10
            s_add_u32 s38, s38, {WS_T1S}
            s_mov_b32 exec_hi, 0
            ds_read_b128 v[40:43], v6
            s_waitcnt lgkmcnt(0)
            buffer_store_dwordx4 v[40:43], v4, s[4:7], s38 offen sc1
            s_mov_b64 exec, -1
            """)
            if self.o.gpq == 3: self.gate(4, 16)
            self.stamp(1, 20)
            a.label(sk)
        t1b = a.new_label(L("L_t1b"))
        a(f"s_cmp_ge_u32 s2, 64\ns_cbranch_scc1 {t1b}\ns_cmp_lg_u32 s3, 1\ns_cbranch_scc1 {L('L_fin')}")
        self.fetch_q(40)
        a(f"s_branch {L('L_fin')}\n{t1b}:")
        if not BA:
            a(f"s_cmp_lg_u32 s3, 1\ns_cbranch_scc1 {L('L_fin')}")
            self.fetch_q(40)
            a(f"s_branch {L('L_fin')}")
            a.label(L("L_ba_a"))
            a(f"s_branch {L('L_amain')}")
            return
        c_setup()
        a("s_add_u32 s38, s3, 4")
        c_loads("s38")
        a(f"s_branch {L('L_ba_c')}")
        a.label(L("L_ba_a"))
        c_setup()
        if self.fused: self.wait_lds(10, 1, 16, 1)
        c_loads("s44")
        self.get_tag(16)
        sk = a.new_label(L("L_noq"))
        a(f"s_cmp_lg_u32 s3, 4\ns_cbranch_scc1 {sk}")
        self.fetch_q(40)
        a.label(sk)
        a(f"s_setprio {self.o.sprio}")
        a.label(L("L_ba_c"))
        L_QS = L_P
        a(f"""
        s_and_b32 s38, s3, 1             ; hg
        s_lshr_b32 s43, s3, 1            ; kq
        v_and_b32 v5, 7, v2
        v_lshlrev_b32 v5, 1, v5
        v_lshrrev_b32 v6, 3, v2
        v_or_b32 v5, v5, v6
        v_lshlrev_b32 v5, 4, v5
        v_lshl_add_u32 v5, v1, 8, v5
        v_lshl_add_u32 v5, v2, 10, v5
        s_lshl_b32 s37, s43, 15
        v_add_u32 v5, s37, v5
        s_lshr_b32 s39, s33, 4           ; b
        s_lshl_b32 s39, s39, 9
        s_lshl_b32 s40, s3, 13
        s_add_u32 s39, s39, s40
        s_add_u32 s39, s39, {WS_QABS}    ; heads 2w,2w+1
        s_add_u32 s40, s39, 4096
        s_add_u32 s41, s39, 65536
        s_add_u32 s42, s39, {65536 + 4096}
        v_lshrrev_b32 v10, 5, v0
        v_lshlrev_b32 v10, 11, v10
        v_and_b32 v11, 31, v0
        v_lshl_add_u32 v10, v11, 4, v10  ; (l>>5)*2048 + (l&31)*16
        v_mov_b32 v3, {CSC}
        v_add_u32 v11, 128, v11
        s_lshl_b32 s37, s3, 5            ; n0*16 with n0 = 2w
        v_xor_b32 v12, s37, v4
        s_lshl_b32 s37, s3, 11
        s_add_u32 s37, s37, {L_QS}
        v_add_u32 v12, s37, v12
        v_xor_b32 v13, 16, v12
        v_add_u32 v13, 1024, v13         ; head 2w+1
        v_xor_b32 v14, v1, v2
        v_lshlrev_b32 v14, 4, v14
        v_lshl_add_u32 v14, v2, 10, v14
        v_add_u32 v14, {L_QS}, v14
        v_xor_b32 v15, 64, v14
        v_xor_b32 v18, 0x80, v14
        v_xor_b32 v19, 0xc0, v14
        """)
        self.flag_wg(11)
        self.check_flags(11, 16)
        a("s_waitcnt vmcnt(0)\ns_barrier")
        self.stamp(2, 20)
        G = 40; Q = 64
        self.fpoll([f"buffer_load_dwordx4 {vr(G + 4*k)}, v10, s[4:7], s{39+k} offen sc1" for k in range(4)], range(G, G + 16), 16, depth=self.o.pde, lsleep=self.o.sle)
        nt2 = [self.o.t2e]
        def t2_more(n):
            for _ in range(n):
                t2_load(nt2[0]); nt2[0] += 1
        t2_more(4)
        self.stamp(3, 20)
        def qread():
            for j in range(16):
                a(f"ds_read_b128 {vr(Q + 4*j)}, v{[14, 15, 18, 19][j & 3]} offset:{(j >> 2) * 256}")
                if j == 11: a("s_waitcnt lgkmcnt(8)")
        for hg in range(2):
            sk = a.new_label(L("L_qs"))
            a(f"""
            ds_write_b128 v12, {vr(G + 8*hg)}
            ds_write_b128 v13, {vr(G + 8*hg + 4)}
            s_waitcnt lgkmcnt(0)
            s_barrier
            s_cmp_lg_u32 s38, {hg}
            s_cbranch_scc1 {sk}
            """)
            qread()
            a(f"s_waitcnt lgkmcnt(0)\n{sk}:")
            t2_more(2)
            if hg == 0: a("s_barrier")
        a(f"""
        v_lshlrev_b32 v12, 4, v2
        v_add_u32 v12, {L_SM}, v12
        s_lshl_b32 s37, s38, 8
        s_lshl_b32 s39, s43, 2
        s_add_u32 s37, s37, s39
        v_add_u32 v13, s37, v12
        s_lshl_b32 s37, s38, 12
        s_lshl_b32 s39, s43, 10
        s_add_u32 s37, s37, s39
        s_add_u32 s37, s37, {L_P}
        v_add_u32 v14, s37, v4               ; P write
        v_add_u32 v15, {L_P}, v4             ; P read
        v_lshrrev_b32 v6, 2, v0
        v_and_b32 v7, 7, v6
        v_lshlrev_b32 v7, 1, v7
        v_lshrrev_b32 v8, 3, v6
        v_or_b32 v7, v7, v8
        v_bfe_u32 v8, v0, 1, 1
        v_xor_b32 v7, v7, v8
        v_lshlrev_b32 v7, 4, v7
        v_lshl_add_u32 v7, v6, 10, v7
        v_and_b32 v8, 1, v0
        v_lshl_add_u32 v7, v8, 3, v7
        s_lshl_b32 s41, s3, 7
        v_xor_b32 v7, s41, v7
        s_lshl_b32 s37, s3, 14
        v_add_u32 v18, s37, v4
        v_mov_b32 v10, {NEGMAX}              ; m hg0
        v_mov_b32 v11, {NEGMAX}              ; m hg1
        v_mov_b32 v19, 0                     ; l partial
        s_waitcnt vmcnt({max(0, min(16, nt2[0]) - self.o.t2e)})
        """)
        for ct in range(4):
            a(f"v_xor_b32 v{24+ct}, {ct << 5}, v7\nv_add_u32 v{28+ct}, 0x10000, v{24+ct}")
        self.stamp(4, 20)
        S = 40; A = 128; NB = 8; ACC = 160; PB = 40
        for ps in range(2):
            seq = [(j, t) for j in range(16) for t in range(2)]
            def rd(i):
                j, t = seq[i]
                if t == 0: a(f"v_xor_b32 v{32 + (j & 3)}, {j << 4}, v5")
                a(f"ds_read_b128 {vr(A + 4 * (i % NB))}, v{32 + (j & 3)} offset:{t * 16384}")
            PRE = 6
            for i in range(PRE): rd(i)
            for i, (j, t) in enumerate(seq):
                if i + PRE < len(seq): rd(i + PRE)
                a(f"s_waitcnt lgkmcnt({min(PRE, len(seq) - 1 - i)})")
                acc = S + 4 * t
                a(f"{MF} {vr(acc)}, {vr(A + 4 * (i % NB))}, {vr(Q + 4*j)}, {'0' if j == 0 else vr(acc)}")
                if ps == 0 and i % 4 == 3: t2_more(1)
            for e in range(8): a(f"v_mul_f32 v{S+e}, v3, v{S+e}")
            a(f"""
            v_max3_f32 v8, v{S}, v{S+1}, v{S+2}
            v_max3_f32 v8, v8, v{S+3}, v{S+4}
            v_max3_f32 v8, v8, v{S+5}, v{S+6}
            v_max_f32 v8, v8, v{S+7}
            """)
            self.xg_reduce("v_max_f32", 8, 9)
            a(f"""
            ds_write_b32 v13, v8
            s_waitcnt lgkmcnt(0)
            s_barrier
            ds_read_b128 v[52:55], v12
            ds_read_b128 v[56:59], v12 offset:256
            s_cmp_eq_u32 s38, 0
            s_cselect_b64 s[26:27], -1, 0
            s_waitcnt lgkmcnt(0)
            v_max3_f32 v52, v52, v53, v54
            v_max3_f32 v56, v56, v57, v58
            v_max3_f32 v52, v52, v55, v10
            v_max3_f32 v56, v56, v59, v11
            v_sub_f32 v60, v10, v52
            v_sub_f32 v61, v11, v56
            v_mov_b32 v10, v52
            v_mov_b32 v11, v56
            v_cndmask_b32 v8, v56, v52, s[26:27]
            v_exp_f32 v60, v60
            v_exp_f32 v61, v61
            """)
            for e in range(8): a(f"v_sub_f32 v{S+e}, v{S+e}, v8")
            for e in range(8): a(f"v_exp_f32 v{S+e}, v{S+e}")
            a("v_cndmask_b32 v9, v61, v60, s[26:27]")
            for e in range(4): a(f"v_cvt_pk_bf16_f32 v{48+e}, v{S+2*e}, v{S+2*e+1}")
            a(f"ds_write_b128 v14, v[48:51]\nv_fma_f32 v19, v19, v9, v{S}")
            for e in range(1, 8): a(f"v_add_f32 v19, v19, v{S+e}")
            if ps == 1:
                for r in range(32): a(f"v_mul_f32 v{ACC+r}, v{60 + (r >> 4)}, v{ACC+r}")
                self.xg_reduce("v_add_f32", 19, 9)
                a("ds_write_b32 v13, v19 offset:512")
            a("s_waitcnt lgkmcnt(0)\ns_barrier")
            seq = [(u, ct) for u in range(4) for ct in range(4)]
            def rd2(i):
                u, ct = seq[i]
                if ct == 0:
                    for hg in range(2): a(f"ds_read_b128 {vr(PB + 8 * (u & 1) + 4 * hg)}, v15 offset:{hg * 4096 + u * 1024}")
                base = (24 if u < 2 else 28) + ct; off = (u & 1) * 32768; r = A + 4 * (i % NB)
                a(f"ds_read_b64_tr_b16 v[{r}:{r+1}], v{base} offset:{off}")
                a(f"ds_read_b64_tr_b16 v[{r+2}:{r+3}], v{base} offset:{off + 16384}")
            cnt = lambda i: 2 + (2 if seq[i][1] == 0 else 0)
            PRE = 4
            for i in range(PRE): rd2(i)
            for i, (u, ct) in enumerate(seq):
                if i + PRE < len(seq): rd2(i + PRE)
                a(f"s_waitcnt lgkmcnt({sum(cnt(k) for k in range(i + 1, min(i + PRE + 1, len(seq))))})")
                for hg in range(2):
                    acc = ACC + 16 * hg + 4 * ct
                    a(f"{MF} {vr(acc)}, {vr(A + 4 * (i % NB))}, {vr(PB + 8 * (u & 1) + 4 * hg)}, {'0' if (u == 0 and ps == 0) else vr(acc)}")
            if ps == 0:
                self.stamp(5, 20)
                a("s_waitcnt vmcnt(0)\ns_barrier")
                self.stamp(13, 20)
                for r in range(16): a(f"ds_write_b128 v18, {vr(T2 + 4*r)} offset:{r * 1024}")
                a("s_waitcnt lgkmcnt(0)\ns_barrier")
        a(f"""
        v_and_b32 v6, 7, v2
        v_lshlrev_b32 v6, 10, v6
        v_lshrrev_b32 v8, 3, v2
        v_lshl_add_u32 v6, v8, 6, v6
        v_lshl_add_u32 v6, v1, 4, v6
        s_lshl_b32 s39, s33, 15
        s_add_u32 s39, s39, s41
        s_add_u32 s39, s39, {WS_BP}
        """)
        for hg in range(2):
            acc = ACC + 16 * hg; X0 = 64 + 8 * hg; X1 = X0 + 4
            for w in range(8): a(f"v_cvt_pk_bf16_f32 v{X0+w}, v{acc+2*w}, v{acc+2*w+1}")
            for w in range(4): a(f"v_mov_b32 v{80+w}, v{X0+w}")
            for w in range(4): a(f"v_mov_b32_dpp v{X0+w}, v{X1+w} row_ror:8 row_mask:0xf bank_mask:0xc")
            for w in range(4): a(f"v_mov_b32_dpp v{X1+w}, v{80+w} row_ror:8 row_mask:0xf bank_mask:0x3")
            a(f"buffer_store_dwordx4 {vr(X0)}, v6, s[4:7], s39 offen sc1\ns_add_u32 s39, s39, 8192")
            a(f"buffer_store_dwordx4 {vr(X1)}, v6, s[4:7], s39 offen sc1\ns_add_u32 s39, s39, 8192")
        self.stamp(6, 20)
        a(f"""
        s_waitcnt vmcnt(0)
        s_barrier
        s_setprio 0
        s_cmp_ge_u32 s3, 4
        s_cbranch_scc1 {L('L_amain')}
        s_cmp_lg_u32 s3, 0
        s_cbranch_scc1 {L('L_fin')}
        s_setprio 3
        v_and_b32 v6, 31, v0
        v_lshlrev_b32 v7, 4, v6
        v_add_u32 v7, {L_SM + 512}, v7
        ds_read_b128 v[40:43], v7
        v_lshlrev_b32 v6, 3, v6
        s_lshl_b32 s39, s2, 10
        s_add_u32 s39, s39, {WS_T1S + 512}
        v_cmp_eq_u32 vcc, 0, v1
        v_cndmask_b32 v8, v11, v10, vcc
        s_waitcnt lgkmcnt(0)
        v_add_f32 v9, v40, v41
        v_add_f32 v42, v42, v43
        v_add_f32 v9, v9, v42
        """)
        self.sanitize([8, 9])
        a(f"""
        s_mov_b32 exec_hi, 0
        buffer_store_dwordx2 v[8:9], v6, s[4:7], s39 offen sc1
        s_mov_b64 exec, -1
        """)
        self.stamp(7, 20)
        a(f"s_branch {L('L_fin')}")

    def stage_lin(self, srd, s_base, s_lds, n, voff):
        a = self.a
        for i in range(n):
            if i % 4 == 0: a(f"s_mov_b32 m0, {s_lds}")
            self.dma(voff, srd, s_base, (i % 4) * 1024)
            if i % 4 == 3 and i != n - 1:
                a(f"s_add_u32 {s_base}, {s_base}, 4096\ns_add_u32 {s_lds}, {s_lds}, 4096")
    def store_y(self, ys, s_y, s_y8, vt):
        a = self.a
        self.sanitize(range(ys, ys + 9))
        a(f"""
        v_lshlrev_b32 v{vt}, 2, v0
        buffer_store_dwordx4 {vr(ys)}, v4, s[4:7], {s_y} offen sc1
        buffer_store_dwordx4 {vr(ys+4)}, v4, s[4:7], {s_y} offen offset:1024 sc1
        buffer_store_dword v{ys+8}, v{vt}, s[4:7], {s_y8} offen sc1
        """)
    def y_addr(self, ybase):
        self.a(f"""
        s_mul_i32 s38, s33, 9216
        s_add_u32 s38, s38, {ybase}
        s_lshl_b32 s39, s3, 8
        s_add_u32 s39, s39, s38
        s_add_u32 s39, s39, 8192
        s_lshl_b32 s40, s3, 11
        s_add_u32 s38, s38, s40
        """)

    def role_at(self):
        self.role = "at"
        a = self.a
        if self.o.ega == 0: self.gate(4, 16)
        self.get_tag(16)
        if self.o.ega == 1: self.gate(4, 16)
        sk = a.new_label(self.L("L_atq"))
        a(f"s_cmp_lg_u32 s3, 0\ns_cbranch_scc1 {sk}")
        self.fetch_q(40, True)
        a.label(sk)
        if "AT" not in self.en: return
        if self.fused: self.wait_lds(self.o.atgate, 1, 16, 2)
        self.srd(12, P_WO, 4096 * 1152)
        a(f"""
        s_and_b32 s33, s2, 31
        s_mul_i32 s36, s33, {128 * 1152}
        s_mul_i32 s37, s3, {36 * 1024}
        s_add_u32 s36, s36, s37
        """)
        self.stage_lin("s[12:15]", "s36", "s37", 36, 4)
        a(f"""
        v_lshrrev_b32 v5, 2, v0
        v_mul_u32_u24 v5, {8 * 1152}, v5
        v_and_b32 v6, 3, v0
        v_lshl_add_u32 v5, v6, 3, v5
        s_lshl_b32 s38, s3, 5
        s_add_u32 s38, s38, 1024
        v_add_u32 v6, s38, v5
        s_lshl_b32 s38, s3, 8
        v_add_u32 v5, s38, v5
        s_waitcnt vmcnt(0)
        """)
        self.sbar(0, 16)
        WO = 64
        for ct in range(9):
            for j in range(4):
                r = WO + 16 * ct + 4 * j
                base, co = (5, ct * 32) if ct < 8 else (6, 0)
                a(f"ds_read_b64_tr_b16 v[{r}:{r+1}], v{base} offset:{(2*j) * 1152 + co}")
                a(f"ds_read_b64_tr_b16 v[{r+2}:{r+3}], v{base} offset:{(2*j+1) * 1152 + co}")
            a("s_waitcnt lgkmcnt(7)")
        a(f"""
        s_lshr_b32 s36, s33, 1
        s_lshl_b32 s36, s36, 2               ; 4*hkv
        v_lshrrev_b32 v6, 2, v2
        v_lshlrev_b32 v6, 6, v6
        v_and_b32 v7, 3, v2
        v_add_u32 v6, v6, v7
        v_add_u32 v8, s36, v6
        v_lshlrev_b32 v6, 10, v6
        v_lshl_add_u32 v6, v1, 4, v6         ; o voffset
        v_lshl_add_u32 v7, v1, 6, v7
        v_lshlrev_b32 v7, 10, v7
        s_lshl_b32 s36, s36, 10
        s_add_u32 s36, s36, {WS_OP}
        s_and_b32 s37, s33, 1
        s_lshl_b32 s40, s37, 3
        s_add_u32 s41, s36, s40
        s_add_u32 s41, s41, 512
        s_lshl_b32 s37, s37, 8
        s_add_u32 s36, s36, s37              ; o soffset
        """)
        self.y_addr(WS_YA)
        a(f"""
        v_lshlrev_b32 v10, 10, v1
        v_lshl_add_u32 v9, v2, 4, v10
        s_lshl_b32 s43, s3, 16
        s_add_u32 s42, s36, s43
        s_add_u32 s43, s41, s43
        s_lshl_b32 s40, s3, 2
        v_add_u32 v12, s40, v1               ; m
        v_mul_u32_u24 v11, 272, v12
        v_lshl_add_u32 v11, v2, 4, v11
        v_add_u32 v11, {L_SM}, v11
        v_lshlrev_b32 v12, 3, v12
        v_add_u32 v12, {L_SM + 4352}, v12
        v_mul_u32_u24 v13, 272, v2
        v_lshl_add_u32 v13, v1, 4, v13
        v_add_u32 v13, {L_SM}, v13
        v_and_b32 v14, 3, v2
        v_lshl_add_u32 v14, v1, 2, v14
        v_lshlrev_b32 v14, 3, v14
        v_add_u32 v14, {L_SM + 4352}, v14
        """)
        self.flag_aid(8)
        self.check_flags(8, 16)
        self.stamp(0)
        if self.fused: self.wait_lds(15, self.o.atw, 16, 1)
        O = 24; ST = 40
        if self.o.atl == 0:
            loads = [f"buffer_load_dwordx4 {vr(O + 4*j)}, v6, s[4:7], s36 offen offset:{64*j} sc1" for j in range(4)]
            loads += [f"buffer_load_dwordx2 v[{ST}:{ST+1}], v7, s[4:7], s41 offen sc1"]
            self.fpoll(loads, range(O, O + 18), 16, depth=self.o.pd, lsleep=self.o.sla)
        else:
            self.fpoll([f"buffer_load_dwordx4 v[44:47], v9, s[4:7], s42 offen sc1", f"buffer_load_dwordx2 v[48:49], v10, s[4:7], s43 offen sc1"], range(44, 50), 16, depth=1, lsleep=self.o.sla)
            a("ds_write_b128 v11, v[44:47]\nds_write_b64 v12, v[48:49]")
            self.sbar(1, 16)
            for j in range(4): a(f"ds_read_b128 {vr(O + 4*j)}, v13 offset:{64*j}")
            a(f"ds_read_b64 v[{ST}:{ST+1}], v14\ns_waitcnt lgkmcnt(0)")
        self.stamp(1)
        ACC = 208
        for ct in range(9):
            for j in range(4):
                acc = ACC + 4 * ct
                a(f"{MF} {vr(acc)}, {vr(O + 4*j)}, {vr(WO + 16*ct + 4*j)}, {'0' if j == 0 else vr(acc)}")
            if ct == 0:
                a(f"""
                v_max_f32_dpp v16, v{ST}, v{ST} quad_perm:[1,0,3,2] {DPPM}
                v_max_f32_dpp v16, v16, v16 quad_perm:[2,3,0,1] {DPPM}
                v_sub_f32 v17, v{ST}, v16
                v_exp_f32 v17, v17
                v_mul_f32 v18, v17, v{ST+1}
                """)
            if ct == 1:
                a(f"""
                v_add_f32_dpp v18, v18, v18 quad_perm:[1,0,3,2] {DPPM}
                v_add_f32_dpp v18, v18, v18 quad_perm:[2,3,0,1] {DPPM}
                v_rcp_f32 v18, v18
                v_mul_f32 v17, v17, v18
                """)
            if ct == 2:
                for t in range(4): a(f"v_mov_b32_dpp v{48+t}, v17 quad_perm:[{t},{t},{t},{t}] {DPPM}")
        Y = 52
        for ct in range(9):
            acc = ACC + 4 * ct
            a(f"""
            v_mul_f32 v{Y+ct}, v48, v{acc}
            v_fmac_f32 v{Y+ct}, v49, v{acc+1}
            v_fmac_f32 v{Y+ct}, v50, v{acc+2}
            v_fmac_f32 v{Y+ct}, v51, v{acc+3}
            """)
        self.store_y(Y, "s38", "s39", 16)
        self.stamp(2)

    def role_bh1(self):
        self.role = "bh1"
        a = self.a; L = self.L
        t3a = a.new_label(L("L_t3a"))
        a(f"s_cmp_lt_u32 s2, 160\ns_cbranch_scc1 {t3a}\ns_cmp_lg_u32 s3, 0\ns_cbranch_scc1 {L('L_fin')}")
        if self.o.eg == 0: self.gate(4, 16)
        self.get_tag(16)
        if self.o.eg == 1: self.gate(4, 16)
        self.fetch_q(40, True)
        a(f"s_branch {L('L_fin')}\n{t3a}:")
        if "BH1" not in self.en: return
        self.srd(12, P_WUK, 512 * 8192)
        a(f"""
        s_sub_u32 s36, s2, 128               ; h
        s_lshl_b32 s37, s36, 8               ; h*256
        s_lshl_b32 s38, s3, 18
        s_add_u32 s37, s37, s38
        s_lshl_b32 s35, s3, 15
        v_xor_b32 v5, v1, v2
        v_lshlrev_b32 v5, 4, v5
        v_lshl_add_u32 v8, v1, 13, v5
        v_xor_b32 v9, 64, v8
        v_xor_b32 v10, 0x80, v8
        v_xor_b32 v11, 0xc0, v8
        """)
        for i in range(32):
            p, g, half = i >> 3, (i >> 1) & 3, i & 1
            a(f"s_add_u32 s34, s37, {(128 * g + 8 * p + 4 * half) * 8192}\ns_add_u32 m0, s35, {i * 1024}")
            self.dma(8 + g, "s[12:15]", "s34", 0, 32)
        a(f"""
        v_lshrrev_b32 v6, 2, v2
        v_lshlrev_b32 v21, 3, v6
        v_and_b32 v7, 3, v2
        v_add_u32 v21, v21, v7
        v_lshl_add_u32 v12, v21, 8, v5
        v_add_u32 v12, s35, v12
        v_xor_b32 v13, 64, v12
        v_xor_b32 v14, 0x80, v12
        v_xor_b32 v15, 0xc0, v12
        v_lshlrev_b32 v18, 7, v7
        v_lshl_add_u32 v18, v1, 4, v18       ; q_B voffset: b*128 + g*16
        s_lshl_b32 s39, s36, 11
        s_add_u32 s39, s39, {WS_T1S}
        v_lshlrev_b32 v19, 9, v7             ; out: b*512 + p*64 + g*16
        v_lshl_add_u32 v19, v6, 6, v19
        v_lshl_add_u32 v19, v1, 4, v19
        v_cmp_eq_u32 s[42:43], 1, v6
        v_cmp_eq_u32 s[24:25], 2, v6
        v_cmp_eq_u32 s[26:27], 3, v6
        s_lshl_b32 s40, s36, 12
        s_lshr_b32 s41, s3, 1
        s_lshl_b32 s41, s41, 11
        s_add_u32 s40, s40, s41
        s_and_b32 s41, s3, 1
        s_lshl_b32 s41, s41, 8
        s_add_u32 s40, s40, s41
        s_add_u32 s40, s40, {WS_QABS}
        s_lshl_b32 s41, s36, 1
        v_and_b32 v20, 1, v0
        v_add_u32 v20, s41, v20
        """)
        self.gate(self.o.gbh1, 16)
        self.flag_wg(20)
        self.get_tag(16)
        self.check_flags(20, 16)
        a("s_waitcnt vmcnt(0)")
        W = 64; ACC = 192; Q = 24
        for T in range(8):
            p, half = T >> 1, T & 1
            for k in range(4):
                a(f"ds_read_b128 {vr(W + 16*T + 4*k)}, v{12+k} offset:{(32*p + 4*half) * 256}")
            if T >= 2: a("s_waitcnt lgkmcnt(8)")
        self.stamp(0)
        self.fpoll([f"buffer_load_dwordx4 {vr(Q + 4*k)}, v18, s[4:7], s39 offen offset:{(k >> 1) * 1024 + (k & 1) * 64} sc1" for k in range(4)], range(Q, Q + 16), 16, depth=self.o.pde, lsleep=self.o.sle)
        self.stamp(1)
        a("s_waitcnt lgkmcnt(0)")
        for T in range(8):
            for k in range(4):
                acc = ACC + 4 * T
                a(f"{MF} {vr(acc)}, {vr(W + 16*T + 4*k)}, {vr(Q + 4*k)}, {'0' if k == 0 else vr(acc)}")
        for w in range(16): a(f"v_cvt_pk_bf16_f32 v{40+w}, v{ACC+2*w}, v{ACC+2*w+1}")
        for p, sm in ((1, "s[42:43]"), (2, "s[24:25]"), (3, "s[26:27]")):
            for w in range(4): a(f"v_cndmask_b32 v{40+w}, v{40+w}, v{40+4*p+w}, {sm}")
        self.sanitize(range(40, 44))
        a("buffer_store_dwordx4 v[40:43], v19, s[4:7], s40 offen sc1")
        self.gate(4, 16)
        self.stamp(2)

    def role_bh2(self):
        self.role = "bh2"
        a = self.a
        if "BH2" not in self.en: return
        self.srd(12, P_WUV, 512 * 8192)
        self.srd(16, P_BWO, 4096 * 1152)
        a(f"""
        s_and_b32 s33, s2, 31
        s_lshl_b32 s34, s33, 8
        s_lshl_b32 s35, s3, 19
        s_add_u32 s34, s34, s35
        s_lshl_b32 s35, s3, 14
        v_lshlrev_b32 v5, 1, v1
        v_xor_b32 v5, v5, v2
        v_lshlrev_b32 v5, 4, v5
        v_lshl_add_u32 v5, v1, 13, v5
        v_xor_b32 v6, 0x80, v5
        """)
        a(f"""
        s_lshr_b32 s40, s3, 1                ; b
        s_lshl_b32 s36, s40, 4
        s_add_u32 s36, s36, 64
        v_add_u32 v13, s36, v2
        v_mov_b32 v14, v13
        """)
        self.flag_wg(14)
        if self.o.egb >= 1: self.get_tag(16)
        if self.o.egb >= 2: self.check_flags(14, 16)
        for i in range(16):
            a("s_mov_b32 m0, s35")
            self.dma(5 + (i & 1), "s[12:15]", "s34", 0, self.o.DB)
            if i != 15: a("s_add_u32 s34, s34, 32768\ns_add_u32 s35, s35, 1024")
        a(f"""
        v_lshrrev_b32 v10, 2, v0
        v_and_b32 v11, 7, v10
        v_xor_b32 v11, s3, v11
        v_lshlrev_b32 v11, 5, v11
        v_lshl_add_u32 v11, v10, 8, v11
        v_and_b32 v10, 3, v0
        v_lshl_add_u32 v8, v10, 3, v11
        v_add_u32 v9, 0x10000, v8
        s_waitcnt vmcnt(0)
        s_barrier
        """)
        WV = 192
        for s in range(16):
            off = s * 8192; base = 9 if off >> 16 else 8; off &= 0xffff
            r = WV + 4 * s
            a(f"ds_read_b64_tr_b16 v[{r}:{r+1}], v{base} offset:{off}")
            a(f"ds_read_b64_tr_b16 v[{r+2}:{r+3}], v{base} offset:{off + 4096}")
            if s % 4 == 3: a("s_waitcnt lgkmcnt(7)")
        a("s_waitcnt lgkmcnt(0)\ns_barrier")
        self.stamp(0, 20)
        a(f"""
        s_mul_i32 s36, s33, {128 * 1152}
        s_mul_i32 s37, s3, {18 * 1024}
        s_add_u32 s36, s36, s37
        """)
        for i in range(18):
            if i % 2 == 0: a("s_mov_b32 m0, s37")
            self.dma(4, "s[16:19]", "s36", (i % 2) * 1024, self.o.DB)
            if i % 2 == 1: a("s_add_u32 s36, s36, 2048\ns_add_u32 s37, s37, 2048")
        a(f"""
        v_lshlrev_b32 v5, 3, v1
        v_bfe_u32 v8, v0, 2, 2
        v_add_u32 v5, v5, v8
        v_mul_u32_u24 v5, 1152, v5
        v_and_b32 v8, 3, v0
        v_lshl_add_u32 v5, v8, 3, v5
        s_and_b32 s39, s3, 3
        s_lshl_b32 s39, s39, 5
        s_add_u32 s39, s39, 1024
        v_add_u32 v10, s39, v5
        s_lshl_b32 s39, s3, 7
        v_add_u32 v5, s39, v5
        v_add_u32 v9, {64 * 1152}, v5
        v_add_u32 v11, {64 * 1152}, v10
        s_waitcnt vmcnt(0)
        s_barrier
        """)
        WO = 112
        for ct in range(5):
            for j in range(4):
                r = WO + 16 * ct + 4 * j
                if ct < 4: base = 5 if j < 2 else 9; off = ct * 32
                else: base = 10 if j < 2 else 11; off = 0
                off += (j & 1) * 32 * 1152
                a(f"ds_read_b64_tr_b16 v[{r}:{r+1}], v{base} offset:{off}")
                a(f"ds_read_b64_tr_b16 v[{r+2}:{r+3}], v{base} offset:{off + 4 * 1152}")
            a("s_waitcnt lgkmcnt(7)")
        CTXC = L_SM; CST = 1088
        CTX = L_SM + 8 * CST; XST = 272
        a(f"""
        v_lshlrev_b32 v5, 10, v13
        s_lshl_b32 s36, s33, 3
        s_add_u32 s36, s36, {WS_T1S + 512}
        s_lshl_b32 s37, s3, 18               ; (16b + 8half) * 32768
        s_lshl_b32 s39, s33, 10
        s_add_u32 s37, s37, s39
        s_add_u32 s37, s37, {WS_BP}
        s_mul_i32 s39, s3, {CST}
        s_add_u32 s39, s39, {CTXC}
        v_add_u32 v8, s39, v4
        v_and_b32 v9, 3, v2
        v_lshlrev_b32 v9, 1, v9
        v_bfe_u32 v10, v0, 2, 1
        v_add_u32 v9, v9, v10
        v_mul_u32_u24 v9, {CST}, v9
        v_lshl_add_u32 v9, v1, 4, v9
        v_add_u32 v9, {CTXC}, v9
        v_and_b32 v10, 3, v2
        v_mul_u32_u24 v10, {XST}, v10
        v_lshl_add_u32 v10, v1, 3, v10
        s_lshl_b32 s39, s3, 5
        s_add_u32 s39, s39, {CTX}
        v_add_u32 v10, s39, v10
        v_lshrrev_b32 v11, 2, v2
        v_mul_u32_u24 v11, {XST}, v11
        v_lshl_add_u32 v11, v1, 4, v11
        v_add_u32 v11, {CTX}, v11
        s_mul_i32 s38, s33, 9216
        s_add_u32 s38, s38, {WS_YB}
        s_lshl_b32 s39, s3, 8
        s_add_u32 s39, s39, s38
        s_add_u32 s39, s39, 8192
        s_lshl_b32 s42, s3, 10
        s_add_u32 s38, s38, s42
        v_lshlrev_b32 v12, 2, v0
        s_and_b32 s42, s3, 1
        s_lshl_b32 s42, s42, 3
        """)
        if self.o.egb < 1: self.get_tag(16)
        if self.o.egb < 2: self.check_flags(14, 16)
        self.stamp(1, 20)
        a("s_mov_b64 exec, 0xffff")
        self.poll(["buffer_load_dwordx2 v[18:19], v5, s[4:7], s36 offen sc1"], [18, 19], 16, sleep=2)
        G = 48
        for s in range(8):
            a(f"buffer_load_dwordx4 {vr(G + 4*s)}, v4, s[4:7], s37 offen sc1\ns_add_u32 s37, s37, 32768")
        self.stamp(2, 24)
        a("v_mov_b32 v20, v18")
        for d in ("quad_perm:[1,0,3,2]", "quad_perm:[2,3,0,1]", "row_ror:4", "row_ror:8"):
            a(f"v_max_f32_dpp v20, v20, v20 {d} {DPPM}")
        a("v_sub_f32 v21, v18, v20\nv_exp_f32 v21, v21\nv_mul_f32 v22, v21, v19")
        for d in ("quad_perm:[1,0,3,2]", "quad_perm:[2,3,0,1]", "row_ror:4", "row_ror:8"):
            a(f"v_add_f32_dpp v22, v22, v22 {d} {DPPM}")
        a("v_rcp_f32 v22, v22\nv_mul_f32 v21, v21, v22")
        AC = 24
        ext = 1 if self.stamps else 0
        for s in range(8):
            r = G + 4 * s
            a(f"v_readlane_b32 s41, v21, s42\ns_add_u32 s42, s42, 1")
            a(f"s_waitcnt vmcnt({7 - s + ext})")
            for w in range(4):
                a(f"v_lshlrev_b32 v{32+2*w}, 16, v{r+w}\nv_and_b32 v{33+2*w}, 0xffff0000, v{r+w}")
            for e in range(8):
                if s == 0: a(f"v_mul_f32 v{AC+e}, s41, v{32+e}")
                else: a(f"v_fmac_f32 v{AC+e}, s41, v{32+e}")
        for w in range(4): a(f"v_cvt_pk_bf16_f32 v{32+w}, v{AC+2*w}, v{AC+2*w+1}")
        a("ds_write_b128 v8, v[32:35]")
        self.stamp(3, 20)
        a("s_waitcnt lgkmcnt(0)\ns_barrier")
        for s in range(12):
            a(f"ds_read_b128 {vr(G + 4*s)}, v9 offset:{64*s}")
        for s in range(16):
            if s + 12 < 16: a(f"ds_read_b128 {vr(G + 4*(s+12))}, v9 offset:{64*(s+12)}")
            a(f"s_waitcnt lgkmcnt({min(12, 15 - s)})")
            acc = 24 + 4 * (s & 1)
            a(f"{MF} {vr(acc)}, {vr(WV + 4*s)}, {vr(G + 4*s)}, {'0' if s < 2 else vr(acc)}")
        for r in range(4): a(f"v_add_f32 v{24+r}, v{24+r}, v{28+r}")
        for r in range(4): a(f"v_add_f32_dpp v{24+r}, v{24+r}, v{24+r} row_ror:4 {DPPM}")
        a("""
        v_cvt_pk_bf16_f32 v32, v24, v25
        v_cvt_pk_bf16_f32 v33, v26, v27
        ds_write_b64 v10, v[32:33]
        s_waitcnt lgkmcnt(0)
        s_barrier
        """)
        O = 24
        for j in range(4): a(f"ds_read_b128 {vr(O + 4*j)}, v11 offset:{64*j}")
        ACC = 64
        for j in range(4):
            a(f"s_waitcnt lgkmcnt({3 - j})")
            for ct in range(5):
                acc = ACC + 4 * ct
                a(f"{MF} {vr(acc)}, {vr(O + 4*j)}, {vr(WO + 16*ct + 4*j)}, {'0' if j == 0 else vr(acc)}")
        Y = 48
        for ct in range(5): a(f"v_min_u32 v{Y+ct}, -2, v{ACC + 4*ct}")
        sk = a.new_label(self.L("L_bh2s"))
        a(f"""
        buffer_store_dwordx4 {vr(Y)}, v4, s[4:7], s38 offen sc1
        s_cmp_ge_u32 s3, 4
        s_cbranch_scc1 {sk}
        buffer_store_dword v{Y+4}, v12, s[4:7], s39 offen sc1
        {sk}:
        """)
        self.stamp(4, 20)

    def role_a(self):
        self.role = "a"
        a = self.a; L = self.L
        a("s_sub_u32 s44, s3, 4")
        if "CLR" in self.en and self.fused: self.clear_finish()
        a(f"""
        s_lshr_b32 s28, s2, 5
        s_cmp_eq_u32 s28, 6
        s_cbranch_scc1 {L('L_bh2')}
        s_lshr_b32 s28, s2, 6
        s_cmp_eq_u32 s28, 1
        s_cbranch_scc1 {L('L_ba_a')}
        """)
        a.label(L("L_amain"))
        if "A" in self.en:
            self.a_main()
        elif "RED" in self.en:
            a(f"s_cmp_lg_u32 s44, 0\ns_cbranch_scc1 {L('L_fin')}")
        if "RED" in self.en:
            self.reducer()

    def a_main(self):
        a = self.a; L = self.L; D = self.o.D
        assert D <= 16
        self.srd(12, P_K, 64 << 20); self.srd(16, P_V, 64 << 20)
        a(f"""
        s_lshl_b32 s49, s45, 20
        s_mul_i32 s33, s45, {self.o.rot}      ; rotation
        s_cmp_lt_u32 s45, 32
        s_cselect_b32 s32, 12, 16
        s_cselect_b32 s34, 1, 0
        s_lshl_b32 s30, s46, 2
        s_add_u32 s30, s30, s44
        s_add_u32 s30, s30, s33
        s_add_u32 s31, s30, s32
        s_and_b32 s30, s30, 127
        s_and_b32 s31, s31, 127
        s_lshl_b32 s30, s30, 13
        s_lshl_b32 s31, s31, 13
        s_add_u32 s30, s30, s49
        s_add_u32 s31, s31, s49
        s_lshl_b32 s28, s46, 2
        s_add_u32 s28, s28, s44
        s_sub_u32 s28, s28, s32
        s_sub_u32 s28, s28, 1
        v_mov_b32 v224, s28
        s_mul_i32 s32, s32, 3
        s_add_u32 s33, s33, s32
        s_sub_u32 s32, 128, s32
        s_lshl_b32 s48, s45, 12
        s_add_u32 s48, s48, {WS_OP + 768}
        s_mov_b32 s50, 0x05040100
        s_mov_b32 s51, 0x07060302
        v_lshlrev_b32 v4, 4, v0
        v_mov_b32 v1, v4
        v_add_u32 v2, 4096, v4
        v_mov_b32 v3, {CSC}
        v_mov_b32 v4, {NEGMAX}
        v_mov_b32 v5, 0
        v_and_b32 v6, 15, v0
        v_and_b32 v7, 1, v0
        v_lshlrev_b32 v6, 4, v6
        v_lshl_add_u32 v6, v7, 8, v6
        v_add_u32 v6, {L_QA}, v6
        v_xor_b32 v7, 16, v6
        v_cmp_lt_u32 vcc, 31, v0
        v_mov_b32 v226, 0
        v_mov_b32 v227, {L_CNT + 4 * 10}
        """)
        for r in range(32, 64): a(f"v_mov_b32 v{r}, 0")
        a(f"""
        v_lshrrev_b32 v228, 4, v0
        v_and_b32 v229, 1, v0
        v_lshl_add_u32 v228, v228, 1, v229
        v_lshlrev_b32 v228, 4, v228
        s_lshl_b32 s53, s44, 10
        s_add_u32 s53, s53, {L_ACOMB}
        v_add_u32 v228, s53, v228
        s_lshl_b32 s53, s44, 4
        s_add_u32 s53, s53, {L_AST}
        v_lshlrev_b32 v229, 3, v229
        v_add_u32 v230, s53, v229
        v_add_u32 v231, {L_AST}, v229
        v_bfe_u32 v232, v0, 3, 2
        v_and_b32 v233, 7, v0
        v_lshlrev_b32 v233, 4, v233
        v_lshl_add_u32 v233, v232, 8, v233
        v_add_u32 v233, {L_ACOMB}, v233
        v_and_b32 v234, 1, v0
        v_lshlrev_b32 v234, 8, v234
        v_lshl_add_u32 v234, v232, 6, v234
        v_bfe_u32 v232, v0, 1, 2
        v_lshl_add_u32 v234, v232, 4, v234   ; h*256 + j*64 + g'*16
        v_cndmask_b32 v234, v234, v1, vcc
        v_mov_b32 v236, {L_CNT + 4 * 15}
        v_mov_b32 v237, 1
        s_lshl_b32 s54, s47, 10
        s_add_u32 s54, s54, {WS_OP}
        """)
        KA, VA, KB, VB = 96, 128, 160, 192
        def issue(srd, base, e, soff, d=None):
            a(f"s_waitcnt vmcnt({(d or D) - 1})")
            a(f"buffer_load_dwordx4 {vr(base + 4*e)}, v{1 if e < 4 else 2}, {srd}, {soff} offen offset:{(e & 3) * 1024} nt")
        def issues(srd, base, es, soff):
            if self.o.Dlo == D:
                for e in es: issue(srd, base, e, soff)
                return
            lo = a.new_label(L("L_ilo")); en = a.new_label(L("L_ien"))
            a(f"s_cmp_lg_u32 s34, 0\ns_cbranch_scc1 {lo}")
            for e in es: issue(srd, base, e, soff)
            a(f"s_branch {en}\n{lo}:")
            for e in es: issue(srd, base, e, soff, self.o.Dlo)
            a.label(en)
        def grab():
            a(f"""
            v_mov_b32 v224, 1
            s_mov_b64 exec, 1
            buffer_atomic_add v224, v226, s[4:7], s48 offen sc0 sc1
            s_mov_b64 exec, -1
            """)
        def gate_wait():
            if not self.fused: return
            lab = a.new_label(L("L_gw"))
            a(f"""
            s_mov_b32 s29, {SPIN * 8}
            {lab}:
            ds_read_b32 v225, v227
            s_sub_u32 s29, s29, 1
            s_cbranch_scc1 {lab}_x
            s_waitcnt lgkmcnt(0)
            v_readfirstlane_b32 s28, v225
            s_cmp_gt_u32 s28, s44
            s_cbranch_scc1 {lab}_x
            s_sleep 1
            s_branch {lab}
            {lab}_x:
            s_waitcnt lgkmcnt(0)
            """)
        def ring(d):
            for e in range(8): issue("s[12:15]", KA, e, "s30", d)
            for e in range(8): issue("s[16:19]", VA, e, "s30", d)
            for e in range(8): issue("s[12:15]", KB, e, "s31", d)
            for e in range(8): issue("s[16:19]", VB, e, "s31", d)
        sk = a.new_label(L("L_t3q"))
        a(f"s_lshr_b32 s28, s2, 5\ns_cmp_lg_u32 s28, 4\ns_cbranch_scc1 {sk}\ns_cmp_lg_u32 s3, 4\ns_cbranch_scc1 {sk}")
        self.fetch_q(64)
        a.label(sk)
        gate_wait()
        self.stamp(9)
        ring(self.o.D0)
        self.wait_lds(9, 1, 28, 1)
        a("ds_read_b128 v[8:11], v6\nds_read_b128 v[12:15], v7")
        self.get_tag(28)
        a("s_waitcnt lgkmcnt(0)")
        ext = 0
        U = 16; P = 24; ACC = 32; T = 64
        def body(K, V, mode):
            if mode == "e1": a("s_waitcnt vmcnt(8)")
            for half in range(2):
                es = range(4 * half, 4 * half + 4)
                for e in es: a(f"v_dot2_f32_bf16 v{U+e}, v{K+4*e}, v8, 0")
                for w in range(1, 4):
                    for e in es: a(f"v_dot2c_f32_bf16 v{U+e}, v{K+4*e+w}, v{8+w}")
                for w in range(4):
                    for e in es: a(f"v_dot2c_f32_bf16_dpp v{U+e}, v{K+4*e+w}, v{12+w} quad_perm:[1,0,3,2] {DPPM}")
                if mode == "loop":
                    if half == 0 and self.o.gpos == 0: grab()
                    issues("s[12:15]", K, es, "s30")
            for d in ("quad_perm:[2,3,0,1]", "row_ror:4", "row_ror:8"):
                for e in range(8): a(f"v_add_f32_dpp v{U+e}, v{U+e}, v{U+e} {d} {DPPM}")
            for e in range(8): a(f"v_mul_f32 v{U+e}, v{U+e}, v3")
            a(f"""
            v_max3_f32 v28, v{U}, v{U+1}, v{U+2}
            v_max3_f32 v28, v28, v{U+3}, v{U+4}
            v_max3_f32 v28, v28, v{U+5}, v{U+6}
            v_max3_f32 v28, v28, v{U+7}, v4
            """)
            self.xg_reduce("v_max_f32", 28, 29)
            a("v_sub_f32 v29, v4, v28")
            for e in range(8): a(f"v_sub_f32 v{U+e}, v{U+e}, v28")
            a("v_exp_f32 v29, v29")
            for e in range(8): a(f"v_exp_f32 v{U+e}, v{U+e}")
            a(f"""
            v_mov_b32 v4, v28
            v_cmp_neq_f32 vcc, 1.0, v29
            v_fma_f32 v5, v5, v29, v{U}
            v_add_f32 v30, v{U+1}, v{U+2}
            v_add_f32 v31, v{U+3}, v{U+4}
            v_add_f32 v5, v5, v{U+5}
            v_add_f32 v30, v30, v{U+6}
            v_add_f32 v31, v31, v{U+7}
            v_add_f32 v5, v5, v30
            v_add_f32 v5, v5, v31
            """)
            for w in range(4): a(f"v_cvt_pk_bf16_f32 v{P+w}, v{U+2*w}, v{U+2*w+1}")
            sk = a.new_label(L("L_nors"))
            a(f"s_cbranch_vccz {sk}")
            for r in range(32): a(f"v_mul_f32 v{ACC+r}, v29, v{ACC+r}")
            a.label(sk)
            if mode == "e1": self.xg_reduce("v_add_f32", 5, 29)
            if mode == "loop" and self.o.gpos == 1: grab()
            for q in range(4):
                if mode == "e1": a(f"s_waitcnt vmcnt({6 - 2*q})")
                for i in range(8):
                    a(f"v_perm_b32 v{T+4*i+q}, v{V + 4*(2*q+1) + (i >> 1)}, v{V + 4*(2*q) + (i >> 1)}, s{50 + (i & 1)}")
                if mode == "loop":
                    issues("s[16:19]", V, (2*q, 2*q+1), "s30")
            for i in range(8):
                a(f"{MF} {vr(ACC+4*i)}, {vr(T+4*i)}, {vr(P)}, {vr(ACC+4*i)}")
        def head(exit_label):
            a(f"""
            s_waitcnt vmcnt({16 if self.o.gpos == 0 else 8})
            v_readfirstlane_b32 s30, v224
            s_add_u32 s28, s30, 1
            s_cmp_ge_i32 s28, s32
            s_cbranch_scc1 {exit_label}
            s_add_u32 s30, s28, s33
            s_and_b32 s30, s30, 127
            s_lshl_b32 s30, s30, 13
            s_add_u32 s30, s30, s49
            """)
            if self.o.prog and self.stamps:
                a(f"""
                s_memrealtime s[92:93]
                s_lshl_b32 s94, s45, 7
                s_add_u32 s94, s94, s28
                s_lshl_b32 s94, s94, 7
                s_add_u32 s94, s94, {202 << 20}
                s_waitcnt lgkmcnt(0)
                v_mov_b32 v250, s92
                v_mov_b32 v251, s93
                s_mov_b64 exec, 1
                buffer_store_dwordx2 v[250:251], v226, s[4:7], s94 offen
                s_mov_b64 exec, -1
                """)
        lp = a.new_label(L("L_aloop")); eA = a.new_label(L("L_aeA")); eB = a.new_label(L("L_aeB")); dn = a.new_label(L("L_adone"))
        a.label(lp)
        head(eA); body(KA, VA, "loop")
        head(eB); body(KB, VB, "loop")
        a(f"s_branch {lp}")
        a.label(eA)
        body(KA, VA, "e0"); body(KB, VB, "e1")
        a(f"s_branch {dn}")
        a.label(eB)
        body(KB, VB, "e0"); body(KA, VA, "e1")
        a.label(dn)
        a("s_mov_b64 exec, 3\nds_write_b64 v230, v[4:5]")
        a("s_mov_b32 exec_lo, 0x00030003\ns_mov_b32 exec_hi, 0x00030003")
        for i in range(8): a(f"ds_write_b128 v228, {vr(ACC+4*i)} offset:{128*i}")
        nc = a.new_label(L("L_nocomb"))
        a(f"""
        s_mov_b64 exec, 1
        ds_add_rtn_u32 v238, v236, v237
        s_mov_b64 exec, -1
        s_waitcnt lgkmcnt(0)
        v_readfirstlane_b32 s55, v238
        s_cmp_lg_u32 s55, 3
        s_cbranch_scc1 {nc}
        """)
        for w in range(4): a(f"ds_read_b64 v[{16+2*w}:{17+2*w}], v231 offset:{16*w}")
        for w in range(4):
            a(f"ds_read_b128 {vr(32+8*w)}, v233 offset:{1024*w}\nds_read_b128 {vr(36+8*w)}, v233 offset:{1024*w+128}")
        a(f"""
        s_waitcnt lgkmcnt(8)
        v_max3_f32 v24, v16, v18, v20
        v_max_f32 v24, v24, v22
        v_sub_f32 v16, v16, v24
        v_sub_f32 v18, v18, v24
        v_sub_f32 v20, v20, v24
        v_sub_f32 v22, v22, v24
        v_exp_f32 v16, v16
        v_exp_f32 v18, v18
        v_exp_f32 v20, v20
        v_exp_f32 v22, v22
        v_mul_f32 v25, v16, v17
        v_fmac_f32 v25, v18, v19
        v_fmac_f32 v25, v20, v21
        v_fmac_f32 v25, v22, v23
        s_waitcnt lgkmcnt(6)
        """)
        for e in range(8): a(f"v_mul_f32 v{64+e}, v16, v{32+e}")
        for w in range(1, 4):
            a(f"s_waitcnt lgkmcnt({6 - 2*w})")
            for e in range(8): a(f"v_fmac_f32 v{64+e}, v{16+2*w}, v{32+8*w+e}")
        for w in range(4): a(f"v_cvt_pk_bf16_f32 v{72+w}, v{64+2*w}, v{65+2*w}")
        a(f"""
        v_mov_b32_dpp v72, v24 quad_perm:[0,0,0,0] row_mask:0xc bank_mask:0xf
        v_mov_b32_dpp v73, v25 quad_perm:[0,0,0,0] row_mask:0xc bank_mask:0xf
        v_mov_b32_dpp v74, v24 quad_perm:[1,1,1,1] row_mask:0xc bank_mask:0xf
        v_mov_b32_dpp v75, v25 quad_perm:[1,1,1,1] row_mask:0xc bank_mask:0xf
        """)
        self.sanitize([72, 73, 74, 75])
        a(f"""
        s_mov_b32 exec_hi, 0xff
        buffer_store_dwordx4 v[72:75], v234, s[4:7], s54 offen sc1
        s_mov_b64 exec, -1
        """)
        self.stamp(11)
        a(f"s_branch {L('L_fin')}")
        a.label(nc)
        a(f"s_cmp_lg_u32 s55, 0\ns_cbranch_scc1 {L('L_fin')}")

    def reducer(self):
        a = self.a; L = self.L
        self.srd(12, P_OUT, 4608 * 2)
        t2 = a.new_label(L("L_rt2")); tj = a.new_label(L("L_rtj"))
        a(f"""
        s_cmp_ge_u32 s2, 72
        s_cbranch_scc1 {L('L_fin')}
        s_cmp_ge_u32 s2, 36
        s_cselect_b32 s56, 36, 0
        s_cselect_b32 s57, {WS_YB - WS_YA}, 0
        s_cselect_b32 s60, 1152, 0
        s_movk_i32 s61, 224
        s_cselect_b32 s61, 192, s61
        s_sub_u32 s56, s2, s56               ; r
        s_add_u32 s57, s57, {WS_YA}
        s_mul_i32 s58, s56, 7282
        s_lshr_b32 s58, s58, 16              ; b = r/9
        s_mul_i32 s59, s58, 9
        s_sub_u32 s59, s56, s59              ; grp
        s_mul_i32 s62, s58, 2304
        s_add_u32 s60, s60, s62
        s_lshl_b32 s62, s59, 7
        s_add_u32 s60, s60, s62
        s_lshl_b32 s62, s59, 10
        s_add_u32 s57, s57, s62
        v_lshrrev_b32 v1, 4, v0
        v_and_b32 v2, 15, v0
        v_mul_u32_u24 v3, 9216, v1
        v_and_b32 v6, 31, v0
        v_add_u32 v6, s61, v6
        s_cmp_eq_u32 s59, 8
        s_cbranch_scc1 {t2}
        s_lshl_b32 s62, s58, 8
        v_lshl_add_u32 v3, v2, 4, v3
        v_lshlrev_b32 v5, 1, v0
        s_branch {tj}
        {t2}:
        s_lshl_b32 s62, s58, 6
        v_lshrrev_b32 v4, 2, v2
        v_lshl_add_u32 v3, v4, 8, v3
        v_and_b32 v4, 3, v2
        v_lshl_add_u32 v3, v4, 4, v3
        v_lshl_add_u32 v5, v2, 2, v1
        v_lshlrev_b32 v5, 1, v5
        {tj}:
        s_add_u32 s57, s57, s62
        """)
        for k in range(8): a(f"s_add_u32 s{16+k}, s57, {k * 4 * 9216}")
        self.flag_wg(6)
        self.check_flags(6, 44)
        self.stamp(12)
        self.fpoll([f"buffer_load_dwordx4 {vr(8+4*k)}, v3, s[4:7], s{16+k} offen sc1" for k in range(8)], range(8, 40), 44, depth=self.o.pdr or self.o.pd, lsleep=self.o.slr)
        for c in range(16): a(f"v_add_f32 v{48+c}, v{8+c}, v{24+c}")
        for st in (8, 4):
            for c in range(st): a(f"v_add_f32 v{48+c}, v{48+c}, v{48+st+c}")
        a("""
        v_permlane32_swap_b32 v48, v50
        v_permlane32_swap_b32 v49, v51
        v_add_f32 v48, v48, v50
        v_add_f32 v49, v49, v51
        v_permlane16_swap_b32 v48, v49
        v_add_f32 v48, v48, v49
        v_cvt_pk_bf16_f32 v48, v48, v48
        buffer_store_short v48, v5, s[12:15], s60 offen
        """)
        self.stamp(14)
        if self.fused and not self.o.nowait:
            a(f"""
            s_cmp_lg_u32 s2, 0
            s_cbranch_scc1 {L('L_fin')}
            v_mov_b32 v52, s{S_TAG}
            v_mov_b32 v53, 0
            s_mov_b64 exec, 1
            buffer_store_dword v52, v53, s[4:7], 0 offen sc1
            s_mov_b64 exec, -1
            """)

def emit(fname, o):
    if o.mode == "fused":
        g = Gen({"CLR", "PQ", "AT", "BH1", "BH2", "BA", "A", "RED"}, True, o)
        a = g.build()
        txt = kernel_file([(NAME + "_kernel", (256, 1, 1), (512, 1, 1), LDS_SIZE)], [(NAME + "_kernel", a.text(), 256, 102, 256)])
    else:
        phases = [("k0", {"CLR"}), ("k1", {"PQ"}), ("k2", {"BH1", "A"}), ("k3", {"BA", "AT"}), ("k4", {"BH2"}), ("k5", {"RED"})]
        ks = []; ls = []
        for nm, en in phases:
            g = Gen(en, False, o, tag="_" + nm)
            a = g.build()
            ks.append((nm + "_kernel", a.text(), 256, 102, 256)); ls.append((nm + "_kernel", (256, 1, 1), (512, 1, 1), LDS_SIZE))
        txt = kernel_file(ls, ks)
    open(fname, "w").write(txt)

if __name__ == "__main__":
    import argparse
    ap = argparse.ArgumentParser()
    ap.add_argument("out"); ap.add_argument("--mode", default="fused"); ap.add_argument("-D", type=int, default=10); ap.add_argument("--DS", type=int, default=16)
    ap.add_argument("--stamps", action="store_true"); ap.add_argument("--D0", type=int, default=10); ap.add_argument("--g", default="2,2,4"); ap.add_argument("--gat", type=int, default=0); ap.add_argument("--gbh1", type=int, default=0); ap.add_argument("--gbh2", type=int, default=0); ap.add_argument("--pd", type=int, default=1); ap.add_argument("--nowait", action="store_true"); ap.add_argument("--eg", type=int, default=2); ap.add_argument("--ega", type=int, default=2); ap.add_argument("--egb", type=int, default=2); ap.add_argument("--atl", type=int, default=1); ap.add_argument("--sla", type=int, default=1); ap.add_argument("--slr", type=int, default=1); ap.add_argument("--pde", type=int, default=1); ap.add_argument("--sle", type=int, default=2); ap.add_argument("--gpos", type=int, default=0); ap.add_argument("--pdr", type=int, default=0); ap.add_argument("--atgate", type=int, default=9); ap.add_argument("--prog", action="store_true"); ap.add_argument("--dbg", action="store_true"); ap.add_argument("--t2e", type=int, default=0); ap.add_argument("--rot", type=int, default=0); ap.add_argument("--Dlo", type=int, default=0); ap.add_argument("--gpq", type=int, default=0); ap.add_argument("--DC", type=int, default=8); ap.add_argument("--DB", type=int, default=8); ap.add_argument("--atw", type=int, default=4); ap.add_argument("--cap", type=int, default=1000); ap.add_argument("--qfirst", type=int, default=192); ap.add_argument("--cheap", type=int, default=1); ap.add_argument("--sprio", type=int, default=2); ap.add_argument("--bh2hold", type=int, default=0); ap.add_argument("--sh1", default=""); ap.add_argument("--sh2", default=""); ap.add_argument("--NC0", type=int, default=16)
    x = ap.parse_args()
    x.Dlo = x.Dlo or x.D
    x.g = [int(v) for v in x.g.split(",")]
    if x.sh1: SH1 = tuple(int(v) for v in x.sh1.split(","))
    if x.sh2: SH2 = tuple(int(v) for v in x.sh2.split(","))
    assert sum(SH1) == 128 and sum(SH2) == 128
    emit(x.out, x)
```

```python
import sys, math, struct
from asmlib import *

WS_EP   = 0x00000
WS_OP   = 0x10000
WS_T1S  = 0x50000
WS_QABS = 0x70000
WS_FLG  = 0x08000
WS_YA   = 0x90000
WS_YB   = 0xD8000
WS_BP   = 0x200000
WS_SIZE = 0x10000000
STAMPOFF = 200 << 20
PH_OFF = 201 << 20
L_PQ    = 73728
L_P     = 131072
L_MX    = 139264
L_ACOMB = 147456
L_AST   = 151552
L_CNT   = 151616
L_SM    = 151680
L_QA    = L_SM + 6400
LDS_SIZE = 163840
OOB = 0x40000000
NEGMAX = 0xFF7FFFFF
CSC = struct.unpack("<I", struct.pack("<f", (128 ** -0.5) * math.log2(math.e)))[0]
DPPM = "row_mask:0xf bank_mask:0xf"
SPIN = 200000
P_AX, P_K, P_V, P_WQ, P_WO, P_BX, P_CKV, P_BWQ, P_WUK, P_WUV, P_BWO, P_OUT, P_DBG, P_WS = [64 + 2 * i for i in range(14)]
S_TAG = 63
NSPLIT_B = 16
SH1 = (30, 30, 45, 23)
SH2 = (26, 26, 41, 35)
def share(pair, t):
    sh = SH1 if pair < 32 else SH2
    u0 = sum(sh[:t])
    return 32 * u0, 32 * (u0 + sh[t])
def vr(b, n=4): return f"v[{b}:{b+n-1}]"
MF = "v_mfma_f32_16x16x32_bf16"

class Gen:
    def __init__(self, en, fused, opt, tag=""):
        self.a = Asm(); self.en = en; self.fused = fused; self.o = opt; self.stamps = opt.stamps and fused; self.tag = tag
        self.role = ""
        self.dbgmap = {("a", 8): 2, ("t1", 1): 3, ("bh1", 2): 4, ("t1", 7): 5, ("bh2", 4): 6, ("a", 11): 7, ("at", 2): 8, ("a", 14): 9}
    def L(self, s): return s + self.tag
    def srd(self, d, p, size):
        self.a(f"s_mov_b32 s{d}, s{p}\ns_mov_b32 s{d+1}, s{p+1}\ns_mov_b32 s{d+2}, {size}\ns_mov_b32 s{d+3}, 0x20000")
    def stamp(self, k, vt=250):
        if self.o.dbg and self.fused:
            slot = self.dbgmap.get((self.role, k))
            if slot is None: return
            self.a(f"""
            s_memrealtime s[92:93]
            s_mov_b32 s8, s{P_DBG}
            s_mov_b32 s9, s{P_DBG+1}
            s_mov_b32 s10, 256
            s_mov_b32 s11, 0x20000
            s_waitcnt lgkmcnt(0)
            v_mov_b32 v{vt}, s92
            v_mov_b32 v{vt+2}, 0
            s_mov_b64 s[96:97], exec
            s_mov_b64 exec, 1
            buffer_atomic_umax v{vt}, v{vt+2}, s[8:11], 0 offen offset:{4 * slot} sc1
            s_mov_b64 exec, s[96:97]
            """)
            return
        if not self.stamps: return
        self.a(f"""
        s_memrealtime s[92:93]
        s_lshl_b32 s94, s2, 7
        s_add_u32 s94, s94, {PH_OFF + 8 * k}
        s_waitcnt lgkmcnt(0)
        v_mov_b32 v{vt}, s92
        v_mov_b32 v{vt+1}, s93
        v_mov_b32 v{vt+2}, 0
        s_mov_b64 s[96:97], exec
        s_mov_b64 exec, 1
        buffer_store_dwordx2 v[{vt}:{vt+1}], v{vt+2}, s[4:7], s94 offen
        s_mov_b64 exec, s[96:97]
        """)
    def wait_lds(self, slot, target, vt, sleep=0):
        a = self.a; lab = a.new_label(self.L("L_wl"))
        a(f"""
        v_mov_b32 v{vt}, {L_CNT + 4 * slot}
        s_mov_b32 s29, {SPIN * 8}
        {lab}:
        ds_read_b32 v{vt+1}, v{vt}
        s_sub_u32 s29, s29, 1
        s_cbranch_scc1 {lab}_x
        s_waitcnt lgkmcnt(0)
        v_readfirstlane_b32 s28, v{vt+1}
        s_cmp_ge_u32 s28, {target}
        s_cbranch_scc1 {lab}_x
        """)
        if sleep: a(f"s_sleep {sleep}")
        a(f"s_branch {lab}\n{lab}_x:\ns_waitcnt lgkmcnt(0)")
    def sbar(self, k, vt):
        self.a(f"""
        s_waitcnt lgkmcnt(0)
        v_mov_b32 v{vt}, {L_CNT + 4 * k}
        v_mov_b32 v{vt+1}, 1
        s_mov_b64 exec, 1
        ds_add_u32 v{vt}, v{vt+1}
        s_mov_b64 exec, -1
        """)
        self.wait_lds(k, 4, vt)
    def signal(self, k, vt):
        if not self.fused: return
        self.a(f"""
        v_mov_b32 v{vt}, {L_CNT + 4 * k}
        v_mov_b32 v{vt+1}, 1
        s_mov_b64 exec, 1
        ds_add_u32 v{vt}, v{vt+1}
        s_mov_b64 exec, -1
        """)
    def get_tag(self, vt):
        if not self.fused: return
        self.wait_lds(12, 1, vt, 1)
        self.a(f"ds_read_b32 v{vt+1}, v{vt} offset:4\ns_waitcnt lgkmcnt(0)\nv_readfirstlane_b32 s{S_TAG}, v{vt+1}")
    def check_flags(self, voff, vt):
        if not self.fused: return
        a = self.a; lab = a.new_label(self.L("L_cf"))
        a(f"""
        s_mov_b32 s29, {SPIN}
        {lab}:
        buffer_load_dword v{vt+1}, v{voff}, s[4:7], 0 offen sc1
        s_sub_u32 s29, s29, 1
        s_cbranch_scc1 {lab}_x
        s_waitcnt vmcnt(0)
        v_cmp_ne_u32 vcc, s{S_TAG}, v{vt+1}
        s_cbranch_vccz {lab}_x
        s_mov_b64 exec, vcc
        s_sleep 4
        s_branch {lab}
        {lab}_x:
        s_mov_b64 exec, -1
        s_waitcnt vmcnt(0)
        """)
    def flag_wg(self, v):
        self.a(f"v_lshlrev_b32 v{v}, 7, v{v}\nv_add_u32 v{v}, {WS_FLG}, v{v}")
    def flag_aid(self, v):
        self.a(f"v_lshlrev_b32 v{v}, 10, v{v}\nv_add_u32 v{v}, {WS_OP + 896}, v{v}")
    def gate(self, val, vt):
        if not self.fused: return
        a = self.a; lab = a.new_label(self.L("L_gate"))
        a(f"""
        s_cmp_lg_u32 s3, 0
        s_cbranch_scc1 {lab}
        v_mov_b32 v{vt}, {L_CNT + 4 * 10}
        v_mov_b32 v{vt+1}, {val}
        ds_write_b32 v{vt}, v{vt+1}
        {lab}:
        """)
    def fetch_q(self, vb, gate_after_flags=False):
        a = self.a
        if "A" not in self.en: return
        a(f"""
        s_and_b32 s52, s45, 15
        s_lshl_b32 s53, s52, 2
        s_add_u32 s53, s53, 64
        v_bfe_u32 v{vb}, v0, 3, 2
        v_add_u32 v{vb+1}, s53, v{vb}
        """)
        self.flag_wg(vb + 1)
        a(f"""
        s_lshl_b32 s53, s45, 12
        s_add_u32 s53, s53, {WS_OP + 896}
        v_mov_b32 v{vb+2}, s53
        v_cmp_lt_u32 vcc, 31, v0
        v_cndmask_b32 v{vb+1}, v{vb+1}, v{vb+2}, vcc
        v_and_b32 v{vb+2}, 7, v0
        v_lshlrev_b32 v{vb+2}, 4, v{vb+2}
        v_lshl_add_u32 v{vb+2}, v{vb}, 10, v{vb+2}
        s_lshl_b32 s52, s52, 12
        s_lshr_b32 s53, s45, 4
        s_lshl_b32 s53, s53, 7
        s_add_u32 s52, s52, s53
        s_add_u32 s52, s52, {WS_T1S + 64 * 1024}
        v_lshlrev_b32 v{vb+3}, 4, v0
        v_add_u32 v{vb+3}, {L_QA}, v{vb+3}
        """)
        self.check_flags(vb + 1, vb + 8)
        if gate_after_flags and self.fused:
            a(f"v_mov_b32 v{vb+8}, {L_CNT + 4 * 10}\nv_mov_b32 v{vb+9}, 4\nds_write_b32 v{vb+8}, v{vb+9}")
        a("s_mov_b32 exec_hi, 0")
        self.poll([f"buffer_load_dwordx4 {vr(vb+4)}, v{vb+2}, s[4:7], s52 offen sc1"], range(vb + 4, vb + 8), vb + 8, sleep=2)
        a(f"""
        s_mov_b32 exec_hi, 0
        ds_write_b128 v{vb+3}, {vr(vb+4)}
        v_mov_b32 v{vb+8}, {L_CNT + 4 * 9}
        v_mov_b32 v{vb+9}, 1
        ds_write_b32 v{vb+8}, v{vb+9}
        s_mov_b64 exec, -1
        """)
    def maxchain(self, regs, vt):
        a = self.a
        rs = list(regs); cur = rs[0]; rest = rs[1:]
        while rest:
            if len(rest) >= 2:
                a(f"v_max3_u32 v{vt}, v{cur}, v{rest[0]}, v{rest[1]}"); rest = rest[2:]
            else:
                a(f"v_max_u32 v{vt}, v{cur}, v{rest[0]}"); rest = rest[1:]
            cur = vt
        a(f"v_cmp_eq_u32 vcc, -1, v{cur}")
        if self.o.nowait: a("s_mov_b64 vcc, 0")
    def fpoll(self, loads, regs, vt, depth=2, sleep=0, lsleep=0):
        a = self.a; lab = a.new_label(self.L("L_fp")); n = len(loads)
        a(f"s_mov_b32 s29, {SPIN}")
        for _ in range(depth - 1):
            for l in loads: a(l)
            if sleep: a(f"s_sleep {sleep}")
        a.label(lab)
        for l in loads: a(l)
        a(f"s_sub_u32 s29, s29, 1\ns_cbranch_scc1 {lab}_x\ns_waitcnt vmcnt({n * (depth - 1)})")
        self.maxchain(regs, vt)
        a(f"s_cbranch_vccz {lab}_x\ns_mov_b64 exec, vcc")
        if lsleep: a(f"s_sleep {lsleep}")
        a(f"s_branch {lab}\n{lab}_x:\ns_mov_b64 exec, -1")
    def poll(self, loads, regs, vt, sleep=4):
        a = self.a; lab = a.new_label(self.L("L_poll"))
        a(f"s_mov_b32 s29, {SPIN}\n{lab}:")
        for l in loads: a(l)
        a(f"s_sub_u32 s29, s29, 1\ns_cbranch_scc1 {lab}_x\ns_waitcnt vmcnt(0)")
        self.maxchain(regs, vt)
        a(f"s_cbranch_vccz {lab}_x\ns_mov_b64 exec, vcc")
        if sleep: a(f"s_sleep {sleep}")
        a(f"s_branch {lab}\n{lab}_x:\ns_mov_b64 exec, -1\ns_waitcnt vmcnt(0)")
    def sanitize(self, regs):
        for r in regs: self.a(f"v_min_u32 v{r}, -2, v{r}")
    def xg_reduce(self, op, x, y):
        self.a(f"""
        v_mov_b32 v{y}, v{x}
        v_permlane16_swap_b32 v{x}, v{y}
        {op} v{x}, v{x}, v{y}
        v_mov_b32 v{y}, v{x}
        v_permlane32_swap_b32 v{x}, v{y}
        {op} v{x}, v{x}, v{y}
        """)
    def dma(self, voff, srd, soff, imm=0, depth=None):
        self.a(f"s_waitcnt vmcnt({(depth or self.o.DS) - 1})")
        self.a(f"buffer_load_dwordx4 v{voff}, {srd}, {soff} offen offset:{imm} nt lds")

    def build(self):
        a = self.a; L = self.L
        a(f"""
        s_cmp_ge_u32 s2, 256
        s_cbranch_scc1 {L('L_end')}
        s_load_dwordx16 s[64:79], s[0:1], 0
        s_load_dwordx8 s[80:87], s[0:1], 64
        s_load_dwordx4 s[88:91], s[0:1], 96
        """)
        if self.stamps or self.o.dbg: a("s_memrealtime s[98:99]")
        l1 = a.new_label(L("L_id1")); l2 = a.new_label(L("L_id2"))
        a(f"""
        v_lshrrev_b32 v1, 6, v0
        v_and_b32 v0, 63, v0
        v_readfirstlane_b32 s3, v1
        v_lshlrev_b32 v1, 2, v0
        v_add_u32 v1, {L_CNT}, v1
        v_mov_b32 v2, 0
        s_mov_b64 exec, 0xffff
        ds_write_b32 v1, v2
        s_mov_b64 exec, -1
        s_lshr_b32 s28, s2, 5                ; 0..7
        s_lshl_b32 s29, s28, 2
        s_lshr_b32 s46, 0x13220030, s29
        s_and_b32 s46, s46, 15
        s_lshr_b32 s45, {(self.o.rat << 28) | (self.o.rt3 << 20) | (self.o.rt3 << 16)}, s29
        s_and_b32 s45, s45, 15               ; rotation : T3 4, AT 2
        s_add_u32 s45, s45, s2
        s_and_b32 s45, s45, 31
        s_lshr_b32 s29, 0x22, s28
        s_and_b32 s29, s29, 1
        s_lshl_b32 s29, s29, 5
        s_add_u32 s45, s45, s29
        s_lshr_b32 s28, s2, 6
        s_cmp_lg_u32 s28, 1
        s_cbranch_scc1 {l2}
        s_lshr_b32 s45, s2, 1
        s_and_b32 s46, s2, 1
        {l2}:
        s_lshl_b32 s47, s45, 2
        s_add_u32 s47, s47, s46
        v_lshrrev_b32 v1, 4, v0
        v_and_b32 v2, 15, v0
        v_lshlrev_b32 v4, 4, v0
        s_waitcnt lgkmcnt(0)
        """)
        self.srd(4, P_WS, WS_SIZE)
        if "CLR" in self.en: self.clear()
        a(f"""
        s_barrier
        s_cmp_ge_u32 s3, 4
        s_cbranch_scc1 {L('L_awave')}
        s_setprio {self.o.sprio}
        s_cmp_ge_u32 s2, 224
        s_cbranch_scc1 {L('L_at')}
        s_cmp_ge_u32 s2, 192
        s_cbranch_scc1 {L('L_bh2')}
        s_cmp_ge_u32 s2, 128
        s_cbranch_scc1 {L('L_bh1')}
        """)
        self.role_t1()
        a.label(L("L_at"));  self.role_at();  a(f"s_branch {L('L_fin')}")
        a.label(L("L_bh1")); self.role_bh1(); a(f"s_branch {L('L_fin')}")
        a.label(L("L_bh2")); self.role_bh2(); a(f"s_branch {L('L_fin')}")
        a.label(L("L_awave")); self.role_a()
        a.label(L("L_fin"))
        if self.stamps:
            a(f"""
            s_mov_b64 exec, -1
            s_waitcnt vmcnt(0)
            s_memrealtime s[92:93]
            s_lshl_b32 s94, s2, 3
            s_add_u32 s94, s94, s3
            s_lshl_b32 s94, s94, 4
            s_add_u32 s94, s94, {STAMPOFF}
            s_waitcnt lgkmcnt(0)
            v_mov_b32 v4, s98
            v_mov_b32 v5, s99
            v_mov_b32 v6, s92
            v_mov_b32 v7, s93
            v_mov_b32 v1, 0
            s_mov_b64 exec, 1
            buffer_store_dwordx4 v[4:7], v1, s[4:7], s94 offen
            """)
        a.label(L("L_end"))
        a("s_endpgm")
        return a

    def clear(self):
        a = self.a; L = self.L
        done = a.new_label(L("L_clrd")); c1 = a.new_label(L("L_clr1")); c2 = a.new_label(L("L_clr2")); lp = a.new_label(L("L_clrl"))
        a(f"""
        s_cmp_lg_u32 s3, 4
        s_cbranch_scc1 {done}
        s_setprio 3
        s_load_dword s{S_TAG}, s[{P_WS}:{P_WS+1}], 0
        v_mov_b32 v8, -1
        v_mov_b32 v9, -1
        v_mov_b32 v10, -1
        v_mov_b32 v11, -1
        s_lshl_b32 s30, s47, 10
        s_add_u32 s30, s30, {WS_OP}
        s_lshr_b32 s31, s2, 5
        s_cmp_eq_u32 s31, 6
        s_cselect_b32 s31, 0, -1
        s_cselect_b32 s32, {NEGMAX}, -1
        v_mov_b32 v12, s31
        v_mov_b32 v13, s31
        v_mov_b32 v14, s31
        v_mov_b32 v15, s31
        s_mov_b32 exec_lo, 0
        v_mov_b32 v12, s32
        v_mov_b32 v14, s32
        s_mov_b32 exec_lo, -1
        s_mov_b32 exec_hi, 0xffffff
        buffer_store_dwordx4 v[12:15], v4, s[4:7], s30 offen sc1
        s_mov_b64 exec, -1
        s_cmp_ge_u32 s2, 128
        s_cbranch_scc1 {c1}
        s_lshl_b32 s31, s2, 10
        s_add_u32 s31, s31, {WS_T1S}
        s_mov_b32 s32, 1
        s_branch {lp}
        {c1}:
        s_cmp_ge_u32 s2, 192
        s_cbranch_scc1 {c2}
        s_cmp_ge_u32 s2, 160
        s_cbranch_scc1 {done}
        s_sub_u32 s31, s2, 128
        s_lshl_b32 s31, s31, 12
        s_add_u32 s31, s31, {WS_QABS}
        s_mov_b32 s32, 4
        s_branch {lp}
        {c2}:
        s_and_b32 s31, s2, 31
        s_mul_i32 s31, s31, 9216
        s_add_u32 s31, s31, {WS_YB}
        s_cmp_ge_u32 s2, 224
        s_cselect_b32 s32, {WS_YB - WS_YA}, 0
        s_sub_u32 s31, s31, s32
        s_mov_b32 s32, 9
        {lp}:
        buffer_store_dwordx4 v[8:11], v4, s[4:7], s31 offen sc1
        s_add_u32 s31, s31, 1024
        s_sub_u32 s32, s32, 1
        s_cmp_lg_u32 s32, 0
        s_cbranch_scc1 {lp}
        {done}:
        """)
    def clear_finish(self):
        a = self.a; L = self.L
        done = a.new_label(L("L_clrf"))
        a(f"""
        s_cmp_lg_u32 s3, 4
        s_cbranch_scc1 {done}
        s_waitcnt lgkmcnt(0)
        s_mul_i32 s{S_TAG}, s{S_TAG}, 0x9E3779B1
        s_add_u32 s{S_TAG}, s{S_TAG}, 0x7F4A7C15
        v_mov_b32 v8, s{S_TAG}
        v_mov_b32 v9, s{S_TAG}
        v_mov_b32 v10, s{S_TAG}
        v_mov_b32 v11, s{S_TAG}
        v_mov_b32 v12, 1
        v_mov_b32 v13, s{S_TAG}
        v_mov_b32 v14, {L_CNT + 4 * 12}
        s_lshl_b32 s31, s2, 7
        s_add_u32 s31, s31, {WS_FLG}
        s_waitcnt vmcnt(0)
        s_mov_b64 exec, 0xff
        buffer_store_dwordx4 v[8:11], v4, s[4:7], s30 offen offset:896 sc1
        buffer_store_dwordx4 v[8:11], v4, s[4:7], s31 offen sc1
        s_mov_b64 exec, 1
        ds_write_b64 v14, v[12:13]
        s_mov_b64 exec, -1
        s_setprio 0
        """)
        self.stamp(8)
        if self.o.dbg:
            a(f"""
            s_not_b32 s92, s98
            v_mov_b32 v250, s92
            v_mov_b32 v251, s98
            s_mov_b64 exec, 1
            buffer_atomic_umax v250, v252, s[8:11], 0 offen sc1
            buffer_atomic_umax v251, v252, s[8:11], 0 offen offset:4 sc1
            s_mov_b64 exec, -1
            """)
        a.label(done)

    def role_t1(self):
        self.role = "t1"
        a = self.a; L = self.L
        f = lambda x: ((x & 7) << 1) | (x >> 3)
        PQ = "PQ" in self.en; BA = "BA" in self.en
        T2 = 192
        def c_setup():
            self.srd(20, P_CKV, 16 << 20)
            for r in range(16): a(f"v_xor_b32 v{24+r}, {f(r) << 4}, v4")
            a("s_sub_u32 s33, s2, 64\ns_lshl_b32 s36, s33, 18")
        def c_loads(s_row16):
            a(f"s_lshl_b32 s37, {s_row16}, 14\ns_add_u32 s34, s36, s37")
            for r in range(16):
                if r % 4 == 0: a("s_mov_b32 m0, s37")
                self.dma(24 + r, "s[20:23]", "s34", (r % 4) * 1024, self.o.DC)
                if r % 4 == 3: a("s_add_u32 s34, s34, 4096\ns_add_u32 s37, s37, 4096")
            a("s_lshl_b32 s37, s3, 14\ns_add_u32 s35, s36, s37\ns_add_u32 s35, s35, 131072")
            for r in range(self.o.t2e): t2_load(r, True)
        def t2_load(r, throttle=False):
            if r >= 16: return
            a(f"v_xor_b32 v23, {f(r) << 4}, v4")
            if throttle: a(f"s_waitcnt vmcnt({self.o.DC - 1})")
            a(f"buffer_load_dwordx4 {vr(T2 + 4*r)}, v23, s[20:23], s35 offen offset:{(r % 4) * 1024} nt")
            if r % 4 == 3: a("s_add_u32 s35, s35, 4096")
        if PQ:
            X = 64
            L_X = L_SM + 1024
            a(f"""
            s_cmp_lt_u32 s2, 64
            s_cselect_b32 s12, s{P_BWQ}, s{P_WQ}
            s_cselect_b32 s13, s{P_BWQ+1}, s{P_WQ+1}
            s_mov_b32 s14, {576 * 8192}
            s_mov_b32 s15, 0x20000
            s_cselect_b32 s16, s{P_BX}, s{P_AX}
            s_cselect_b32 s17, s{P_BX+1}, s{P_AX+1}
            s_mov_b32 s18, {4 * 1152}
            s_mov_b32 s19, 0x20000
            s_and_b32 s34, s2, 63
            s_lshl_b32 s34, s34, 7               ; h*256 + ch*128
            s_mul_i32 s35, s3, {18 * 65536}
            s_add_u32 s34, s34, s35
            s_mul_i32 s35, s3, {18 * 1024}
            s_add_u32 s35, s35, {L_PQ}
            v_lshlrev_b32 v5, 1, v1
            v_and_b32 v6, 7, v0
            v_xor_b32 v5, v5, v6
            v_lshlrev_b32 v5, 4, v5
            v_lshrrev_b32 v6, 3, v0
            v_lshl_add_u32 v5, v6, 13, v5
            s_mov_b32 m0, {L_X}
            v_and_b32 v6, 3, v2
            buffer_load_dwordx4 v4, s[16:19], 0 offen lds
            buffer_load_dwordx4 v4, s[16:19], 0 offen offset:1024 lds
            buffer_load_dwordx4 v4, s[16:19], 0 offen offset:2048 lds
            buffer_load_dwordx4 v4, s[16:19], 0 offen offset:3072 lds
            s_mov_b32 m0, {L_X + 4096}
            s_mov_b32 s38, 4096
            buffer_load_dwordx4 v4, s[16:19], s38 offen lds
            """)
            for i in range(18):
                a("s_mov_b32 m0, s35")
                self.dma(5, "s[12:15]", "s34", 0, 60)
                if i != 17: a("s_add_u32 s34, s34, 65536\ns_add_u32 s35, s35, 1024")
            if self.o.gpq == 0: self.gate(4, 16)
            a(f"""
            v_mul_u32_u24 v6, 1152, v6
            v_lshl_add_u32 v6, v1, 3, v6
            v_add_u32 v6, {L_X}, v6
            s_waitcnt vmcnt(18)
            """)
            for s in range(18):
                a(f"ds_read2_b64 {vr(X + 4*s)}, v6 offset0:{8*s} offset1:{8*s+4}")
                if s == 12: a("s_waitcnt lgkmcnt(8)")
            a(f"""
            v_lshrrev_b32 v7, 2, v0
            v_bfe_u32 v8, v0, 3, 2
            v_xor_b32 v8, s3, v8
            v_lshlrev_b32 v8, 5, v8
            v_lshl_add_u32 v8, v7, 7, v8
            v_and_b32 v7, 3, v0
            v_lshl_add_u32 v8, v7, 3, v8
            v_add_u32 v8, {L_PQ}, v8
            v_add_u32 v9, 0x8000, v8
            v_and_b32 v6, 3, v2
            v_lshlrev_b32 v6, 7, v6
            v_lshl_add_u32 v6, v1, 3, v6
            s_lshl_b32 s38, s3, 5
            s_add_u32 s38, s38, {L_SM}
            v_add_u32 v6, s38, v6
            """)
            self.get_tag(16)
            if self.o.gpq == 1:
                a("s_waitcnt vmcnt(8)"); self.gate(4, 16)
            a("s_waitcnt vmcnt(0)")
            if self.o.gpq == 2: self.gate(4, 16)
            self.stamp(0, 20)
            self.sbar(0, 16)
            W = 140; NB = 8; PRE = 6
            def rd(s):
                base, off = (8, s * 4096) if s < 8 else (9, (s - 8) * 4096)
                r = W + 4 * (s % NB)
                a(f"ds_read_b64_tr_b16 v[{r}:{r+1}], v{base} offset:{off}")
                a(f"ds_read_b64_tr_b16 v[{r+2}:{r+3}], v{base} offset:{off + 2048}")
            for s in range(PRE): rd(s)
            for s in range(18):
                if s + PRE < 18: rd(s + PRE)
                a(f"s_waitcnt lgkmcnt({2 * min(PRE, 17 - s)})")
                acc = 40 + 4 * (s & 1)
                a(f"{MF} {vr(acc)}, {vr(W + 4 * (s % NB))}, {vr(X + 4*s)}, {'0' if s < 2 else vr(acc)}")
            a(f"""
            v_add_f32 v40, v40, v44
            v_add_f32 v41, v41, v45
            v_add_f32 v42, v42, v46
            v_add_f32 v43, v43, v47
            v_cvt_pk_bf16_f32 v44, v40, v41
            v_cvt_pk_bf16_f32 v45, v42, v43
            """)
            self.sanitize([44, 45])
            a("ds_write_b64 v6, v[44:45]")
            self.sbar(1, 16)
            sk = a.new_label(L("L_pqs"))
            a(f"""
            s_cmp_lg_u32 s3, 0
            s_cbranch_scc1 {sk}
            v_add_u32 v6, {L_SM}, v4
            s_lshl_b32 s38, s2, 10
            s_add_u32 s38, s38, {WS_T1S}
            s_mov_b32 exec_hi, 0
            ds_read_b128 v[40:43], v6
            s_waitcnt lgkmcnt(0)
            buffer_store_dwordx4 v[40:43], v4, s[4:7], s38 offen sc1
            s_mov_b64 exec, -1
            """)
            if self.o.gpq == 3: self.gate(4, 16)
            self.stamp(1, 20)
            a.label(sk)
        t1b = a.new_label(L("L_t1b"))
        a(f"s_cmp_ge_u32 s2, 64\ns_cbranch_scc1 {t1b}\ns_cmp_lg_u32 s3, 1\ns_cbranch_scc1 {L('L_fin')}")
        self.fetch_q(40)
        a(f"s_branch {L('L_fin')}\n{t1b}:")
        if not BA:
            a(f"s_cmp_lg_u32 s3, 1\ns_cbranch_scc1 {L('L_fin')}")
            self.fetch_q(40)
            a(f"s_branch {L('L_fin')}")
            a.label(L("L_ba_a"))
            a(f"s_branch {L('L_amain')}")
            return
        c_setup()
        a("s_add_u32 s38, s3, 4")
        c_loads("s38")
        a(f"s_branch {L('L_ba_c')}")
        a.label(L("L_ba_a"))
        c_setup()
        if self.fused: self.wait_lds(10, 1, 16, 1)
        c_loads("s44")
        self.get_tag(16)
        sk = a.new_label(L("L_noq"))
        a(f"s_cmp_lg_u32 s3, 4\ns_cbranch_scc1 {sk}")
        self.fetch_q(40)
        a.label(sk)
        a(f"s_setprio {self.o.sprio}")
        a.label(L("L_ba_c"))
        L_QS = L_P
        a(f"""
        s_and_b32 s38, s3, 1             ; hg
        s_lshr_b32 s43, s3, 1            ; kq
        v_and_b32 v5, 7, v2
        v_lshlrev_b32 v5, 1, v5
        v_lshrrev_b32 v6, 3, v2
        v_or_b32 v5, v5, v6
        v_lshlrev_b32 v5, 4, v5
        v_lshl_add_u32 v5, v1, 8, v5
        v_lshl_add_u32 v5, v2, 10, v5
        s_lshl_b32 s37, s43, 15
        v_add_u32 v5, s37, v5
        s_lshr_b32 s39, s33, 4           ; b
        s_lshl_b32 s39, s39, 9
        s_lshl_b32 s40, s3, 13
        s_add_u32 s39, s39, s40
        s_add_u32 s39, s39, {WS_QABS}    ; heads 2w,2w+1
        s_add_u32 s40, s39, 4096
        s_add_u32 s41, s39, 65536
        s_add_u32 s42, s39, {65536 + 4096}
        v_lshrrev_b32 v10, 5, v0
        v_lshlrev_b32 v10, 11, v10
        v_and_b32 v11, 31, v0
        v_lshl_add_u32 v10, v11, 4, v10  ; (l>>5)*2048 + (l&31)*16
        v_mov_b32 v3, {CSC}
        v_add_u32 v11, 128, v11
        s_lshl_b32 s37, s3, 5            ; n0*16 with n0 = 2w
        v_xor_b32 v12, s37, v4
        s_lshl_b32 s37, s3, 11
        s_add_u32 s37, s37, {L_QS}
        v_add_u32 v12, s37, v12
        v_xor_b32 v13, 16, v12
        v_add_u32 v13, 1024, v13         ; head 2w+1
        v_xor_b32 v14, v1, v2
        v_lshlrev_b32 v14, 4, v14
        v_lshl_add_u32 v14, v2, 10, v14
        v_add_u32 v14, {L_QS}, v14
        v_xor_b32 v15, 64, v14
        v_xor_b32 v18, 0x80, v14
        v_xor_b32 v19, 0xc0, v14
        """)
        self.flag_wg(11)
        self.check_flags(11, 16)
        a("s_waitcnt vmcnt(0)\ns_barrier")
        self.stamp(2, 20)
        G = 40; Q = 64
        self.fpoll([f"buffer_load_dwordx4 {vr(G + 4*k)}, v10, s[4:7], s{39+k} offen sc1" for k in range(4)], range(G, G + 16), 16, depth=self.o.pde, lsleep=self.o.sle)
        nt2 = [self.o.t2e]
        def t2_more(n):
            for _ in range(n):
                t2_load(nt2[0]); nt2[0] += 1
        t2_more(4)
        self.stamp(3, 20)
        def qread():
            for j in range(16):
                a(f"ds_read_b128 {vr(Q + 4*j)}, v{[14, 15, 18, 19][j & 3]} offset:{(j >> 2) * 256}")
                if j == 11: a("s_waitcnt lgkmcnt(8)")
        for hg in range(2):
            sk = a.new_label(L("L_qs"))
            a(f"""
            ds_write_b128 v12, {vr(G + 8*hg)}
            ds_write_b128 v13, {vr(G + 8*hg + 4)}
            s_waitcnt lgkmcnt(0)
            s_barrier
            s_cmp_lg_u32 s38, {hg}
            s_cbranch_scc1 {sk}
            """)
            qread()
            a(f"s_waitcnt lgkmcnt(0)\n{sk}:")
            t2_more(2)
            if hg == 0: a("s_barrier")
        a(f"""
        v_lshlrev_b32 v12, 4, v2
        v_add_u32 v12, {L_SM}, v12
        s_lshl_b32 s37, s38, 8
        s_lshl_b32 s39, s43, 2
        s_add_u32 s37, s37, s39
        v_add_u32 v13, s37, v12
        s_lshl_b32 s37, s38, 12
        s_lshl_b32 s39, s43, 10
        s_add_u32 s37, s37, s39
        s_add_u32 s37, s37, {L_P}
        v_add_u32 v14, s37, v4               ; P write
        v_add_u32 v15, {L_P}, v4             ; P read
        v_lshrrev_b32 v6, 2, v0
        v_and_b32 v7, 7, v6
        v_lshlrev_b32 v7, 1, v7
        v_lshrrev_b32 v8, 3, v6
        v_or_b32 v7, v7, v8
        v_bfe_u32 v8, v0, 1, 1
        v_xor_b32 v7, v7, v8
        v_lshlrev_b32 v7, 4, v7
        v_lshl_add_u32 v7, v6, 10, v7
        v_and_b32 v8, 1, v0
        v_lshl_add_u32 v7, v8, 3, v7
        s_lshl_b32 s41, s3, 7
        v_xor_b32 v7, s41, v7
        s_lshl_b32 s37, s3, 14
        v_add_u32 v18, s37, v4
        v_mov_b32 v10, {NEGMAX}              ; m hg0
        v_mov_b32 v11, {NEGMAX}              ; m hg1
        v_mov_b32 v19, 0                     ; l partial
        s_waitcnt vmcnt({max(0, min(16, nt2[0]) - self.o.t2e)})
        """)
        for ct in range(4):
            a(f"v_xor_b32 v{24+ct}, {ct << 5}, v7\nv_add_u32 v{28+ct}, 0x10000, v{24+ct}")
        self.stamp(4, 20)
        S = 40; A = 128; NB = 8; ACC = 160; PB = 40
        for ps in range(2):
            seq = [(j, t) for j in range(16) for t in range(2)]
            def rd(i):
                j, t = seq[i]
                if t == 0: a(f"v_xor_b32 v{32 + (j & 3)}, {j << 4}, v5")
                a(f"ds_read_b128 {vr(A + 4 * (i % NB))}, v{32 + (j & 3)} offset:{t * 16384}")
            PRE = 6
            for i in range(PRE): rd(i)
            for i, (j, t) in enumerate(seq):
                if i + PRE < len(seq): rd(i + PRE)
                a(f"s_waitcnt lgkmcnt({min(PRE, len(seq) - 1 - i)})")
                acc = S + 4 * t
                a(f"{MF} {vr(acc)}, {vr(A + 4 * (i % NB))}, {vr(Q + 4*j)}, {'0' if j == 0 else vr(acc)}")
                if ps == 0 and i % 4 == 3: t2_more(1)
            for e in range(8): a(f"v_mul_f32 v{S+e}, v3, v{S+e}")
            a(f"""
            v_max3_f32 v8, v{S}, v{S+1}, v{S+2}
            v_max3_f32 v8, v8, v{S+3}, v{S+4}
            v_max3_f32 v8, v8, v{S+5}, v{S+6}
            v_max_f32 v8, v8, v{S+7}
            """)
            self.xg_reduce("v_max_f32", 8, 9)
            a(f"""
            ds_write_b32 v13, v8
            s_waitcnt lgkmcnt(0)
            s_barrier
            ds_read_b128 v[52:55], v12
            ds_read_b128 v[56:59], v12 offset:256
            s_cmp_eq_u32 s38, 0
            s_cselect_b64 s[26:27], -1, 0
            s_waitcnt lgkmcnt(0)
            v_max3_f32 v52, v52, v53, v54
            v_max3_f32 v56, v56, v57, v58
            v_max3_f32 v52, v52, v55, v10
            v_max3_f32 v56, v56, v59, v11
            v_sub_f32 v60, v10, v52
            v_sub_f32 v61, v11, v56
            v_mov_b32 v10, v52
            v_mov_b32 v11, v56
            v_cndmask_b32 v8, v56, v52, s[26:27]
            v_exp_f32 v60, v60
            v_exp_f32 v61, v61
            """)
            for e in range(8): a(f"v_sub_f32 v{S+e}, v{S+e}, v8")
            for e in range(8): a(f"v_exp_f32 v{S+e}, v{S+e}")
            a("v_cndmask_b32 v9, v61, v60, s[26:27]")
            for e in range(4): a(f"v_cvt_pk_bf16_f32 v{48+e}, v{S+2*e}, v{S+2*e+1}")
            a(f"ds_write_b128 v14, v[48:51]\nv_fma_f32 v19, v19, v9, v{S}")
            for e in range(1, 8): a(f"v_add_f32 v19, v19, v{S+e}")
            if ps == 1:
                for r in range(32): a(f"v_mul_f32 v{ACC+r}, v{60 + (r >> 4)}, v{ACC+r}")
                self.xg_reduce("v_add_f32", 19, 9)
                a("ds_write_b32 v13, v19 offset:512")
            a("s_waitcnt lgkmcnt(0)\ns_barrier")
            seq = [(u, ct) for u in range(4) for ct in range(4)]
            def rd2(i):
                u, ct = seq[i]
                if ct == 0:
                    for hg in range(2): a(f"ds_read_b128 {vr(PB + 8 * (u & 1) + 4 * hg)}, v15 offset:{hg * 4096 + u * 1024}")
                base = (24 if u < 2 else 28) + ct; off = (u & 1) * 32768; r = A + 4 * (i % NB)
                a(f"ds_read_b64_tr_b16 v[{r}:{r+1}], v{base} offset:{off}")
                a(f"ds_read_b64_tr_b16 v[{r+2}:{r+3}], v{base} offset:{off + 16384}")
            cnt = lambda i: 2 + (2 if seq[i][1] == 0 else 0)
            PRE = 4
            for i in range(PRE): rd2(i)
            for i, (u, ct) in enumerate(seq):
                if i + PRE < len(seq): rd2(i + PRE)
                a(f"s_waitcnt lgkmcnt({sum(cnt(k) for k in range(i + 1, min(i + PRE + 1, len(seq))))})")
                for hg in range(2):
                    acc = ACC + 16 * hg + 4 * ct
                    a(f"{MF} {vr(acc)}, {vr(A + 4 * (i % NB))}, {vr(PB + 8 * (u & 1) + 4 * hg)}, {'0' if (u == 0 and ps == 0) else vr(acc)}")
            if ps == 0:
                self.stamp(5, 20)
                a("s_waitcnt vmcnt(0)\ns_barrier")
                self.stamp(13, 20)
                for r in range(16): a(f"ds_write_b128 v18, {vr(T2 + 4*r)} offset:{r * 1024}")
                a("s_waitcnt lgkmcnt(0)\ns_barrier")
        a(f"""
        v_and_b32 v6, 7, v2
        v_lshlrev_b32 v6, 10, v6
        v_lshrrev_b32 v8, 3, v2
        v_lshl_add_u32 v6, v8, 6, v6
        v_lshl_add_u32 v6, v1, 4, v6
        s_lshl_b32 s39, s33, 15
        s_add_u32 s39, s39, s41
        s_add_u32 s39, s39, {WS_BP}
        """)
        for hg in range(2):
            acc = ACC + 16 * hg; X0 = 64 + 8 * hg; X1 = X0 + 4
            for w in range(8): a(f"v_cvt_pk_bf16_f32 v{X0+w}, v{acc+2*w}, v{acc+2*w+1}")
            for w in range(4): a(f"v_mov_b32 v{80+w}, v{X0+w}")
            for w in range(4): a(f"v_mov_b32_dpp v{X0+w}, v{X1+w} row_ror:8 row_mask:0xf bank_mask:0xc")
            for w in range(4): a(f"v_mov_b32_dpp v{X1+w}, v{80+w} row_ror:8 row_mask:0xf bank_mask:0x3")
            a(f"buffer_store_dwordx4 {vr(X0)}, v6, s[4:7], s39 offen sc1\ns_add_u32 s39, s39, 8192")
            a(f"buffer_store_dwordx4 {vr(X1)}, v6, s[4:7], s39 offen sc1\ns_add_u32 s39, s39, 8192")
        self.stamp(6, 20)
        a(f"""
        s_waitcnt vmcnt(0)
        s_barrier
        s_setprio 0
        s_cmp_ge_u32 s3, 4
        s_cbranch_scc1 {L('L_amain')}
        s_cmp_lg_u32 s3, 0
        s_cbranch_scc1 {L('L_fin')}
        s_setprio 3
        v_and_b32 v6, 31, v0
        v_lshlrev_b32 v7, 4, v6
        v_add_u32 v7, {L_SM + 512}, v7
        ds_read_b128 v[40:43], v7
        v_lshlrev_b32 v6, 3, v6
        s_lshl_b32 s39, s2, 10
        s_add_u32 s39, s39, {WS_T1S + 512}
        v_cmp_eq_u32 vcc, 0, v1
        v_cndmask_b32 v8, v11, v10, vcc
        s_waitcnt lgkmcnt(0)
        v_add_f32 v9, v40, v41
        v_add_f32 v42, v42, v43
        v_add_f32 v9, v9, v42
        """)
        self.sanitize([8, 9])
        a(f"""
        s_mov_b32 exec_hi, 0
        buffer_store_dwordx2 v[8:9], v6, s[4:7], s39 offen sc1
        s_mov_b64 exec, -1
        """)
        self.stamp(7, 20)
        a(f"s_branch {L('L_fin')}")

    def stage_lin(self, srd, s_base, s_lds, n, voff):
        a = self.a
        for i in range(n):
            if i % 4 == 0: a(f"s_mov_b32 m0, {s_lds}")
            self.dma(voff, srd, s_base, (i % 4) * 1024)
            if i % 4 == 3 and i != n - 1:
                a(f"s_add_u32 {s_base}, {s_base}, 4096\ns_add_u32 {s_lds}, {s_lds}, 4096")
    def store_y(self, ys, s_y, s_y8, vt):
        a = self.a
        self.sanitize(range(ys, ys + 9))
        a(f"""
        v_lshlrev_b32 v{vt}, 2, v0
        buffer_store_dwordx4 {vr(ys)}, v4, s[4:7], {s_y} offen sc1
        buffer_store_dwordx4 {vr(ys+4)}, v4, s[4:7], {s_y} offen offset:1024 sc1
        buffer_store_dword v{ys+8}, v{vt}, s[4:7], {s_y8} offen sc1
        """)
    def y_addr(self, ybase):
        self.a(f"""
        s_mul_i32 s38, s33, 9216
        s_add_u32 s38, s38, {ybase}
        s_lshl_b32 s39, s3, 8
        s_add_u32 s39, s39, s38
        s_add_u32 s39, s39, 8192
        s_lshl_b32 s40, s3, 11
        s_add_u32 s38, s38, s40
        """)

    def role_at(self):
        self.role = "at"
        a = self.a
        if self.o.ega == 0: self.gate(4, 16)
        self.get_tag(16)
        if self.o.ega == 1: self.gate(4, 16)
        sk = a.new_label(self.L("L_atq"))
        a(f"s_cmp_lg_u32 s3, 0\ns_cbranch_scc1 {sk}")
        self.fetch_q(40, True)
        a.label(sk)
        if "AT" not in self.en: return
        if self.fused: self.wait_lds(self.o.atgate, 1, 16, 2)
        self.srd(12, P_WO, 4096 * 1152)
        a(f"""
        s_and_b32 s33, s2, 31
        s_mul_i32 s36, s33, {128 * 1152}
        s_mul_i32 s37, s3, {36 * 1024}
        s_add_u32 s36, s36, s37
        """)
        self.stage_lin("s[12:15]", "s36", "s37", 36, 4)
        a(f"""
        v_lshrrev_b32 v5, 2, v0
        v_mul_u32_u24 v5, {8 * 1152}, v5
        v_and_b32 v6, 3, v0
        v_lshl_add_u32 v5, v6, 3, v5
        s_lshl_b32 s38, s3, 5
        s_add_u32 s38, s38, 1024
        v_add_u32 v6, s38, v5
        s_lshl_b32 s38, s3, 8
        v_add_u32 v5, s38, v5
        s_waitcnt vmcnt(0)
        """)
        self.sbar(0, 16)
        WO = 64
        for ct in range(9):
            for j in range(4):
                r = WO + 16 * ct + 4 * j
                base, co = (5, ct * 32) if ct < 8 else (6, 0)
                a(f"ds_read_b64_tr_b16 v[{r}:{r+1}], v{base} offset:{(2*j) * 1152 + co}")
                a(f"ds_read_b64_tr_b16 v[{r+2}:{r+3}], v{base} offset:{(2*j+1) * 1152 + co}")
            a("s_waitcnt lgkmcnt(7)")
        a(f"""
        s_lshr_b32 s36, s33, 1
        s_lshl_b32 s36, s36, 2               ; 4*hkv
        v_lshrrev_b32 v6, 2, v2
        v_lshlrev_b32 v6, 6, v6
        v_and_b32 v7, 3, v2
        v_add_u32 v6, v6, v7
        v_add_u32 v8, s36, v6
        v_lshlrev_b32 v6, 10, v6
        v_lshl_add_u32 v6, v1, 4, v6         ; o voffset
        v_lshl_add_u32 v7, v1, 6, v7
        v_lshlrev_b32 v7, 10, v7
        s_lshl_b32 s36, s36, 10
        s_add_u32 s36, s36, {WS_OP}
        s_and_b32 s37, s33, 1
        s_lshl_b32 s40, s37, 3
        s_add_u32 s41, s36, s40
        s_add_u32 s41, s41, 512
        s_lshl_b32 s37, s37, 8
        s_add_u32 s36, s36, s37              ; o soffset
        """)
        self.y_addr(WS_YA)
        a(f"""
        v_lshlrev_b32 v10, 10, v1
        v_lshl_add_u32 v9, v2, 4, v10
        s_lshl_b32 s43, s3, 16
        s_add_u32 s42, s36, s43
        s_add_u32 s43, s41, s43
        s_lshl_b32 s40, s3, 2
        v_add_u32 v12, s40, v1               ; m
        v_mul_u32_u24 v11, 272, v12
        v_lshl_add_u32 v11, v2, 4, v11
        v_add_u32 v11, {L_SM}, v11
        v_lshlrev_b32 v12, 3, v12
        v_add_u32 v12, {L_SM + 4352}, v12
        v_mul_u32_u24 v13, 272, v2
        v_lshl_add_u32 v13, v1, 4, v13
        v_add_u32 v13, {L_SM}, v13
        v_and_b32 v14, 3, v2
        v_lshl_add_u32 v14, v1, 2, v14
        v_lshlrev_b32 v14, 3, v14
        v_add_u32 v14, {L_SM + 4352}, v14
        """)
        self.flag_aid(8)
        self.check_flags(8, 16)
        self.stamp(0)
        if self.fused: self.wait_lds(15, self.o.atw, 16, 1)
        O = 24; ST = 40
        if self.o.atl == 0:
            loads = [f"buffer_load_dwordx4 {vr(O + 4*j)}, v6, s[4:7], s36 offen offset:{64*j} sc1" for j in range(4)]
            loads += [f"buffer_load_dwordx2 v[{ST}:{ST+1}], v7, s[4:7], s41 offen sc1"]
            self.fpoll(loads, range(O, O + 18), 16, depth=self.o.pd, lsleep=self.o.sla)
        else:
            self.fpoll([f"buffer_load_dwordx4 v[44:47], v9, s[4:7], s42 offen sc1", f"buffer_load_dwordx2 v[48:49], v10, s[4:7], s43 offen sc1"], range(44, 50), 16, depth=1, lsleep=self.o.sla)
            a("ds_write_b128 v11, v[44:47]\nds_write_b64 v12, v[48:49]")
            self.sbar(1, 16)
            for j in range(4): a(f"ds_read_b128 {vr(O + 4*j)}, v13 offset:{64*j}")
            a(f"ds_read_b64 v[{ST}:{ST+1}], v14\ns_waitcnt lgkmcnt(0)")
        self.stamp(1)
        ACC = 208
        for ct in range(9):
            for j in range(4):
                acc = ACC + 4 * ct
                a(f"{MF} {vr(acc)}, {vr(O + 4*j)}, {vr(WO + 16*ct + 4*j)}, {'0' if j == 0 else vr(acc)}")
            if ct == 0:
                a(f"""
                v_max_f32_dpp v16, v{ST}, v{ST} quad_perm:[1,0,3,2] {DPPM}
                v_max_f32_dpp v16, v16, v16 quad_perm:[2,3,0,1] {DPPM}
                v_sub_f32 v17, v{ST}, v16
                v_exp_f32 v17, v17
                v_mul_f32 v18, v17, v{ST+1}
                """)
            if ct == 1:
                a(f"""
                v_add_f32_dpp v18, v18, v18 quad_perm:[1,0,3,2] {DPPM}
                v_add_f32_dpp v18, v18, v18 quad_perm:[2,3,0,1] {DPPM}
                v_rcp_f32 v18, v18
                v_mul_f32 v17, v17, v18
                """)
            if ct == 2:
                for t in range(4): a(f"v_mov_b32_dpp v{48+t}, v17 quad_perm:[{t},{t},{t},{t}] {DPPM}")
        Y = 52
        for ct in range(9):
            acc = ACC + 4 * ct
            a(f"""
            v_mul_f32 v{Y+ct}, v48, v{acc}
            v_fmac_f32 v{Y+ct}, v49, v{acc+1}
            v_fmac_f32 v{Y+ct}, v50, v{acc+2}
            v_fmac_f32 v{Y+ct}, v51, v{acc+3}
            """)
        self.store_y(Y, "s38", "s39", 16)
        self.stamp(2)

    def role_bh1(self):
        self.role = "bh1"
        a = self.a; L = self.L
        t3a = a.new_label(L("L_t3a"))
        a(f"s_cmp_lt_u32 s2, 160\ns_cbranch_scc1 {t3a}\ns_cmp_lg_u32 s3, 0\ns_cbranch_scc1 {L('L_fin')}")
        if self.o.eg == 0: self.gate(4, 16)
        self.get_tag(16)
        if self.o.eg == 1: self.gate(4, 16)
        self.fetch_q(40, True)
        a(f"s_branch {L('L_fin')}\n{t3a}:")
        if "BH1" not in self.en: return
        self.srd(12, P_WUK, 512 * 8192)
        a(f"""
        s_sub_u32 s36, s2, 128               ; h
        s_lshl_b32 s37, s36, 8               ; h*256
        s_lshl_b32 s38, s3, 18
        s_add_u32 s37, s37, s38
        s_lshl_b32 s35, s3, 15
        v_xor_b32 v5, v1, v2
        v_lshlrev_b32 v5, 4, v5
        v_lshl_add_u32 v8, v1, 13, v5
        v_xor_b32 v9, 64, v8
        v_xor_b32 v10, 0x80, v8
        v_xor_b32 v11, 0xc0, v8
        """)
        for i in range(32):
            p, g, half = i >> 3, (i >> 1) & 3, i & 1
            a(f"s_add_u32 s34, s37, {(128 * g + 8 * p + 4 * half) * 8192}\ns_add_u32 m0, s35, {i * 1024}")
            self.dma(8 + g, "s[12:15]", "s34", 0, 32)
        a(f"""
        v_lshrrev_b32 v6, 2, v2
        v_lshlrev_b32 v21, 3, v6
        v_and_b32 v7, 3, v2
        v_add_u32 v21, v21, v7
        v_lshl_add_u32 v12, v21, 8, v5
        v_add_u32 v12, s35, v12
        v_xor_b32 v13, 64, v12
        v_xor_b32 v14, 0x80, v12
        v_xor_b32 v15, 0xc0, v12
        v_lshlrev_b32 v18, 7, v7
        v_lshl_add_u32 v18, v1, 4, v18       ; q_B voffset: b*128 + g*16
        s_lshl_b32 s39, s36, 11
        s_add_u32 s39, s39, {WS_T1S}
        v_lshlrev_b32 v19, 9, v7             ; out: b*512 + p*64 + g*16
        v_lshl_add_u32 v19, v6, 6, v19
        v_lshl_add_u32 v19, v1, 4, v19
        v_cmp_eq_u32 s[42:43], 1, v6
        v_cmp_eq_u32 s[24:25], 2, v6
        v_cmp_eq_u32 s[26:27], 3, v6
        s_lshl_b32 s40, s36, 12
        s_lshr_b32 s41, s3, 1
        s_lshl_b32 s41, s41, 11
        s_add_u32 s40, s40, s41
        s_and_b32 s41, s3, 1
        s_lshl_b32 s41, s41, 8
        s_add_u32 s40, s40, s41
        s_add_u32 s40, s40, {WS_QABS}
        s_lshl_b32 s41, s36, 1
        v_and_b32 v20, 1, v0
        v_add_u32 v20, s41, v20
        """)
        self.gate(self.o.gbh1, 16)
        self.flag_wg(20)
        self.get_tag(16)
        self.check_flags(20, 16)
        a("s_waitcnt vmcnt(0)")
        W = 64; ACC = 192; Q = 24
        for T in range(8):
            p, half = T >> 1, T & 1
            for k in range(4):
                a(f"ds_read_b128 {vr(W + 16*T + 4*k)}, v{12+k} offset:{(32*p + 4*half) * 256}")
            if T >= 2: a("s_waitcnt lgkmcnt(8)")
        self.stamp(0)
        self.fpoll([f"buffer_load_dwordx4 {vr(Q + 4*k)}, v18, s[4:7], s39 offen offset:{(k >> 1) * 1024 + (k & 1) * 64} sc1" for k in range(4)], range(Q, Q + 16), 16, depth=self.o.pde, lsleep=self.o.sle)
        self.stamp(1)
        a("s_waitcnt lgkmcnt(0)")
        for T in range(8):
            for k in range(4):
                acc = ACC + 4 * T
                a(f"{MF} {vr(acc)}, {vr(W + 16*T + 4*k)}, {vr(Q + 4*k)}, {'0' if k == 0 else vr(acc)}")
        for w in range(16): a(f"v_cvt_pk_bf16_f32 v{40+w}, v{ACC+2*w}, v{ACC+2*w+1}")
        for p, sm in ((1, "s[42:43]"), (2, "s[24:25]"), (3, "s[26:27]")):
            for w in range(4): a(f"v_cndmask_b32 v{40+w}, v{40+w}, v{40+4*p+w}, {sm}")
        self.sanitize(range(40, 44))
        a("buffer_store_dwordx4 v[40:43], v19, s[4:7], s40 offen sc1")
        self.gate(4, 16)
        self.stamp(2)

    def role_bh2(self):
        self.role = "bh2"
        a = self.a
        if "BH2" not in self.en: return
        self.srd(12, P_WUV, 512 * 8192)
        self.srd(16, P_BWO, 4096 * 1152)
        a(f"""
        s_and_b32 s33, s2, 31
        s_lshl_b32 s34, s33, 8
        s_lshl_b32 s35, s3, 19
        s_add_u32 s34, s34, s35
        s_lshl_b32 s35, s3, 14
        v_lshlrev_b32 v5, 1, v1
        v_xor_b32 v5, v5, v2
        v_lshlrev_b32 v5, 4, v5
        v_lshl_add_u32 v5, v1, 13, v5
        v_xor_b32 v6, 0x80, v5
        """)
        a(f"""
        s_lshr_b32 s40, s3, 1                ; b
        s_lshl_b32 s36, s40, 4
        s_add_u32 s36, s36, 64
        v_add_u32 v13, s36, v2
        v_mov_b32 v14, v13
        """)
        self.flag_wg(14)
        if self.o.egb >= 1: self.get_tag(16)
        if self.o.egb >= 2: self.check_flags(14, 16)
        for i in range(16):
            a("s_mov_b32 m0, s35")
            self.dma(5 + (i & 1), "s[12:15]", "s34", 0, self.o.DB)
            if i != 15: a("s_add_u32 s34, s34, 32768\ns_add_u32 s35, s35, 1024")
        a(f"""
        v_lshrrev_b32 v10, 2, v0
        v_and_b32 v11, 7, v10
        v_xor_b32 v11, s3, v11
        v_lshlrev_b32 v11, 5, v11
        v_lshl_add_u32 v11, v10, 8, v11
        v_and_b32 v10, 3, v0
        v_lshl_add_u32 v8, v10, 3, v11
        v_add_u32 v9, 0x10000, v8
        s_waitcnt vmcnt(0)
        s_barrier
        """)
        WV = 192
        for s in range(16):
            off = s * 8192; base = 9 if off >> 16 else 8; off &= 0xffff
            r = WV + 4 * s
            a(f"ds_read_b64_tr_b16 v[{r}:{r+1}], v{base} offset:{off}")
            a(f"ds_read_b64_tr_b16 v[{r+2}:{r+3}], v{base} offset:{off + 4096}")
            if s % 4 == 3: a("s_waitcnt lgkmcnt(7)")
        a("s_waitcnt lgkmcnt(0)\ns_barrier")
        self.stamp(0, 20)
        a(f"""
        s_mul_i32 s36, s33, {128 * 1152}
        s_mul_i32 s37, s3, {18 * 1024}
        s_add_u32 s36, s36, s37
        """)
        for i in range(18):
            if i % 2 == 0: a("s_mov_b32 m0, s37")
            self.dma(4, "s[16:19]", "s36", (i % 2) * 1024, self.o.DB)
            if i % 2 == 1: a("s_add_u32 s36, s36, 2048\ns_add_u32 s37, s37, 2048")
        a(f"""
        v_lshlrev_b32 v5, 3, v1
        v_bfe_u32 v8, v0, 2, 2
        v_add_u32 v5, v5, v8
        v_mul_u32_u24 v5, 1152, v5
        v_and_b32 v8, 3, v0
        v_lshl_add_u32 v5, v8, 3, v5
        s_and_b32 s39, s3, 3
        s_lshl_b32 s39, s39, 5
        s_add_u32 s39, s39, 1024
        v_add_u32 v10, s39, v5
        s_lshl_b32 s39, s3, 7
        v_add_u32 v5, s39, v5
        v_add_u32 v9, {64 * 1152}, v5
        v_add_u32 v11, {64 * 1152}, v10
        s_waitcnt vmcnt(0)
        s_barrier
        """)
        WO = 112
        for ct in range(5):
            for j in range(4):
                r = WO + 16 * ct + 4 * j
                if ct < 4: base = 5 if j < 2 else 9; off = ct * 32
                else: base = 10 if j < 2 else 11; off = 0
                off += (j & 1) * 32 * 1152
                a(f"ds_read_b64_tr_b16 v[{r}:{r+1}], v{base} offset:{off}")
                a(f"ds_read_b64_tr_b16 v[{r+2}:{r+3}], v{base} offset:{off + 4 * 1152}")
            a("s_waitcnt lgkmcnt(7)")
        CTXC = L_SM; CST = 1088
        CTX = L_SM + 8 * CST; XST = 272
        a(f"""
        v_lshlrev_b32 v5, 10, v13
        s_lshl_b32 s36, s33, 3
        s_add_u32 s36, s36, {WS_T1S + 512}
        s_lshl_b32 s37, s3, 18               ; (16b + 8half) * 32768
        s_lshl_b32 s39, s33, 10
        s_add_u32 s37, s37, s39
        s_add_u32 s37, s37, {WS_BP}
        s_mul_i32 s39, s3, {CST}
        s_add_u32 s39, s39, {CTXC}
        v_add_u32 v8, s39, v4
        v_and_b32 v9, 3, v2
        v_lshlrev_b32 v9, 1, v9
        v_bfe_u32 v10, v0, 2, 1
        v_add_u32 v9, v9, v10
        v_mul_u32_u24 v9, {CST}, v9
        v_lshl_add_u32 v9, v1, 4, v9
        v_add_u32 v9, {CTXC}, v9
        v_and_b32 v10, 3, v2
        v_mul_u32_u24 v10, {XST}, v10
        v_lshl_add_u32 v10, v1, 3, v10
        s_lshl_b32 s39, s3, 5
        s_add_u32 s39, s39, {CTX}
        v_add_u32 v10, s39, v10
        v_lshrrev_b32 v11, 2, v2
        v_mul_u32_u24 v11, {XST}, v11
        v_lshl_add_u32 v11, v1, 4, v11
        v_add_u32 v11, {CTX}, v11
        s_mul_i32 s38, s33, 9216
        s_add_u32 s38, s38, {WS_YB}
        s_lshl_b32 s39, s3, 8
        s_add_u32 s39, s39, s38
        s_add_u32 s39, s39, 8192
        s_lshl_b32 s42, s3, 10
        s_add_u32 s38, s38, s42
        v_lshlrev_b32 v12, 2, v0
        s_and_b32 s42, s3, 1
        s_lshl_b32 s42, s42, 3
        """)
        if self.o.egb < 1: self.get_tag(16)
        if self.o.egb < 2: self.check_flags(14, 16)
        self.stamp(1, 20)
        a("s_mov_b64 exec, 0xffff")
        self.poll(["buffer_load_dwordx2 v[18:19], v5, s[4:7], s36 offen sc1"], [18, 19], 16, sleep=2)
        G = 48
        for s in range(8):
            a(f"buffer_load_dwordx4 {vr(G + 4*s)}, v4, s[4:7], s37 offen sc1\ns_add_u32 s37, s37, 32768")
        self.stamp(2, 24)
        a("v_mov_b32 v20, v18")
        for d in ("quad_perm:[1,0,3,2]", "quad_perm:[2,3,0,1]", "row_ror:4", "row_ror:8"):
            a(f"v_max_f32_dpp v20, v20, v20 {d} {DPPM}")
        a("v_sub_f32 v21, v18, v20\nv_exp_f32 v21, v21\nv_mul_f32 v22, v21, v19")
        for d in ("quad_perm:[1,0,3,2]", "quad_perm:[2,3,0,1]", "row_ror:4", "row_ror:8"):
            a(f"v_add_f32_dpp v22, v22, v22 {d} {DPPM}")
        a("v_rcp_f32 v22, v22\nv_mul_f32 v21, v21, v22")
        AC = 24
        ext = 1 if self.stamps else 0
        for s in range(8):
            r = G + 4 * s
            a(f"v_readlane_b32 s41, v21, s42\ns_add_u32 s42, s42, 1")
            a(f"s_waitcnt vmcnt({7 - s + ext})")
            for w in range(4):
                a(f"v_lshlrev_b32 v{32+2*w}, 16, v{r+w}\nv_and_b32 v{33+2*w}, 0xffff0000, v{r+w}")
            for e in range(8):
                if s == 0: a(f"v_mul_f32 v{AC+e}, s41, v{32+e}")
                else: a(f"v_fmac_f32 v{AC+e}, s41, v{32+e}")
        for w in range(4): a(f"v_cvt_pk_bf16_f32 v{32+w}, v{AC+2*w}, v{AC+2*w+1}")
        a("ds_write_b128 v8, v[32:35]")
        self.stamp(3, 20)
        a("s_waitcnt lgkmcnt(0)\ns_barrier")
        for s in range(12):
            a(f"ds_read_b128 {vr(G + 4*s)}, v9 offset:{64*s}")
        for s in range(16):
            if s + 12 < 16: a(f"ds_read_b128 {vr(G + 4*(s+12))}, v9 offset:{64*(s+12)}")
            a(f"s_waitcnt lgkmcnt({min(12, 15 - s)})")
            acc = 24 + 4 * (s & 1)
            a(f"{MF} {vr(acc)}, {vr(WV + 4*s)}, {vr(G + 4*s)}, {'0' if s < 2 else vr(acc)}")
        for r in range(4): a(f"v_add_f32 v{24+r}, v{24+r}, v{28+r}")
        for r in range(4): a(f"v_add_f32_dpp v{24+r}, v{24+r}, v{24+r} row_ror:4 {DPPM}")
        a("""
        v_cvt_pk_bf16_f32 v32, v24, v25
        v_cvt_pk_bf16_f32 v33, v26, v27
        ds_write_b64 v10, v[32:33]
        s_waitcnt lgkmcnt(0)
        s_barrier
        """)
        O = 24
        for j in range(4): a(f"ds_read_b128 {vr(O + 4*j)}, v11 offset:{64*j}")
        ACC = 64
        for j in range(4):
            a(f"s_waitcnt lgkmcnt({3 - j})")
            for ct in range(5):
                acc = ACC + 4 * ct
                a(f"{MF} {vr(acc)}, {vr(O + 4*j)}, {vr(WO + 16*ct + 4*j)}, {'0' if j == 0 else vr(acc)}")
        Y = 48
        for ct in range(5): a(f"v_min_u32 v{Y+ct}, -2, v{ACC + 4*ct}")
        sk = a.new_label(self.L("L_bh2s"))
        a(f"""
        buffer_store_dwordx4 {vr(Y)}, v4, s[4:7], s38 offen sc1
        s_cmp_ge_u32 s3, 4
        s_cbranch_scc1 {sk}
        buffer_store_dword v{Y+4}, v12, s[4:7], s39 offen sc1
        {sk}:
        """)
        self.stamp(4, 20)

    def role_a(self):
        self.role = "a"
        a = self.a; L = self.L
        a("s_sub_u32 s44, s3, 4")
        if "CLR" in self.en and self.fused: self.clear_finish()
        a(f"""
        s_lshr_b32 s28, s2, 5
        s_cmp_eq_u32 s28, 6
        s_cbranch_scc1 {L('L_bh2')}
        s_lshr_b32 s28, s2, 6
        s_cmp_eq_u32 s28, 1
        s_cbranch_scc1 {L('L_ba_a')}
        """)
        a.label(L("L_amain"))
        if "A" in self.en:
            self.a_main()
        elif "RED" in self.en:
            a(f"s_cmp_lg_u32 s44, 0\ns_cbranch_scc1 {L('L_fin')}")
        if "RED" in self.en:
            self.reducer()

    def a_main(self):
        a = self.a; L = self.L; D = self.o.D
        assert D <= 16
        self.srd(12, P_K, 64 << 20); self.srd(16, P_V, 64 << 20)
        a(f"""
        s_lshl_b32 s49, s45, 20
        s_mul_i32 s33, s45, {self.o.rot}      ; rotation
        s_cmp_lt_u32 s45, 32
        s_cselect_b32 s32, 12, 16
        s_lshl_b32 s30, s46, 2
        s_add_u32 s30, s30, s44
        s_add_u32 s30, s30, s33
        s_add_u32 s31, s30, s32
        s_and_b32 s30, s30, 127
        s_and_b32 s31, s31, 127
        s_lshl_b32 s30, s30, 13
        s_lshl_b32 s31, s31, 13
        s_add_u32 s30, s30, s49
        s_add_u32 s31, s31, s49
        s_lshl_b32 s28, s46, 2
        s_add_u32 s28, s28, s44
        s_sub_u32 s28, s28, s32
        s_sub_u32 s28, s28, 1
        v_mov_b32 v224, s28
        s_mul_i32 s32, s32, 3
        s_add_u32 s33, s33, s32
        s_sub_u32 s32, 128, s32
        s_lshl_b32 s35, s44, 3
        s_lshr_b32 s35, {sum(x << (8 * i) for i, x in enumerate(self.o.tap))}, s35
        s_and_b32 s35, s35, 0xff
        s_sub_u32 s35, s32, s35
        s_mov_b32 s34, 1
        s_lshl_b32 s48, s45, 12
        s_add_u32 s48, s48, {WS_OP + 768}
        s_mov_b32 s50, 0x05040100
        s_mov_b32 s51, 0x07060302
        v_lshlrev_b32 v4, 4, v0
        v_mov_b32 v1, v4
        v_add_u32 v2, 4096, v4
        v_mov_b32 v3, {CSC}
        v_mov_b32 v4, {NEGMAX}
        v_mov_b32 v5, 0
        v_and_b32 v6, 15, v0
        v_and_b32 v7, 1, v0
        v_lshlrev_b32 v6, 4, v6
        v_lshl_add_u32 v6, v7, 8, v6
        v_add_u32 v6, {L_QA}, v6
        v_xor_b32 v7, 16, v6
        v_cmp_lt_u32 vcc, 31, v0
        v_mov_b32 v226, 0
        v_mov_b32 v227, {L_CNT + 4 * 10}
        """)
        for r in range(32, 64): a(f"v_mov_b32 v{r}, 0")
        a(f"""
        v_lshrrev_b32 v228, 4, v0
        v_and_b32 v229, 1, v0
        v_lshl_add_u32 v228, v228, 1, v229
        v_lshlrev_b32 v228, 4, v228
        s_lshl_b32 s53, s44, 10
        s_add_u32 s53, s53, {L_ACOMB}
        v_add_u32 v228, s53, v228
        s_lshl_b32 s53, s44, 4
        s_add_u32 s53, s53, {L_AST}
        v_lshlrev_b32 v229, 3, v229
        v_add_u32 v230, s53, v229
        v_add_u32 v231, {L_AST}, v229
        v_bfe_u32 v232, v0, 3, 2
        v_and_b32 v233, 7, v0
        v_lshlrev_b32 v233, 4, v233
        v_lshl_add_u32 v233, v232, 8, v233
        v_add_u32 v233, {L_ACOMB}, v233
        v_and_b32 v234, 1, v0
        v_lshlrev_b32 v234, 8, v234
        v_lshl_add_u32 v234, v232, 6, v234
        v_bfe_u32 v232, v0, 1, 2
        v_lshl_add_u32 v234, v232, 4, v234   ; h*256 + j*64 + g'*16
        v_cndmask_b32 v234, v234, v1, vcc
        v_mov_b32 v236, {L_CNT + 4 * 15}
        v_mov_b32 v237, 1
        s_lshl_b32 s54, s47, 10
        s_add_u32 s54, s54, {WS_OP}
        """)
        KA, VA, KB, VB = 96, 128, 160, 192
        def issue(srd, base, e, soff, d=None):
            a(f"s_waitcnt vmcnt({(d or D) - 1})")
            a(f"buffer_load_dwordx4 {vr(base + 4*e)}, v{1 if e < 4 else 2}, {srd}, {soff} offen offset:{(e & 3) * 1024} nt")
        def issues(srd, base, es, soff):
            if True:
                for e in es: issue(srd, base, e, soff)
                return
            lo = a.new_label(L("L_ilo")); en = a.new_label(L("L_ien"))
            a(f"s_cmp_lg_u32 s34, 0\ns_cbranch_scc1 {lo}")
            for e in es: issue(srd, base, e, soff)
            a(f"s_branch {en}\n{lo}:")
            for e in es: issue(srd, base, e, soff, self.o.Dlo)
            a.label(en)
        def grab():
            a(f"""
            v_mov_b32 v224, s34
            s_mov_b64 exec, 1
            buffer_atomic_add v224, v226, s[4:7], s48 offen sc0 sc1
            s_mov_b64 exec, -1
            """)
        def gate_wait():
            if not self.fused: return
            lab = a.new_label(L("L_gw"))
            a(f"""
            s_mov_b32 s29, {SPIN * 8}
            {lab}:
            ds_read_b32 v225, v227
            s_sub_u32 s29, s29, 1
            s_cbranch_scc1 {lab}_x
            s_waitcnt lgkmcnt(0)
            v_readfirstlane_b32 s28, v225
            s_cmp_gt_u32 s28, s44
            s_cbranch_scc1 {lab}_x
            s_sleep 1
            s_branch {lab}
            {lab}_x:
            s_waitcnt lgkmcnt(0)
            """)
        def ring(d):
            for e in range(8): issue("s[12:15]", KA, e, "s30", d)
            for e in range(8): issue("s[16:19]", VA, e, "s30", d)
            for e in range(8): issue("s[12:15]", KB, e, "s31", d)
            for e in range(8): issue("s[16:19]", VB, e, "s31", d)
        sk = a.new_label(L("L_t3q"))
        a(f"s_lshr_b32 s28, s2, 5\ns_cmp_lg_u32 s28, 4\ns_cbranch_scc1 {sk}\ns_cmp_lg_u32 s3, 4\ns_cbranch_scc1 {sk}")
        self.fetch_q(64)
        a.label(sk)
        gate_wait()
        self.stamp(9)
        ring(self.o.D0)
        self.wait_lds(9, 1, 28, 1)
        a("ds_read_b128 v[8:11], v6\nds_read_b128 v[12:15], v7")
        self.get_tag(28)
        a("s_waitcnt lgkmcnt(0)")
        ext = 0
        U = 16; P = 24; ACC = 32; T = 64
        def body(K, V, mode):
            if mode == "e1": a("s_waitcnt vmcnt(8)")
            for half in range(2):
                es = range(4 * half, 4 * half + 4)
                for e in es: a(f"v_dot2_f32_bf16 v{U+e}, v{K+4*e}, v8, 0")
                for w in range(1, 4):
                    for e in es: a(f"v_dot2c_f32_bf16 v{U+e}, v{K+4*e+w}, v{8+w}")
                for w in range(4):
                    for e in es: a(f"v_dot2c_f32_bf16_dpp v{U+e}, v{K+4*e+w}, v{12+w} quad_perm:[1,0,3,2] {DPPM}")
                if mode == "loop":
                    if half == 0 and self.o.gpos == 0: grab()
                    issues("s[12:15]", K, es, "s30")
            for d in ("quad_perm:[2,3,0,1]", "row_ror:4", "row_ror:8"):
                for e in range(8): a(f"v_add_f32_dpp v{U+e}, v{U+e}, v{U+e} {d} {DPPM}")
            for e in range(8): a(f"v_mul_f32 v{U+e}, v{U+e}, v3")
            a(f"""
            v_max3_f32 v28, v{U}, v{U+1}, v{U+2}
            v_max3_f32 v28, v28, v{U+3}, v{U+4}
            v_max3_f32 v28, v28, v{U+5}, v{U+6}
            v_max3_f32 v28, v28, v{U+7}, v4
            """)
            self.xg_reduce("v_max_f32", 28, 29)
            a("v_sub_f32 v29, v4, v28")
            for e in range(8): a(f"v_sub_f32 v{U+e}, v{U+e}, v28")
            a("v_exp_f32 v29, v29")
            for e in range(8): a(f"v_exp_f32 v{U+e}, v{U+e}")
            a(f"""
            v_mov_b32 v4, v28
            v_cmp_neq_f32 vcc, 1.0, v29
            v_fma_f32 v5, v5, v29, v{U}
            v_add_f32 v30, v{U+1}, v{U+2}
            v_add_f32 v31, v{U+3}, v{U+4}
            v_add_f32 v5, v5, v{U+5}
            v_add_f32 v30, v30, v{U+6}
            v_add_f32 v31, v31, v{U+7}
            v_add_f32 v5, v5, v30
            v_add_f32 v5, v5, v31
            """)
            for w in range(4): a(f"v_cvt_pk_bf16_f32 v{P+w}, v{U+2*w}, v{U+2*w+1}")
            sk = a.new_label(L("L_nors"))
            a(f"s_cbranch_vccz {sk}")
            for r in range(32): a(f"v_mul_f32 v{ACC+r}, v29, v{ACC+r}")
            a.label(sk)
            if mode == "e1": self.xg_reduce("v_add_f32", 5, 29)
            if mode == "loop" and self.o.gpos == 1: grab()
            for q in range(4):
                if mode == "e1": a(f"s_waitcnt vmcnt({6 - 2*q})")
                for i in range(8):
                    a(f"v_perm_b32 v{T+4*i+q}, v{V + 4*(2*q+1) + (i >> 1)}, v{V + 4*(2*q) + (i >> 1)}, s{50 + (i & 1)}")
                if mode == "loop":
                    issues("s[16:19]", V, (2*q, 2*q+1), "s30")
            for i in range(8):
                a(f"{MF} {vr(ACC+4*i)}, {vr(T+4*i)}, {vr(P)}, {vr(ACC+4*i)}")
        def head(exit_label):
            a(f"""
            s_waitcnt vmcnt({16 if self.o.gpos == 0 else 8})
            v_readfirstlane_b32 s30, v224
            s_add_u32 s28, s30, 1
            s_cmp_ge_i32 s28, s32
            s_cbranch_scc1 {exit_label}
            s_cmp_eq_u32 s34, 0
            s_cbranch_scc1 {exit_label}
            s_cmp_lt_i32 s28, s35
            s_cselect_b32 s34, 1, 0
            s_add_u32 s30, s28, s33
            s_and_b32 s30, s30, 127
            s_lshl_b32 s30, s30, 13
            s_add_u32 s30, s30, s49
            """)
            if self.o.prog and self.stamps:
                a(f"""
                s_memrealtime s[92:93]
                s_lshl_b32 s94, s45, 7
                s_add_u32 s94, s94, s28
                s_lshl_b32 s94, s94, 7
                s_add_u32 s94, s94, {202 << 20}
                s_waitcnt lgkmcnt(0)
                v_mov_b32 v250, s92
                v_mov_b32 v251, s93
                s_mov_b64 exec, 1
                buffer_store_dwordx2 v[250:251], v226, s[4:7], s94 offen
                s_mov_b64 exec, -1
                """)
        lp = a.new_label(L("L_aloop")); eA = a.new_label(L("L_aeA")); eB = a.new_label(L("L_aeB")); dn = a.new_label(L("L_adone"))
        a.label(lp)
        head(eA); body(KA, VA, "loop")
        head(eB); body(KB, VB, "loop")
        a(f"s_branch {lp}")
        a.label(eA)
        body(KA, VA, "e0"); body(KB, VB, "e1")
        a(f"s_branch {dn}")
        a.label(eB)
        body(KB, VB, "e0"); body(KA, VA, "e1")
        a.label(dn)
        a("s_mov_b64 exec, 3\nds_write_b64 v230, v[4:5]")
        a("s_mov_b32 exec_lo, 0x00030003\ns_mov_b32 exec_hi, 0x00030003")
        for i in range(8): a(f"ds_write_b128 v228, {vr(ACC+4*i)} offset:{128*i}")
        nc = a.new_label(L("L_nocomb"))
        a(f"""
        s_mov_b64 exec, 1
        ds_add_rtn_u32 v238, v236, v237
        s_mov_b64 exec, -1
        s_waitcnt lgkmcnt(0)
        v_readfirstlane_b32 s55, v238
        s_cmp_lg_u32 s55, 3
        s_cbranch_scc1 {nc}
        """)
        for w in range(4): a(f"ds_read_b64 v[{16+2*w}:{17+2*w}], v231 offset:{16*w}")
        for w in range(4):
            a(f"ds_read_b128 {vr(32+8*w)}, v233 offset:{1024*w}\nds_read_b128 {vr(36+8*w)}, v233 offset:{1024*w+128}")
        a(f"""
        s_waitcnt lgkmcnt(8)
        v_max3_f32 v24, v16, v18, v20
        v_max_f32 v24, v24, v22
        v_sub_f32 v16, v16, v24
        v_sub_f32 v18, v18, v24
        v_sub_f32 v20, v20, v24
        v_sub_f32 v22, v22, v24
        v_exp_f32 v16, v16
        v_exp_f32 v18, v18
        v_exp_f32 v20, v20
        v_exp_f32 v22, v22
        v_mul_f32 v25, v16, v17
        v_fmac_f32 v25, v18, v19
        v_fmac_f32 v25, v20, v21
        v_fmac_f32 v25, v22, v23
        s_waitcnt lgkmcnt(6)
        """)
        for e in range(8): a(f"v_mul_f32 v{64+e}, v16, v{32+e}")
        for w in range(1, 4):
            a(f"s_waitcnt lgkmcnt({6 - 2*w})")
            for e in range(8): a(f"v_fmac_f32 v{64+e}, v{16+2*w}, v{32+8*w+e}")
        for w in range(4): a(f"v_cvt_pk_bf16_f32 v{72+w}, v{64+2*w}, v{65+2*w}")
        a(f"""
        v_mov_b32_dpp v72, v24 quad_perm:[0,0,0,0] row_mask:0xc bank_mask:0xf
        v_mov_b32_dpp v73, v25 quad_perm:[0,0,0,0] row_mask:0xc bank_mask:0xf
        v_mov_b32_dpp v74, v24 quad_perm:[1,1,1,1] row_mask:0xc bank_mask:0xf
        v_mov_b32_dpp v75, v25 quad_perm:[1,1,1,1] row_mask:0xc bank_mask:0xf
        """)
        self.sanitize([72, 73, 74, 75])
        a(f"""
        s_mov_b32 exec_hi, 0xff
        buffer_store_dwordx4 v[72:75], v234, s[4:7], s54 offen sc1
        s_mov_b64 exec, -1
        """)
        self.stamp(11)
        a(f"s_branch {L('L_fin')}")
        a.label(nc)
        a(f"s_cmp_lg_u32 s55, 0\ns_cbranch_scc1 {L('L_fin')}")

    def reducer(self):
        a = self.a; L = self.L
        self.srd(12, P_OUT, 4608 * 2)
        t2 = a.new_label(L("L_rt2")); tj = a.new_label(L("L_rtj"))
        a(f"""
        s_cmp_ge_u32 s2, 72
        s_cbranch_scc1 {L('L_fin')}
        s_cmp_ge_u32 s2, 36
        s_cselect_b32 s56, 36, 0
        s_cselect_b32 s57, {WS_YB - WS_YA}, 0
        s_cselect_b32 s60, 1152, 0
        s_movk_i32 s61, 224
        s_cselect_b32 s61, 192, s61
        s_sub_u32 s56, s2, s56               ; r
        s_add_u32 s57, s57, {WS_YA}
        s_mul_i32 s58, s56, 7282
        s_lshr_b32 s58, s58, 16              ; b = r/9
        s_mul_i32 s59, s58, 9
        s_sub_u32 s59, s56, s59              ; grp
        s_mul_i32 s62, s58, 2304
        s_add_u32 s60, s60, s62
        s_lshl_b32 s62, s59, 7
        s_add_u32 s60, s60, s62
        s_lshl_b32 s62, s59, 10
        s_add_u32 s57, s57, s62
        v_lshrrev_b32 v1, 4, v0
        v_and_b32 v2, 15, v0
        v_mul_u32_u24 v3, 9216, v1
        v_and_b32 v6, 31, v0
        v_add_u32 v6, s61, v6
        s_cmp_eq_u32 s59, 8
        s_cbranch_scc1 {t2}
        s_lshl_b32 s62, s58, 8
        v_lshl_add_u32 v3, v2, 4, v3
        v_lshlrev_b32 v5, 1, v0
        s_branch {tj}
        {t2}:
        s_lshl_b32 s62, s58, 6
        v_lshrrev_b32 v4, 2, v2
        v_lshl_add_u32 v3, v4, 8, v3
        v_and_b32 v4, 3, v2
        v_lshl_add_u32 v3, v4, 4, v3
        v_lshl_add_u32 v5, v2, 2, v1
        v_lshlrev_b32 v5, 1, v5
        {tj}:
        s_add_u32 s57, s57, s62
        """)
        for k in range(8): a(f"s_add_u32 s{16+k}, s57, {k * 4 * 9216}")
        self.flag_wg(6)
        self.check_flags(6, 44)
        self.stamp(12)
        self.fpoll([f"buffer_load_dwordx4 {vr(8+4*k)}, v3, s[4:7], s{16+k} offen sc1" for k in range(8)], range(8, 40), 44, depth=self.o.pdr or self.o.pd, lsleep=self.o.slr)
        for c in range(16): a(f"v_add_f32 v{48+c}, v{8+c}, v{24+c}")
        for st in (8, 4):
            for c in range(st): a(f"v_add_f32 v{48+c}, v{48+c}, v{48+st+c}")
        a("""
        v_permlane32_swap_b32 v48, v50
        v_permlane32_swap_b32 v49, v51
        v_add_f32 v48, v48, v50
        v_add_f32 v49, v49, v51
        v_permlane16_swap_b32 v48, v49
        v_add_f32 v48, v48, v49
        v_cvt_pk_bf16_f32 v48, v48, v48
        buffer_store_short v48, v5, s[12:15], s60 offen
        """)
        self.stamp(14)
        if self.fused and not self.o.nowait:
            a(f"""
            s_cmp_lg_u32 s2, 0
            s_cbranch_scc1 {L('L_fin')}
            v_mov_b32 v52, s{S_TAG}
            v_mov_b32 v53, 0
            s_mov_b64 exec, 1
            buffer_store_dword v52, v53, s[4:7], 0 offen sc1
            s_mov_b64 exec, -1
            """)

def emit(fname, o):
    if o.mode == "fused":
        g = Gen({"CLR", "PQ", "AT", "BH1", "BH2", "BA", "A", "RED"}, True, o)
        a = g.build()
        txt = kernel_file([(NAME + "_kernel", (256, 1, 1), (512, 1, 1), LDS_SIZE)], [(NAME + "_kernel", a.text(), 256, 102, 256)])
    else:
        phases = [("k0", {"CLR"}), ("k1", {"PQ"}), ("k2", {"BH1", "A"}), ("k3", {"BA", "AT"}), ("k4", {"BH2"}), ("k5", {"RED"})]
        ks = []; ls = []
        for nm, en in phases:
            g = Gen(en, False, o, tag="_" + nm)
            a = g.build()
            ks.append((nm + "_kernel", a.text(), 256, 102, 256)); ls.append((nm + "_kernel", (256, 1, 1), (512, 1, 1), LDS_SIZE))
        txt = kernel_file(ls, ks)
    open(fname, "w").write(txt)

if __name__ == "__main__":
    import argparse
    ap = argparse.ArgumentParser()
    ap.add_argument("out"); ap.add_argument("--mode", default="fused"); ap.add_argument("-D", type=int, default=10); ap.add_argument("--DS", type=int, default=16)
    ap.add_argument("--stamps", action="store_true"); ap.add_argument("--D0", type=int, default=10); ap.add_argument("--g", default="2,2,4"); ap.add_argument("--gat", type=int, default=0); ap.add_argument("--gbh1", type=int, default=0); ap.add_argument("--gbh2", type=int, default=0); ap.add_argument("--pd", type=int, default=1); ap.add_argument("--tap", default="0,0,0,0"); ap.add_argument("--rt3", type=int, default=4); ap.add_argument("--rat", type=int, default=2); ap.add_argument("--nowait", action="store_true"); ap.add_argument("--eg", type=int, default=2); ap.add_argument("--ega", type=int, default=2); ap.add_argument("--egb", type=int, default=2); ap.add_argument("--atl", type=int, default=1); ap.add_argument("--sla", type=int, default=1); ap.add_argument("--slr", type=int, default=1); ap.add_argument("--pde", type=int, default=1); ap.add_argument("--sle", type=int, default=2); ap.add_argument("--gpos", type=int, default=0); ap.add_argument("--pdr", type=int, default=0); ap.add_argument("--atgate", type=int, default=9); ap.add_argument("--prog", action="store_true"); ap.add_argument("--dbg", action="store_true"); ap.add_argument("--t2e", type=int, default=0); ap.add_argument("--rot", type=int, default=0); ap.add_argument("--Dlo", type=int, default=0); ap.add_argument("--gpq", type=int, default=0); ap.add_argument("--DC", type=int, default=8); ap.add_argument("--DB", type=int, default=8); ap.add_argument("--atw", type=int, default=4); ap.add_argument("--cap", type=int, default=1000); ap.add_argument("--qfirst", type=int, default=192); ap.add_argument("--cheap", type=int, default=1); ap.add_argument("--sprio", type=int, default=2); ap.add_argument("--bh2hold", type=int, default=0); ap.add_argument("--sh1", default=""); ap.add_argument("--sh2", default=""); ap.add_argument("--NC0", type=int, default=16)
    x = ap.parse_args()
    x.Dlo = x.Dlo or x.D
    x.tap = [int(v) for v in x.tap.split(',')]
    x.g = [int(v) for v in x.g.split(",")]
    if x.sh1: SH1 = tuple(int(v) for v in x.sh1.split(","))
    if x.sh2: SH2 = tuple(int(v) for v in x.sh2.split(","))
    assert sum(SH1) == 128 and sum(SH2) == 128
    emit(x.out, x)
```

```python
import sys, math, struct
from asmlib import *

WS_EP   = 0x00000
WS_OP   = 0x10000
WS_T1S  = 0x50000
WS_QABS = 0x70000
WS_FLG  = 0x08000
WS_YA   = 0x90000
WS_YB   = 0xD8000
WS_BP   = 0x200000
WS_SIZE = 0x10000000
STAMPOFF = 200 << 20
PH_OFF = 201 << 20
L_PQ    = 73728
L_P     = 131072
L_MX    = 139264
L_ACOMB = 147456
L_AST   = 151552
L_CNT   = 151616
L_SM    = 151680
L_QA    = L_SM + 6400
LDS_SIZE = 163840
OOB = 0x40000000
NEGMAX = 0xFF7FFFFF
CSC = struct.unpack("<I", struct.pack("<f", (128 ** -0.5) * math.log2(math.e)))[0]
DPPM = "row_mask:0xf bank_mask:0xf"
SPIN = 200000
P_AX, P_K, P_V, P_WQ, P_WO, P_BX, P_CKV, P_BWQ, P_WUK, P_WUV, P_BWO, P_OUT, P_DBG, P_WS = [64 + 2 * i for i in range(14)]
S_TAG = 63
NSPLIT_B = 16
SH1 = (30, 30, 45, 23)
SH2 = (26, 26, 41, 35)
def share(pair, t):
    sh = SH1 if pair < 32 else SH2
    u0 = sum(sh[:t])
    return 32 * u0, 32 * (u0 + sh[t])
def vr(b, n=4): return f"v[{b}:{b+n-1}]"
MF = "v_mfma_f32_16x16x32_bf16"

class Gen:
    def __init__(self, en, fused, opt, tag=""):
        self.a = Asm(); self.en = en; self.fused = fused; self.o = opt; self.stamps = opt.stamps and fused; self.tag = tag
        self.role = ""
        self.dbgmap = {("a", 8): 2, ("t1", 1): 3, ("bh1", 2): 4, ("t1", 7): 5, ("bh2", 4): 6, ("a", 11): 7, ("at", 2): 8, ("a", 14): 9}
    def L(self, s): return s + self.tag
    def srd(self, d, p, size):
        self.a(f"s_mov_b32 s{d}, s{p}\ns_mov_b32 s{d+1}, s{p+1}\ns_mov_b32 s{d+2}, {size}\ns_mov_b32 s{d+3}, 0x20000")
    def stamp(self, k, vt=250):
        if self.o.dbg and self.fused:
            slot = self.dbgmap.get((self.role, k))
            if slot is None: return
            self.a(f"""
            s_memrealtime s[92:93]
            s_mov_b32 s8, s{P_DBG}
            s_mov_b32 s9, s{P_DBG+1}
            s_mov_b32 s10, 256
            s_mov_b32 s11, 0x20000
            s_waitcnt lgkmcnt(0)
            v_mov_b32 v{vt}, s92
            v_mov_b32 v{vt+2}, 0
            s_mov_b64 s[96:97], exec
            s_mov_b64 exec, 1
            buffer_atomic_umax v{vt}, v{vt+2}, s[8:11], 0 offen offset:{4 * slot} sc1
            s_mov_b64 exec, s[96:97]
            """)
            return
        if not self.stamps: return
        self.a(f"""
        s_memrealtime s[92:93]
        s_lshl_b32 s94, s2, 7
        s_add_u32 s94, s94, {PH_OFF + 8 * k}
        s_waitcnt lgkmcnt(0)
        v_mov_b32 v{vt}, s92
        v_mov_b32 v{vt+1}, s93
        v_mov_b32 v{vt+2}, 0
        s_mov_b64 s[96:97], exec
        s_mov_b64 exec, 1
        buffer_store_dwordx2 v[{vt}:{vt+1}], v{vt+2}, s[4:7], s94 offen
        s_mov_b64 exec, s[96:97]
        """)
    def wait_lds(self, slot, target, vt, sleep=0):
        a = self.a; lab = a.new_label(self.L("L_wl"))
        a(f"""
        v_mov_b32 v{vt}, {L_CNT + 4 * slot}
        s_mov_b32 s29, {SPIN * 8}
        {lab}:
        ds_read_b32 v{vt+1}, v{vt}
        s_sub_u32 s29, s29, 1
        s_cbranch_scc1 {lab}_x
        s_waitcnt lgkmcnt(0)
        v_readfirstlane_b32 s28, v{vt+1}
        s_cmp_ge_u32 s28, {target}
        s_cbranch_scc1 {lab}_x
        """)
        if sleep: a(f"s_sleep {sleep}")
        a(f"s_branch {lab}\n{lab}_x:\ns_waitcnt lgkmcnt(0)")
    def sbar(self, k, vt):
        self.a(f"""
        s_waitcnt lgkmcnt(0)
        v_mov_b32 v{vt}, {L_CNT + 4 * k}
        v_mov_b32 v{vt+1}, 1
        s_mov_b64 exec, 1
        ds_add_u32 v{vt}, v{vt+1}
        s_mov_b64 exec, -1
        """)
        self.wait_lds(k, 4, vt)
    def signal(self, k, vt):
        if not self.fused: return
        self.a(f"""
        v_mov_b32 v{vt}, {L_CNT + 4 * k}
        v_mov_b32 v{vt+1}, 1
        s_mov_b64 exec, 1
        ds_add_u32 v{vt}, v{vt+1}
        s_mov_b64 exec, -1
        """)
    def get_tag(self, vt):
        if not self.fused: return
        self.wait_lds(12, 1, vt, 1)
        self.a(f"ds_read_b32 v{vt+1}, v{vt} offset:4\ns_waitcnt lgkmcnt(0)\nv_readfirstlane_b32 s{S_TAG}, v{vt+1}")
    def check_flags(self, voff, vt):
        if not self.fused: return
        a = self.a; lab = a.new_label(self.L("L_cf"))
        a(f"""
        s_mov_b32 s29, {SPIN}
        {lab}:
        buffer_load_dword v{vt+1}, v{voff}, s[4:7], 0 offen sc1
        s_sub_u32 s29, s29, 1
        s_cbranch_scc1 {lab}_x
        s_waitcnt vmcnt(0)
        v_cmp_ne_u32 vcc, s{S_TAG}, v{vt+1}
        s_cbranch_vccz {lab}_x
        s_mov_b64 exec, vcc
        s_sleep 4
        s_branch {lab}
        {lab}_x:
        s_mov_b64 exec, -1
        s_waitcnt vmcnt(0)
        """)
    def flag_wg(self, v):
        self.a(f"v_lshlrev_b32 v{v}, 7, v{v}\nv_add_u32 v{v}, {WS_FLG}, v{v}")
    def flag_aid(self, v):
        self.a(f"v_lshlrev_b32 v{v}, 10, v{v}\nv_add_u32 v{v}, {WS_OP + 896}, v{v}")
    def gate(self, val, vt):
        if not self.fused: return
        a = self.a; lab = a.new_label(self.L("L_gate"))
        a(f"""
        s_cmp_lg_u32 s3, 0
        s_cbranch_scc1 {lab}
        v_mov_b32 v{vt}, {L_CNT + 4 * 10}
        v_mov_b32 v{vt+1}, {val}
        ds_write_b32 v{vt}, v{vt+1}
        {lab}:
        """)
    def fetch_q(self, vb, gate_after_flags=False):
        a = self.a
        if "A" not in self.en: return
        a(f"""
        s_and_b32 s52, s45, 15
        s_lshl_b32 s53, s52, 2
        s_add_u32 s53, s53, 64
        v_bfe_u32 v{vb}, v0, 3, 2
        v_add_u32 v{vb+1}, s53, v{vb}
        """)
        self.flag_wg(vb + 1)
        a(f"""
        s_lshl_b32 s53, s45, 12
        s_add_u32 s53, s53, {WS_OP + 896}
        v_mov_b32 v{vb+2}, s53
        v_cmp_lt_u32 vcc, 31, v0
        v_cndmask_b32 v{vb+1}, v{vb+1}, v{vb+2}, vcc
        v_and_b32 v{vb+2}, 7, v0
        v_lshlrev_b32 v{vb+2}, 4, v{vb+2}
        v_lshl_add_u32 v{vb+2}, v{vb}, 10, v{vb+2}
        s_lshl_b32 s52, s52, 12
        s_lshr_b32 s53, s45, 4
        s_lshl_b32 s53, s53, 7
        s_add_u32 s52, s52, s53
        s_add_u32 s52, s52, {WS_T1S + 64 * 1024}
        v_lshlrev_b32 v{vb+3}, 4, v0
        v_add_u32 v{vb+3}, {L_QA}, v{vb+3}
        """)
        self.check_flags(vb + 1, vb + 8)
        if gate_after_flags and self.fused:
            a(f"v_mov_b32 v{vb+8}, {L_CNT + 4 * 10}\nv_mov_b32 v{vb+9}, 4\nds_write_b32 v{vb+8}, v{vb+9}")
        a("s_mov_b32 exec_hi, 0")
        self.poll([f"buffer_load_dwordx4 {vr(vb+4)}, v{vb+2}, s[4:7], s52 offen sc1"], range(vb + 4, vb + 8), vb + 8, sleep=2)
        a(f"""
        s_mov_b32 exec_hi, 0
        ds_write_b128 v{vb+3}, {vr(vb+4)}
        v_mov_b32 v{vb+8}, {L_CNT + 4 * 9}
        v_mov_b32 v{vb+9}, 1
        ds_write_b32 v{vb+8}, v{vb+9}
        s_mov_b64 exec, -1
        """)
    def maxchain(self, regs, vt):
        a = self.a
        rs = list(regs); cur = rs[0]; rest = rs[1:]
        while rest:
            if len(rest) >= 2:
                a(f"v_max3_u32 v{vt}, v{cur}, v{rest[0]}, v{rest[1]}"); rest = rest[2:]
            else:
                a(f"v_max_u32 v{vt}, v{cur}, v{rest[0]}"); rest = rest[1:]
            cur = vt
        a(f"v_cmp_eq_u32 vcc, -1, v{cur}")
        if self.o.nowait: a("s_mov_b64 vcc, 0")
    def fpoll(self, loads, regs, vt, depth=2, sleep=0, lsleep=0):
        a = self.a; lab = a.new_label(self.L("L_fp")); n = len(loads)
        a(f"s_mov_b32 s29, {SPIN}")
        for _ in range(depth - 1):
            for l in loads: a(l)
            if sleep: a(f"s_sleep {sleep}")
        a.label(lab)
        for l in loads: a(l)
        a(f"s_sub_u32 s29, s29, 1\ns_cbranch_scc1 {lab}_x\ns_waitcnt vmcnt({n * (depth - 1)})")
        self.maxchain(regs, vt)
        a(f"s_cbranch_vccz {lab}_x\ns_mov_b64 exec, vcc")
        if lsleep: a(f"s_sleep {lsleep}")
        a(f"s_branch {lab}\n{lab}_x:\ns_mov_b64 exec, -1")
    def poll(self, loads, regs, vt, sleep=4):
        a = self.a; lab = a.new_label(self.L("L_poll"))
        a(f"s_mov_b32 s29, {SPIN}\n{lab}:")
        for l in loads: a(l)
        a(f"s_sub_u32 s29, s29, 1\ns_cbranch_scc1 {lab}_x\ns_waitcnt vmcnt(0)")
        self.maxchain(regs, vt)
        a(f"s_cbranch_vccz {lab}_x\ns_mov_b64 exec, vcc")
        if sleep: a(f"s_sleep {sleep}")
        a(f"s_branch {lab}\n{lab}_x:\ns_mov_b64 exec, -1\ns_waitcnt vmcnt(0)")
    def sanitize(self, regs):
        for r in regs: self.a(f"v_min_u32 v{r}, -2, v{r}")
    def xg_reduce(self, op, x, y):
        self.a(f"""
        v_mov_b32 v{y}, v{x}
        v_permlane16_swap_b32 v{x}, v{y}
        {op} v{x}, v{x}, v{y}
        v_mov_b32 v{y}, v{x}
        v_permlane32_swap_b32 v{x}, v{y}
        {op} v{x}, v{x}, v{y}
        """)
    def dma(self, voff, srd, soff, imm=0, depth=None):
        self.a(f"s_waitcnt vmcnt({(depth or self.o.DS) - 1})")
        self.a(f"buffer_load_dwordx4 v{voff}, {srd}, {soff} offen offset:{imm} nt lds")

    def build(self):
        a = self.a; L = self.L
        a(f"""
        s_cmp_ge_u32 s2, 256
        s_cbranch_scc1 {L('L_end')}
        s_load_dwordx16 s[64:79], s[0:1], 0
        s_load_dwordx8 s[80:87], s[0:1], 64
        s_load_dwordx4 s[88:91], s[0:1], 96
        """)
        if self.stamps or self.o.dbg: a("s_memrealtime s[98:99]")
        l1 = a.new_label(L("L_id1")); l2 = a.new_label(L("L_id2"))
        a(f"""
        v_lshrrev_b32 v1, 6, v0
        v_and_b32 v0, 63, v0
        v_readfirstlane_b32 s3, v1
        v_lshlrev_b32 v1, 2, v0
        v_add_u32 v1, {L_CNT}, v1
        v_mov_b32 v2, 0
        s_mov_b64 exec, 0xffff
        ds_write_b32 v1, v2
        s_mov_b64 exec, -1
        s_lshr_b32 s28, s2, 5                ; 0..7
        s_lshl_b32 s29, s28, 2
        s_lshr_b32 s46, 0x13220030, s29
        s_and_b32 s46, s46, 15
        s_lshr_b32 s45, {(self.o.rat << 28) | (self.o.rt3 << 20) | (self.o.rt3 << 16)}, s29
        s_and_b32 s45, s45, 15               ; rotation : T3 4, AT 2
        s_add_u32 s45, s45, s2
        s_and_b32 s45, s45, 31
        s_lshr_b32 s29, 0x22, s28
        s_and_b32 s29, s29, 1
        s_lshl_b32 s29, s29, 5
        s_add_u32 s45, s45, s29
        s_lshr_b32 s28, s2, 6
        s_cmp_lg_u32 s28, 1
        s_cbranch_scc1 {l2}
        s_lshr_b32 s45, s2, 1
        s_and_b32 s46, s2, 1
        {l2}:
        s_lshl_b32 s47, s45, 2
        s_add_u32 s47, s47, s46
        v_lshrrev_b32 v1, 4, v0
        v_and_b32 v2, 15, v0
        v_lshlrev_b32 v4, 4, v0
        s_waitcnt lgkmcnt(0)
        """)
        self.srd(4, P_WS, WS_SIZE)
        if "CLR" in self.en: self.clear()
        a(f"""
        s_barrier
        s_cmp_ge_u32 s3, 4
        s_cbranch_scc1 {L('L_awave')}
        s_setprio {self.o.sprio}
        s_cmp_ge_u32 s2, 224
        s_cbranch_scc1 {L('L_at')}
        s_cmp_ge_u32 s2, 192
        s_cbranch_scc1 {L('L_bh2')}
        s_cmp_ge_u32 s2, 128
        s_cbranch_scc1 {L('L_bh1')}
        """)
        self.role_t1()
        a.label(L("L_at"));  self.role_at();  a(f"s_branch {L('L_fin')}")
        a.label(L("L_bh1")); self.role_bh1(); a(f"s_branch {L('L_fin')}")
        a.label(L("L_bh2")); self.role_bh2(); a(f"s_branch {L('L_fin')}")
        a.label(L("L_awave")); self.role_a()
        a.label(L("L_fin"))
        if self.stamps:
            a(f"""
            s_mov_b64 exec, -1
            s_waitcnt vmcnt(0)
            s_memrealtime s[92:93]
            s_lshl_b32 s94, s2, 3
            s_add_u32 s94, s94, s3
            s_lshl_b32 s94, s94, 4
            s_add_u32 s94, s94, {STAMPOFF}
            s_waitcnt lgkmcnt(0)
            v_mov_b32 v4, s98
            v_mov_b32 v5, s99
            v_mov_b32 v6, s92
            v_mov_b32 v7, s93
            v_mov_b32 v1, 0
            s_mov_b64 exec, 1
            buffer_store_dwordx4 v[4:7], v1, s[4:7], s94 offen
            """)
        a.label(L("L_end"))
        a("s_endpgm")
        return a

    def clear(self):
        a = self.a; L = self.L
        done = a.new_label(L("L_clrd")); c1 = a.new_label(L("L_clr1")); c2 = a.new_label(L("L_clr2")); lp = a.new_label(L("L_clrl"))
        a(f"""
        s_cmp_lg_u32 s3, 4
        s_cbranch_scc1 {done}
        s_setprio 3
        s_load_dword s{S_TAG}, s[{P_WS}:{P_WS+1}], 0
        v_mov_b32 v8, -1
        v_mov_b32 v9, -1
        v_mov_b32 v10, -1
        v_mov_b32 v11, -1
        s_lshl_b32 s30, s47, 10
        s_add_u32 s30, s30, {WS_OP}
        s_lshr_b32 s31, s2, 5
        s_cmp_eq_u32 s31, 6
        s_cselect_b32 s31, 0, -1
        s_cselect_b32 s32, {NEGMAX}, -1
        v_mov_b32 v12, s31
        v_mov_b32 v13, s31
        v_mov_b32 v14, s31
        v_mov_b32 v15, s31
        s_mov_b32 exec_lo, 0
        v_mov_b32 v12, s32
        v_mov_b32 v14, s32
        s_mov_b32 exec_lo, -1
        s_mov_b32 exec_hi, 0xffffff
        buffer_store_dwordx4 v[12:15], v4, s[4:7], s30 offen sc1
        s_mov_b64 exec, -1
        s_cmp_ge_u32 s2, 128
        s_cbranch_scc1 {c1}
        s_lshl_b32 s31, s2, 10
        s_add_u32 s31, s31, {WS_T1S}
        s_mov_b32 s32, 1
        s_branch {lp}
        {c1}:
        s_cmp_ge_u32 s2, 192
        s_cbranch_scc1 {c2}
        s_cmp_ge_u32 s2, 160
        s_cbranch_scc1 {done}
        s_sub_u32 s31, s2, 128
        s_lshl_b32 s31, s31, 12
        s_add_u32 s31, s31, {WS_QABS}
        s_mov_b32 s32, 4
        s_branch {lp}
        {c2}:
        s_and_b32 s31, s2, 31
        s_mul_i32 s31, s31, 9216
        s_add_u32 s31, s31, {WS_YB}
        s_cmp_ge_u32 s2, 224
        s_cselect_b32 s32, {WS_YB - WS_YA}, 0
        s_sub_u32 s31, s31, s32
        s_mov_b32 s32, 9
        {lp}:
        buffer_store_dwordx4 v[8:11], v4, s[4:7], s31 offen sc1
        s_add_u32 s31, s31, 1024
        s_sub_u32 s32, s32, 1
        s_cmp_lg_u32 s32, 0
        s_cbranch_scc1 {lp}
        {done}:
        """)
    def clear_finish(self):
        a = self.a; L = self.L
        done = a.new_label(L("L_clrf"))
        a(f"""
        s_cmp_lg_u32 s3, 4
        s_cbranch_scc1 {done}
        s_waitcnt lgkmcnt(0)
        s_mul_i32 s{S_TAG}, s{S_TAG}, 0x9E3779B1
        s_add_u32 s{S_TAG}, s{S_TAG}, 0x7F4A7C15
        v_mov_b32 v8, s{S_TAG}
        v_mov_b32 v9, s{S_TAG}
        v_mov_b32 v10, s{S_TAG}
        v_mov_b32 v11, s{S_TAG}
        v_mov_b32 v12, 1
        v_mov_b32 v13, s{S_TAG}
        v_mov_b32 v14, {L_CNT + 4 * 12}
        s_lshl_b32 s31, s2, 7
        s_add_u32 s31, s31, {WS_FLG}
        s_waitcnt vmcnt(0)
        s_mov_b64 exec, 0xff
        buffer_store_dwordx4 v[8:11], v4, s[4:7], s30 offen offset:896 sc1
        buffer_store_dwordx4 v[8:11], v4, s[4:7], s31 offen sc1
        s_mov_b64 exec, 1
        ds_write_b64 v14, v[12:13]
        s_mov_b64 exec, -1
        s_setprio 0
        """)
        self.stamp(8)
        if self.o.dbg:
            a(f"""
            s_not_b32 s92, s98
            v_mov_b32 v250, s92
            v_mov_b32 v251, s98
            s_mov_b64 exec, 1
            buffer_atomic_umax v250, v252, s[8:11], 0 offen sc1
            buffer_atomic_umax v251, v252, s[8:11], 0 offen offset:4 sc1
            s_mov_b64 exec, -1
            """)
        a.label(done)

    def role_t1(self):
        self.role = "t1"
        a = self.a; L = self.L
        f = lambda x: ((x & 7) << 1) | (x >> 3)
        PQ = "PQ" in self.en; BA = "BA" in self.en
        T2 = 192
        def c_setup():
            self.srd(20, P_CKV, 16 << 20)
            for r in range(16): a(f"v_xor_b32 v{24+r}, {f(r) << 4}, v4")
            if self.o.ccol:
                a("""
                s_sub_u32 s33, s2, 64
                s_lshr_b32 s36, s33, 1
                s_lshl_b32 s36, s36, 19
                s_and_b32 s37, s33, 1
                s_lshl_b32 s37, s37, 14
                s_add_u32 s36, s36, s37
                """)
            else:
                a("s_sub_u32 s33, s2, 64\ns_lshl_b32 s36, s33, 18")
        def c_loads(s_row16):
            if self.o.ccol:
                a(f"s_lshl_b32 s37, {s_row16}, 14\ns_lshl_b32 s34, {s_row16}, 11\ns_add_u32 s34, s36, s34")
                for r in range(16):
                    a("s_mov_b32 m0, s37")
                    self.dma(24 + r, "s[20:23]", "s34", 0, self.o.DC)
                    a("s_add_u32 s34, s34, 32768\ns_add_u32 s37, s37, 1024")
                a("s_lshl_b32 s35, s3, 11\ns_add_u32 s35, s36, s35\ns_add_u32 s35, s35, 1024")
                return
            a(f"s_lshl_b32 s37, {s_row16}, 14\ns_add_u32 s34, s36, s37")
            for r in range(16):
                if r % 4 == 0: a("s_mov_b32 m0, s37")
                self.dma(24 + r, "s[20:23]", "s34", (r % 4) * 1024, self.o.DC)
                if r % 4 == 3: a("s_add_u32 s34, s34, 4096\ns_add_u32 s37, s37, 4096")
            a("s_lshl_b32 s37, s3, 14\ns_add_u32 s35, s36, s37\ns_add_u32 s35, s35, 131072")
        def t2_load(r, throttle=False):
            if r >= 16: return
            a(f"v_xor_b32 v23, {f(r) << 4}, v4")
            if self.o.ccol:
                a(f"buffer_load_dwordx4 {vr(T2 + 4*r)}, v23, s[20:23], s35 offen nt\ns_add_u32 s35, s35, 32768")
                return
            a(f"buffer_load_dwordx4 {vr(T2 + 4*r)}, v23, s[20:23], s35 offen offset:{(r % 4) * 1024} nt")
            if r % 4 == 3: a("s_add_u32 s35, s35, 4096")
        if PQ:
            X = 64
            L_X = L_SM + 1024
            a(f"""
            s_cmp_lt_u32 s2, 64
            s_cselect_b32 s12, s{P_BWQ}, s{P_WQ}
            s_cselect_b32 s13, s{P_BWQ+1}, s{P_WQ+1}
            s_mov_b32 s14, {576 * 8192}
            s_mov_b32 s15, 0x20000
            s_cselect_b32 s16, s{P_BX}, s{P_AX}
            s_cselect_b32 s17, s{P_BX+1}, s{P_AX+1}
            s_mov_b32 s18, {4 * 1152}
            s_mov_b32 s19, 0x20000
            s_and_b32 s34, s2, 63
            s_lshl_b32 s34, s34, 7               ; h*256 + ch*128
            s_mul_i32 s35, s3, {18 * 65536}
            s_add_u32 s34, s34, s35
            s_mul_i32 s35, s3, {18 * 1024}
            s_add_u32 s35, s35, {L_PQ}
            v_lshlrev_b32 v5, 1, v1
            v_and_b32 v6, 7, v0
            v_xor_b32 v5, v5, v6
            v_lshlrev_b32 v5, 4, v5
            v_lshrrev_b32 v6, 3, v0
            v_lshl_add_u32 v5, v6, 13, v5
            s_mov_b32 m0, {L_X}
            v_and_b32 v6, 3, v2
            buffer_load_dwordx4 v4, s[16:19], 0 offen lds
            buffer_load_dwordx4 v4, s[16:19], 0 offen offset:1024 lds
            buffer_load_dwordx4 v4, s[16:19], 0 offen offset:2048 lds
            buffer_load_dwordx4 v4, s[16:19], 0 offen offset:3072 lds
            s_mov_b32 m0, {L_X + 4096}
            s_mov_b32 s38, 4096
            buffer_load_dwordx4 v4, s[16:19], s38 offen lds
            """)
            for i in range(18):
                a("s_mov_b32 m0, s35")
                self.dma(5, "s[12:15]", "s34", 0, 60)
                if i != 17: a("s_add_u32 s34, s34, 65536\ns_add_u32 s35, s35, 1024")
            if self.o.gpq == 0: self.gate(4, 16)
            a(f"""
            v_mul_u32_u24 v6, 1152, v6
            v_lshl_add_u32 v6, v1, 3, v6
            v_add_u32 v6, {L_X}, v6
            s_waitcnt vmcnt(18)
            """)
            for s in range(18):
                a(f"ds_read2_b64 {vr(X + 4*s)}, v6 offset0:{8*s} offset1:{8*s+4}")
                if s == 12: a("s_waitcnt lgkmcnt(8)")
            a(f"""
            v_lshrrev_b32 v7, 2, v0
            v_bfe_u32 v8, v0, 3, 2
            v_xor_b32 v8, s3, v8
            v_lshlrev_b32 v8, 5, v8
            v_lshl_add_u32 v8, v7, 7, v8
            v_and_b32 v7, 3, v0
            v_lshl_add_u32 v8, v7, 3, v8
            v_add_u32 v8, {L_PQ}, v8
            v_add_u32 v9, 0x8000, v8
            v_and_b32 v6, 3, v2
            v_lshlrev_b32 v6, 7, v6
            v_lshl_add_u32 v6, v1, 3, v6
            s_lshl_b32 s38, s3, 5
            s_add_u32 s38, s38, {L_SM}
            v_add_u32 v6, s38, v6
            """)
            self.get_tag(16)
            if self.o.gpq == 1:
                a("s_waitcnt vmcnt(8)"); self.gate(4, 16)
            a("s_waitcnt vmcnt(0)")
            if self.o.gpq == 2: self.gate(4, 16)
            self.stamp(0, 20)
            self.sbar(0, 16)
            W = 140; NB = 8; PRE = 6
            def rd(s):
                base, off = (8, s * 4096) if s < 8 else (9, (s - 8) * 4096)
                r = W + 4 * (s % NB)
                a(f"ds_read_b64_tr_b16 v[{r}:{r+1}], v{base} offset:{off}")
                a(f"ds_read_b64_tr_b16 v[{r+2}:{r+3}], v{base} offset:{off + 2048}")
            for s in range(PRE): rd(s)
            for s in range(18):
                if s + PRE < 18: rd(s + PRE)
                a(f"s_waitcnt lgkmcnt({2 * min(PRE, 17 - s)})")
                acc = 40 + 4 * (s & 1)
                a(f"{MF} {vr(acc)}, {vr(W + 4 * (s % NB))}, {vr(X + 4*s)}, {'0' if s < 2 else vr(acc)}")
            a(f"""
            v_add_f32 v40, v40, v44
            v_add_f32 v41, v41, v45
            v_add_f32 v42, v42, v46
            v_add_f32 v43, v43, v47
            v_cvt_pk_bf16_f32 v44, v40, v41
            v_cvt_pk_bf16_f32 v45, v42, v43
            """)
            self.sanitize([44, 45])
            a("ds_write_b64 v6, v[44:45]")
            self.sbar(1, 16)
            sk = a.new_label(L("L_pqs"))
            a(f"""
            s_cmp_lg_u32 s3, 0
            s_cbranch_scc1 {sk}
            v_add_u32 v6, {L_SM}, v4
            s_lshl_b32 s38, s2, 10
            s_add_u32 s38, s38, {WS_T1S}
            s_mov_b32 exec_hi, 0
            ds_read_b128 v[40:43], v6
            s_waitcnt lgkmcnt(0)
            buffer_store_dwordx4 v[40:43], v4, s[4:7], s38 offen sc1
            s_mov_b64 exec, -1
            """)
            if self.o.gpq == 3: self.gate(4, 16)
            self.stamp(1, 20)
            a.label(sk)
        t1b = a.new_label(L("L_t1b"))
        a(f"s_cmp_ge_u32 s2, 64\ns_cbranch_scc1 {t1b}\ns_cmp_lg_u32 s3, 1\ns_cbranch_scc1 {L('L_fin')}")
        self.fetch_q(40)
        a(f"s_branch {L('L_fin')}\n{t1b}:")
        if not BA:
            a(f"s_cmp_lg_u32 s3, 1\ns_cbranch_scc1 {L('L_fin')}")
            self.fetch_q(40)
            a(f"s_branch {L('L_fin')}")
            a.label(L("L_ba_a"))
            a(f"s_branch {L('L_amain')}")
            return
        c_setup()
        a("s_add_u32 s38, s3, 4")
        c_loads("s38")
        a(f"s_branch {L('L_ba_c')}")
        a.label(L("L_ba_a"))
        c_setup()
        if self.fused: self.wait_lds(10, 1, 16, 1)
        c_loads("s44")
        self.get_tag(16)
        sk = a.new_label(L("L_noq"))
        a(f"s_cmp_lg_u32 s3, 4\ns_cbranch_scc1 {sk}")
        self.fetch_q(40)
        a.label(sk)
        a(f"s_setprio {self.o.sprio}")
        a.label(L("L_ba_c"))
        L_QS = L_P
        a(f"""
        s_and_b32 s38, s3, 1             ; hg
        s_lshr_b32 s43, s3, 1            ; kq
        v_and_b32 v5, 7, v2
        v_lshlrev_b32 v5, 1, v5
        v_lshrrev_b32 v6, 3, v2
        v_or_b32 v5, v5, v6
        v_lshlrev_b32 v5, 4, v5
        v_lshl_add_u32 v5, v1, 8, v5
        v_lshl_add_u32 v5, v2, 10, v5
        s_lshl_b32 s37, s43, 15
        v_add_u32 v5, s37, v5
        s_lshr_b32 s39, s33, 4           ; b
        s_lshl_b32 s39, s39, 9
        s_lshl_b32 s40, s3, 13
        s_add_u32 s39, s39, s40
        s_add_u32 s39, s39, {WS_QABS}    ; heads 2w,2w+1
        s_add_u32 s40, s39, 4096
        s_add_u32 s41, s39, 65536
        s_add_u32 s42, s39, {65536 + 4096}
        v_lshrrev_b32 v10, 5, v0
        v_lshlrev_b32 v10, 11, v10
        v_and_b32 v11, 31, v0
        v_lshl_add_u32 v10, v11, 4, v10  ; (l>>5)*2048 + (l&31)*16
        v_mov_b32 v3, {CSC}
        v_add_u32 v11, 128, v11
        s_lshl_b32 s37, s3, 5            ; n0*16 with n0 = 2w
        v_xor_b32 v12, s37, v4
        s_lshl_b32 s37, s3, 11
        s_add_u32 s37, s37, {L_QS}
        v_add_u32 v12, s37, v12
        v_xor_b32 v13, 16, v12
        v_add_u32 v13, 1024, v13         ; head 2w+1
        v_xor_b32 v14, v1, v2
        v_lshlrev_b32 v14, 4, v14
        v_lshl_add_u32 v14, v2, 10, v14
        v_add_u32 v14, {L_QS}, v14
        v_xor_b32 v15, 64, v14
        v_xor_b32 v18, 0x80, v14
        v_xor_b32 v19, 0xc0, v14
        """)
        self.flag_wg(11)
        self.check_flags(11, 16)
        a("s_waitcnt vmcnt(0)\ns_barrier")
        self.stamp(2, 20)
        G = 40; Q = 64
        self.fpoll([f"buffer_load_dwordx4 {vr(G + 4*k)}, v10, s[4:7], s{39+k} offen sc1" for k in range(4)], range(G, G + 16), 16, depth=self.o.pde, lsleep=self.o.sle)
        nt2 = [self.o.t2e]
        def t2_more(n):
            for _ in range(n):
                t2_load(nt2[0]); nt2[0] += 1
        t2_more(4)
        self.stamp(3, 20)
        def qread():
            for j in range(16):
                a(f"ds_read_b128 {vr(Q + 4*j)}, v{[14, 15, 18, 19][j & 3]} offset:{(j >> 2) * 256}")
                if j == 11: a("s_waitcnt lgkmcnt(8)")
        for hg in range(2):
            sk = a.new_label(L("L_qs"))
            a(f"""
            ds_write_b128 v12, {vr(G + 8*hg)}
            ds_write_b128 v13, {vr(G + 8*hg + 4)}
            s_waitcnt lgkmcnt(0)
            s_barrier
            s_cmp_lg_u32 s38, {hg}
            s_cbranch_scc1 {sk}
            """)
            qread()
            a(f"s_waitcnt lgkmcnt(0)\n{sk}:")
            t2_more(2)
            if hg == 0: a("s_barrier")
        a(f"""
        v_lshlrev_b32 v12, 4, v2
        v_add_u32 v12, {L_SM}, v12
        s_lshl_b32 s37, s38, 8
        s_lshl_b32 s39, s43, 2
        s_add_u32 s37, s37, s39
        v_add_u32 v13, s37, v12
        s_lshl_b32 s37, s38, 12
        s_lshl_b32 s39, s43, 10
        s_add_u32 s37, s37, s39
        s_add_u32 s37, s37, {L_P}
        v_add_u32 v14, s37, v4               ; P write
        v_add_u32 v15, {L_P}, v4             ; P read
        v_lshrrev_b32 v6, 2, v0
        v_and_b32 v7, 7, v6
        v_lshlrev_b32 v7, 1, v7
        v_lshrrev_b32 v8, 3, v6
        v_or_b32 v7, v7, v8
        v_bfe_u32 v8, v0, 1, 1
        v_xor_b32 v7, v7, v8
        v_lshlrev_b32 v7, 4, v7
        v_lshl_add_u32 v7, v6, 10, v7
        v_and_b32 v8, 1, v0
        v_lshl_add_u32 v7, v8, 3, v7
        s_lshl_b32 s41, s3, 7
        v_xor_b32 v7, s41, v7
        s_lshl_b32 s37, s3, 14
        v_add_u32 v18, s37, v4
        v_mov_b32 v10, {NEGMAX}              ; m hg0
        v_mov_b32 v11, {NEGMAX}              ; m hg1
        v_mov_b32 v19, 0                     ; l partial
        s_waitcnt vmcnt({max(0, min(16, nt2[0]) - self.o.t2e)})
        """)
        for ct in range(4):
            a(f"v_xor_b32 v{24+ct}, {ct << 5}, v7\nv_add_u32 v{28+ct}, 0x10000, v{24+ct}")
        self.stamp(4, 20)
        S = 40; A = 128; NB = 8; ACC = 160; PB = 40
        for ps in range(2):
            seq = [(j, t) for j in range(16) for t in range(2)]
            def rd(i):
                j, t = seq[i]
                if t == 0: a(f"v_xor_b32 v{32 + (j & 3)}, {j << 4}, v5")
                a(f"ds_read_b128 {vr(A + 4 * (i % NB))}, v{32 + (j & 3)} offset:{t * 16384}")
            PRE = 6
            for i in range(PRE): rd(i)
            for i, (j, t) in enumerate(seq):
                if i + PRE < len(seq): rd(i + PRE)
                a(f"s_waitcnt lgkmcnt({min(PRE, len(seq) - 1 - i)})")
                acc = S + 4 * t
                a(f"{MF} {vr(acc)}, {vr(A + 4 * (i % NB))}, {vr(Q + 4*j)}, {'0' if j == 0 else vr(acc)}")
                if ps == 0 and i % 4 == 3: t2_more(1)
            for e in range(8): a(f"v_mul_f32 v{S+e}, v3, v{S+e}")
            a(f"""
            v_max3_f32 v8, v{S}, v{S+1}, v{S+2}
            v_max3_f32 v8, v8, v{S+3}, v{S+4}
            v_max3_f32 v8, v8, v{S+5}, v{S+6}
            v_max_f32 v8, v8, v{S+7}
            """)
            self.xg_reduce("v_max_f32", 8, 9)
            a(f"""
            ds_write_b32 v13, v8
            s_waitcnt lgkmcnt(0)
            s_barrier
            ds_read_b128 v[52:55], v12
            ds_read_b128 v[56:59], v12 offset:256
            s_cmp_eq_u32 s38, 0
            s_cselect_b64 s[26:27], -1, 0
            s_waitcnt lgkmcnt(0)
            v_max3_f32 v52, v52, v53, v54
            v_max3_f32 v56, v56, v57, v58
            v_max3_f32 v52, v52, v55, v10
            v_max3_f32 v56, v56, v59, v11
            v_sub_f32 v60, v10, v52
            v_sub_f32 v61, v11, v56
            v_mov_b32 v10, v52
            v_mov_b32 v11, v56
            v_cndmask_b32 v8, v56, v52, s[26:27]
            v_exp_f32 v60, v60
            v_exp_f32 v61, v61
            """)
            for e in range(8): a(f"v_sub_f32 v{S+e}, v{S+e}, v8")
            for e in range(8): a(f"v_exp_f32 v{S+e}, v{S+e}")
            a("v_cndmask_b32 v9, v61, v60, s[26:27]")
            for e in range(4): a(f"v_cvt_pk_bf16_f32 v{48+e}, v{S+2*e}, v{S+2*e+1}")
            a(f"ds_write_b128 v14, v[48:51]\nv_fma_f32 v19, v19, v9, v{S}")
            for e in range(1, 8): a(f"v_add_f32 v19, v19, v{S+e}")
            if ps == 1:
                for r in range(32): a(f"v_mul_f32 v{ACC+r}, v{60 + (r >> 4)}, v{ACC+r}")
                self.xg_reduce("v_add_f32", 19, 9)
                a("ds_write_b32 v13, v19 offset:512")
            a("s_waitcnt lgkmcnt(0)\ns_barrier")
            seq = [(u, ct) for u in range(4) for ct in range(4)]
            def rd2(i):
                u, ct = seq[i]
                if ct == 0:
                    for hg in range(2): a(f"ds_read_b128 {vr(PB + 8 * (u & 1) + 4 * hg)}, v15 offset:{hg * 4096 + u * 1024}")
                base = (24 if u < 2 else 28) + ct; off = (u & 1) * 32768; r = A + 4 * (i % NB)
                a(f"ds_read_b64_tr_b16 v[{r}:{r+1}], v{base} offset:{off}")
                a(f"ds_read_b64_tr_b16 v[{r+2}:{r+3}], v{base} offset:{off + 16384}")
            cnt = lambda i: 2 + (2 if seq[i][1] == 0 else 0)
            PRE = 4
            for i in range(PRE): rd2(i)
            for i, (u, ct) in enumerate(seq):
                if i + PRE < len(seq): rd2(i + PRE)
                a(f"s_waitcnt lgkmcnt({sum(cnt(k) for k in range(i + 1, min(i + PRE + 1, len(seq))))})")
                for hg in range(2):
                    acc = ACC + 16 * hg + 4 * ct
                    a(f"{MF} {vr(acc)}, {vr(A + 4 * (i % NB))}, {vr(PB + 8 * (u & 1) + 4 * hg)}, {'0' if (u == 0 and ps == 0) else vr(acc)}")
            if ps == 0:
                self.stamp(5, 20)
                a("s_waitcnt vmcnt(0)\ns_barrier")
                self.stamp(13, 20)
                for r in range(16): a(f"ds_write_b128 v18, {vr(T2 + 4*r)} offset:{r * 1024}")
                a("s_waitcnt lgkmcnt(0)\ns_barrier")
        a(f"""
        v_and_b32 v6, 7, v2
        v_lshlrev_b32 v6, 10, v6
        v_lshrrev_b32 v8, 3, v2
        v_lshl_add_u32 v6, v8, 6, v6
        v_lshl_add_u32 v6, v1, 4, v6
        s_lshl_b32 s39, s33, 15
        s_add_u32 s39, s39, s41
        s_add_u32 s39, s39, {WS_BP}
        """)
        for hg in range(2):
            acc = ACC + 16 * hg; X0 = 64 + 8 * hg; X1 = X0 + 4
            for w in range(8): a(f"v_cvt_pk_bf16_f32 v{X0+w}, v{acc+2*w}, v{acc+2*w+1}")
            for w in range(4): a(f"v_mov_b32 v{80+w}, v{X0+w}")
            for w in range(4): a(f"v_mov_b32_dpp v{X0+w}, v{X1+w} row_ror:8 row_mask:0xf bank_mask:0xc")
            for w in range(4): a(f"v_mov_b32_dpp v{X1+w}, v{80+w} row_ror:8 row_mask:0xf bank_mask:0x3")
            a(f"buffer_store_dwordx4 {vr(X0)}, v6, s[4:7], s39 offen sc1\ns_add_u32 s39, s39, 8192")
            a(f"buffer_store_dwordx4 {vr(X1)}, v6, s[4:7], s39 offen sc1\ns_add_u32 s39, s39, 8192")
        self.stamp(6, 20)
        a(f"""
        s_waitcnt vmcnt(0)
        s_barrier
        s_setprio 0
        s_cmp_ge_u32 s3, 4
        s_cbranch_scc1 {L('L_amain')}
        s_cmp_lg_u32 s3, 0
        s_cbranch_scc1 {L('L_fin')}
        s_setprio 3
        v_and_b32 v6, 31, v0
        v_lshlrev_b32 v7, 4, v6
        v_add_u32 v7, {L_SM + 512}, v7
        ds_read_b128 v[40:43], v7
        v_lshlrev_b32 v6, 3, v6
        s_lshl_b32 s39, s2, 10
        s_add_u32 s39, s39, {WS_T1S + 512}
        v_cmp_eq_u32 vcc, 0, v1
        v_cndmask_b32 v8, v11, v10, vcc
        s_waitcnt lgkmcnt(0)
        v_add_f32 v9, v40, v41
        v_add_f32 v42, v42, v43
        v_add_f32 v9, v9, v42
        """)
        self.sanitize([8, 9])
        a(f"""
        s_mov_b32 exec_hi, 0
        buffer_store_dwordx2 v[8:9], v6, s[4:7], s39 offen sc1
        s_mov_b64 exec, -1
        """)
        self.stamp(7, 20)
        a(f"s_branch {L('L_fin')}")

    def stage_lin(self, srd, s_base, s_lds, n, voff):
        a = self.a
        for i in range(n):
            if i % 4 == 0: a(f"s_mov_b32 m0, {s_lds}")
            self.dma(voff, srd, s_base, (i % 4) * 1024)
            if i % 4 == 3 and i != n - 1:
                a(f"s_add_u32 {s_base}, {s_base}, 4096\ns_add_u32 {s_lds}, {s_lds}, 4096")
    def store_y(self, ys, s_y, s_y8, vt):
        a = self.a
        self.sanitize(range(ys, ys + 9))
        a(f"""
        v_lshlrev_b32 v{vt}, 2, v0
        buffer_store_dwordx4 {vr(ys)}, v4, s[4:7], {s_y} offen sc1
        buffer_store_dwordx4 {vr(ys+4)}, v4, s[4:7], {s_y} offen offset:1024 sc1
        buffer_store_dword v{ys+8}, v{vt}, s[4:7], {s_y8} offen sc1
        """)
    def y_addr(self, ybase):
        self.a(f"""
        s_mul_i32 s38, s33, 9216
        s_add_u32 s38, s38, {ybase}
        s_lshl_b32 s39, s3, 8
        s_add_u32 s39, s39, s38
        s_add_u32 s39, s39, 8192
        s_lshl_b32 s40, s3, 11
        s_add_u32 s38, s38, s40
        """)

    def role_at(self):
        self.role = "at"
        a = self.a
        if self.o.ega == 0: self.gate(4, 16)
        self.get_tag(16)
        if self.o.ega == 1: self.gate(4, 16)
        sk = a.new_label(self.L("L_atq"))
        a(f"s_cmp_lg_u32 s3, 0\ns_cbranch_scc1 {sk}")
        self.fetch_q(40, True)
        a.label(sk)
        if "AT" not in self.en: return
        if self.fused: self.wait_lds(self.o.atgate, 1, 16, 2)
        self.srd(12, P_WO, 4096 * 1152)
        a(f"""
        s_and_b32 s33, s2, 31
        s_mul_i32 s36, s33, {128 * 1152}
        s_mul_i32 s37, s3, {1024 if self.o.wcol else 36 * 1024}
        s_add_u32 s36, s36, s37
        """)
        if self.o.wcol:
            for j in range(8):
                for p in range(5 if j < 4 else 4):
                    off = j * 4096 + p * 32768
                    a(f"s_add_u32 s34, s36, {off}\ns_add_u32 m0, s37, {off}")
                    self.dma(4, "s[12:15]", "s34")
        else:
            self.stage_lin("s[12:15]", "s36", "s37", 36, 4)
        a(f"""
        v_lshrrev_b32 v5, 2, v0
        v_mul_u32_u24 v5, {8 * 1152}, v5
        v_and_b32 v6, 3, v0
        v_lshl_add_u32 v5, v6, 3, v5
        s_lshl_b32 s38, s3, 5
        s_add_u32 s38, s38, 1024
        v_add_u32 v6, s38, v5
        s_lshl_b32 s38, s3, 8
        v_add_u32 v5, s38, v5
        s_waitcnt vmcnt(0)
        """)
        self.sbar(0, 16)
        WO = 64
        for ct in range(9):
            for j in range(4):
                r = WO + 16 * ct + 4 * j
                base, co = (5, ct * 32) if ct < 8 else (6, 0)
                a(f"ds_read_b64_tr_b16 v[{r}:{r+1}], v{base} offset:{(2*j) * 1152 + co}")
                a(f"ds_read_b64_tr_b16 v[{r+2}:{r+3}], v{base} offset:{(2*j+1) * 1152 + co}")
            a("s_waitcnt lgkmcnt(7)")
        a(f"""
        s_lshr_b32 s36, s33, 1
        s_lshl_b32 s36, s36, 2               ; 4*hkv
        v_lshrrev_b32 v6, 2, v2
        v_lshlrev_b32 v6, 6, v6
        v_and_b32 v7, 3, v2
        v_add_u32 v6, v6, v7
        v_add_u32 v8, s36, v6
        v_lshlrev_b32 v6, 10, v6
        v_lshl_add_u32 v6, v1, 4, v6         ; o voffset
        v_lshl_add_u32 v7, v1, 6, v7
        v_lshlrev_b32 v7, 10, v7
        s_lshl_b32 s36, s36, 10
        s_add_u32 s36, s36, {WS_OP}
        s_and_b32 s37, s33, 1
        s_lshl_b32 s40, s37, 3
        s_add_u32 s41, s36, s40
        s_add_u32 s41, s41, 512
        s_lshl_b32 s37, s37, 8
        s_add_u32 s36, s36, s37              ; o soffset
        """)
        self.y_addr(WS_YA)
        a(f"""
        v_lshlrev_b32 v10, 10, v1
        v_lshl_add_u32 v9, v2, 4, v10
        s_lshl_b32 s43, s3, 16
        s_add_u32 s42, s36, s43
        s_add_u32 s43, s41, s43
        s_lshl_b32 s40, s3, 2
        v_add_u32 v12, s40, v1               ; m
        v_mul_u32_u24 v11, 272, v12
        v_lshl_add_u32 v11, v2, 4, v11
        v_add_u32 v11, {L_SM}, v11
        v_lshlrev_b32 v12, 3, v12
        v_add_u32 v12, {L_SM + 4352}, v12
        v_mul_u32_u24 v13, 272, v2
        v_lshl_add_u32 v13, v1, 4, v13
        v_add_u32 v13, {L_SM}, v13
        v_and_b32 v14, 3, v2
        v_lshl_add_u32 v14, v1, 2, v14
        v_lshlrev_b32 v14, 3, v14
        v_add_u32 v14, {L_SM + 4352}, v14
        """)
        self.flag_aid(8)
        self.check_flags(8, 16)
        self.stamp(0)
        if self.fused: self.wait_lds(15, self.o.atw, 16, 1)
        O = 24; ST = 40
        if self.o.atl == 0:
            loads = [f"buffer_load_dwordx4 {vr(O + 4*j)}, v6, s[4:7], s36 offen offset:{64*j} sc1" for j in range(4)]
            loads += [f"buffer_load_dwordx2 v[{ST}:{ST+1}], v7, s[4:7], s41 offen sc1"]
            self.fpoll(loads, range(O, O + 18), 16, depth=self.o.pd, lsleep=self.o.sla)
        else:
            self.fpoll([f"buffer_load_dwordx4 v[44:47], v9, s[4:7], s42 offen sc1", f"buffer_load_dwordx2 v[48:49], v10, s[4:7], s43 offen sc1"], range(44, 50), 16, depth=1, lsleep=self.o.sla)
            a("ds_write_b128 v11, v[44:47]\nds_write_b64 v12, v[48:49]")
            self.sbar(1, 16)
            for j in range(4): a(f"ds_read_b128 {vr(O + 4*j)}, v13 offset:{64*j}")
            a(f"ds_read_b64 v[{ST}:{ST+1}], v14\ns_waitcnt lgkmcnt(0)")
        self.stamp(1)
        ACC = 208
        for ct in range(9):
            for j in range(4):
                acc = ACC + 4 * ct
                a(f"{MF} {vr(acc)}, {vr(O + 4*j)}, {vr(WO + 16*ct + 4*j)}, {'0' if j == 0 else vr(acc)}")
            if ct == 0:
                a(f"""
                v_max_f32_dpp v16, v{ST}, v{ST} quad_perm:[1,0,3,2] {DPPM}
                v_max_f32_dpp v16, v16, v16 quad_perm:[2,3,0,1] {DPPM}
                v_sub_f32 v17, v{ST}, v16
                v_exp_f32 v17, v17
                v_mul_f32 v18, v17, v{ST+1}
                """)
            if ct == 1:
                a(f"""
                v_add_f32_dpp v18, v18, v18 quad_perm:[1,0,3,2] {DPPM}
                v_add_f32_dpp v18, v18, v18 quad_perm:[2,3,0,1] {DPPM}
                v_rcp_f32 v18, v18
                v_mul_f32 v17, v17, v18
                """)
            if ct == 2:
                for t in range(4): a(f"v_mov_b32_dpp v{48+t}, v17 quad_perm:[{t},{t},{t},{t}] {DPPM}")
        Y = 52
        for ct in range(9):
            acc = ACC + 4 * ct
            a(f"""
            v_mul_f32 v{Y+ct}, v48, v{acc}
            v_fmac_f32 v{Y+ct}, v49, v{acc+1}
            v_fmac_f32 v{Y+ct}, v50, v{acc+2}
            v_fmac_f32 v{Y+ct}, v51, v{acc+3}
            """)
        self.store_y(Y, "s38", "s39", 16)
        self.stamp(2)

    def role_bh1(self):
        self.role = "bh1"
        a = self.a; L = self.L
        t3a = a.new_label(L("L_t3a"))
        a(f"s_cmp_lt_u32 s2, 160\ns_cbranch_scc1 {t3a}\ns_cmp_lg_u32 s3, 0\ns_cbranch_scc1 {L('L_fin')}")
        if self.o.eg == 0: self.gate(4, 16)
        self.get_tag(16)
        if self.o.eg == 1: self.gate(4, 16)
        self.fetch_q(40, True)
        a(f"s_branch {L('L_fin')}\n{t3a}:")
        if "BH1" not in self.en: return
        self.srd(12, P_WUK, 512 * 8192)
        a(f"""
        s_sub_u32 s36, s2, 128               ; h
        s_lshl_b32 s37, s36, 8               ; h*256
        s_lshl_b32 s38, s3, 18
        s_add_u32 s37, s37, s38
        s_lshl_b32 s35, s3, 15
        v_xor_b32 v5, v1, v2
        v_lshlrev_b32 v5, 4, v5
        v_lshl_add_u32 v8, v1, 13, v5
        v_xor_b32 v9, 64, v8
        v_xor_b32 v10, 0x80, v8
        v_xor_b32 v11, 0xc0, v8
        """)
        for i in range(32):
            p, g, half = i >> 3, (i >> 1) & 3, i & 1
            a(f"s_add_u32 s34, s37, {(128 * g + 8 * p + 4 * half) * 8192}\ns_add_u32 m0, s35, {i * 1024}")
            self.dma(8 + g, "s[12:15]", "s34", 0, 32)
        a(f"""
        v_lshrrev_b32 v6, 2, v2
        v_lshlrev_b32 v21, 3, v6
        v_and_b32 v7, 3, v2
        v_add_u32 v21, v21, v7
        v_lshl_add_u32 v12, v21, 8, v5
        v_add_u32 v12, s35, v12
        v_xor_b32 v13, 64, v12
        v_xor_b32 v14, 0x80, v12
        v_xor_b32 v15, 0xc0, v12
        v_lshlrev_b32 v18, 7, v7
        v_lshl_add_u32 v18, v1, 4, v18       ; q_B voffset: b*128 + g*16
        s_lshl_b32 s39, s36, 11
        s_add_u32 s39, s39, {WS_T1S}
        v_lshlrev_b32 v19, 9, v7             ; out: b*512 + p*64 + g*16
        v_lshl_add_u32 v19, v6, 6, v19
        v_lshl_add_u32 v19, v1, 4, v19
        v_cmp_eq_u32 s[42:43], 1, v6
        v_cmp_eq_u32 s[24:25], 2, v6
        v_cmp_eq_u32 s[26:27], 3, v6
        s_lshl_b32 s40, s36, 12
        s_lshr_b32 s41, s3, 1
        s_lshl_b32 s41, s41, 11
        s_add_u32 s40, s40, s41
        s_and_b32 s41, s3, 1
        s_lshl_b32 s41, s41, 8
        s_add_u32 s40, s40, s41
        s_add_u32 s40, s40, {WS_QABS}
        s_lshl_b32 s41, s36, 1
        v_and_b32 v20, 1, v0
        v_add_u32 v20, s41, v20
        """)
        self.gate(self.o.gbh1, 16)
        self.flag_wg(20)
        self.get_tag(16)
        self.check_flags(20, 16)
        a("s_waitcnt vmcnt(0)")
        W = 64; ACC = 192; Q = 24
        for T in range(8):
            p, half = T >> 1, T & 1
            for k in range(4):
                a(f"ds_read_b128 {vr(W + 16*T + 4*k)}, v{12+k} offset:{(32*p + 4*half) * 256}")
            if T >= 2: a("s_waitcnt lgkmcnt(8)")
        self.stamp(0)
        self.fpoll([f"buffer_load_dwordx4 {vr(Q + 4*k)}, v18, s[4:7], s39 offen offset:{(k >> 1) * 1024 + (k & 1) * 64} sc1" for k in range(4)], range(Q, Q + 16), 16, depth=self.o.pde, lsleep=self.o.sle)
        self.stamp(1)
        a("s_waitcnt lgkmcnt(0)")
        for T in range(8):
            for k in range(4):
                acc = ACC + 4 * T
                a(f"{MF} {vr(acc)}, {vr(W + 16*T + 4*k)}, {vr(Q + 4*k)}, {'0' if k == 0 else vr(acc)}")
        for w in range(16): a(f"v_cvt_pk_bf16_f32 v{40+w}, v{ACC+2*w}, v{ACC+2*w+1}")
        for p, sm in ((1, "s[42:43]"), (2, "s[24:25]"), (3, "s[26:27]")):
            for w in range(4): a(f"v_cndmask_b32 v{40+w}, v{40+w}, v{40+4*p+w}, {sm}")
        self.sanitize(range(40, 44))
        a("buffer_store_dwordx4 v[40:43], v19, s[4:7], s40 offen sc1")
        self.gate(4, 16)
        self.stamp(2)

    def role_bh2(self):
        self.role = "bh2"
        a = self.a
        if "BH2" not in self.en: return
        self.srd(12, P_WUV, 512 * 8192)
        self.srd(16, P_BWO, 4096 * 1152)
        a(f"""
        s_and_b32 s33, s2, 31
        s_lshl_b32 s34, s33, 8
        s_lshl_b32 s35, s3, 19
        s_add_u32 s34, s34, s35
        s_lshl_b32 s35, s3, 14
        v_lshlrev_b32 v5, 1, v1
        v_xor_b32 v5, v5, v2
        v_lshlrev_b32 v5, 4, v5
        v_lshl_add_u32 v5, v1, 13, v5
        v_xor_b32 v6, 0x80, v5
        """)
        a(f"""
        s_lshr_b32 s40, s3, 1                ; b
        s_lshl_b32 s36, s40, 4
        s_add_u32 s36, s36, 64
        v_add_u32 v13, s36, v2
        v_mov_b32 v14, v13
        """)
        self.flag_wg(14)
        if self.o.egb >= 1: self.get_tag(16)
        if self.o.egb >= 2: self.check_flags(14, 16)
        for i in range(16):
            a("s_mov_b32 m0, s35")
            self.dma(5 + (i & 1), "s[12:15]", "s34", 0, self.o.DB)
            if i != 15: a("s_add_u32 s34, s34, 32768\ns_add_u32 s35, s35, 1024")
        a(f"""
        v_lshrrev_b32 v10, 2, v0
        v_and_b32 v11, 7, v10
        v_xor_b32 v11, s3, v11
        v_lshlrev_b32 v11, 5, v11
        v_lshl_add_u32 v11, v10, 8, v11
        v_and_b32 v10, 3, v0
        v_lshl_add_u32 v8, v10, 3, v11
        v_add_u32 v9, 0x10000, v8
        s_waitcnt vmcnt(0)
        s_barrier
        """)
        WV = 192
        for s in range(16):
            off = s * 8192; base = 9 if off >> 16 else 8; off &= 0xffff
            r = WV + 4 * s
            a(f"ds_read_b64_tr_b16 v[{r}:{r+1}], v{base} offset:{off}")
            a(f"ds_read_b64_tr_b16 v[{r+2}:{r+3}], v{base} offset:{off + 4096}")
            if s % 4 == 3: a("s_waitcnt lgkmcnt(7)")
        a("s_waitcnt lgkmcnt(0)\ns_barrier")
        self.stamp(0, 20)
        a(f"""
        s_mul_i32 s36, s33, {128 * 1152}
        s_mul_i32 s37, s3, {1024 if self.o.wcol else 18 * 1024}
        s_add_u32 s36, s36, s37
        """)
        if self.o.wcol:
            for j in range(4):
                for p in range(5 if j < 2 else 4):
                    off = j * 8192 + p * 32768
                    a(f"s_add_u32 s34, s36, {off}\ns_add_u32 m0, s37, {off}")
                    self.dma(4, "s[16:19]", "s34", 0, self.o.DB)
        else:
          for i in range(18):
            if i % 2 == 0: a("s_mov_b32 m0, s37")
            self.dma(4, "s[16:19]", "s36", (i % 2) * 1024, self.o.DB)
            if i % 2 == 1: a("s_add_u32 s36, s36, 2048\ns_add_u32 s37, s37, 2048")
        a(f"""
        v_lshlrev_b32 v5, 3, v1
        v_bfe_u32 v8, v0, 2, 2
        v_add_u32 v5, v5, v8
        v_mul_u32_u24 v5, 1152, v5
        v_and_b32 v8, 3, v0
        v_lshl_add_u32 v5, v8, 3, v5
        s_and_b32 s39, s3, 3
        s_lshl_b32 s39, s39, 5
        s_add_u32 s39, s39, 1024
        v_add_u32 v10, s39, v5
        s_lshl_b32 s39, s3, 7
        v_add_u32 v5, s39, v5
        v_add_u32 v9, {64 * 1152}, v5
        v_add_u32 v11, {64 * 1152}, v10
        s_waitcnt vmcnt(0)
        s_barrier
        """)
        WO = 112
        for ct in range(5):
            for j in range(4):
                r = WO + 16 * ct + 4 * j
                if ct < 4: base = 5 if j < 2 else 9; off = ct * 32
                else: base = 10 if j < 2 else 11; off = 0
                off += (j & 1) * 32 * 1152
                a(f"ds_read_b64_tr_b16 v[{r}:{r+1}], v{base} offset:{off}")
                a(f"ds_read_b64_tr_b16 v[{r+2}:{r+3}], v{base} offset:{off + 4 * 1152}")
            a("s_waitcnt lgkmcnt(7)")
        CTXC = L_SM; CST = 1088
        CTX = L_SM + 8 * CST; XST = 272
        a(f"""
        v_lshlrev_b32 v5, 10, v13
        s_lshl_b32 s36, s33, 3
        s_add_u32 s36, s36, {WS_T1S + 512}
        s_lshl_b32 s37, s3, 18               ; (16b + 8half) * 32768
        s_lshl_b32 s39, s33, 10
        s_add_u32 s37, s37, s39
        s_add_u32 s37, s37, {WS_BP}
        s_mul_i32 s39, s3, {CST}
        s_add_u32 s39, s39, {CTXC}
        v_add_u32 v8, s39, v4
        v_and_b32 v9, 3, v2
        v_lshlrev_b32 v9, 1, v9
        v_bfe_u32 v10, v0, 2, 1
        v_add_u32 v9, v9, v10
        v_mul_u32_u24 v9, {CST}, v9
        v_lshl_add_u32 v9, v1, 4, v9
        v_add_u32 v9, {CTXC}, v9
        v_and_b32 v10, 3, v2
        v_mul_u32_u24 v10, {XST}, v10
        v_lshl_add_u32 v10, v1, 3, v10
        s_lshl_b32 s39, s3, 5
        s_add_u32 s39, s39, {CTX}
        v_add_u32 v10, s39, v10
        v_lshrrev_b32 v11, 2, v2
        v_mul_u32_u24 v11, {XST}, v11
        v_lshl_add_u32 v11, v1, 4, v11
        v_add_u32 v11, {CTX}, v11
        s_mul_i32 s38, s33, 9216
        s_add_u32 s38, s38, {WS_YB}
        s_lshl_b32 s39, s3, 8
        s_add_u32 s39, s39, s38
        s_add_u32 s39, s39, 8192
        s_lshl_b32 s42, s3, 10
        s_add_u32 s38, s38, s42
        v_lshlrev_b32 v12, 2, v0
        s_and_b32 s42, s3, 1
        s_lshl_b32 s42, s42, 3
        """)
        if self.o.egb < 1: self.get_tag(16)
        if self.o.egb < 2: self.check_flags(14, 16)
        self.stamp(1, 20)
        a("s_mov_b64 exec, 0xffff")
        self.poll(["buffer_load_dwordx2 v[18:19], v5, s[4:7], s36 offen sc1"], [18, 19], 16, sleep=2)
        G = 48
        for s in range(8):
            a(f"buffer_load_dwordx4 {vr(G + 4*s)}, v4, s[4:7], s37 offen sc1\ns_add_u32 s37, s37, 32768")
        self.stamp(2, 24)
        a("v_mov_b32 v20, v18")
        for d in ("quad_perm:[1,0,3,2]", "quad_perm:[2,3,0,1]", "row_ror:4", "row_ror:8"):
            a(f"v_max_f32_dpp v20, v20, v20 {d} {DPPM}")
        a("v_sub_f32 v21, v18, v20\nv_exp_f32 v21, v21\nv_mul_f32 v22, v21, v19")
        for d in ("quad_perm:[1,0,3,2]", "quad_perm:[2,3,0,1]", "row_ror:4", "row_ror:8"):
            a(f"v_add_f32_dpp v22, v22, v22 {d} {DPPM}")
        a("v_rcp_f32 v22, v22\nv_mul_f32 v21, v21, v22")
        AC = 24
        ext = 1 if self.stamps else 0
        for s in range(8):
            r = G + 4 * s
            a(f"v_readlane_b32 s41, v21, s42\ns_add_u32 s42, s42, 1")
            a(f"s_waitcnt vmcnt({7 - s + ext})")
            for w in range(4):
                a(f"v_lshlrev_b32 v{32+2*w}, 16, v{r+w}\nv_and_b32 v{33+2*w}, 0xffff0000, v{r+w}")
            for e in range(8):
                if s == 0: a(f"v_mul_f32 v{AC+e}, s41, v{32+e}")
                else: a(f"v_fmac_f32 v{AC+e}, s41, v{32+e}")
        for w in range(4): a(f"v_cvt_pk_bf16_f32 v{32+w}, v{AC+2*w}, v{AC+2*w+1}")
        a("ds_write_b128 v8, v[32:35]")
        self.stamp(3, 20)
        a("s_waitcnt lgkmcnt(0)\ns_barrier")
        for s in range(12):
            a(f"ds_read_b128 {vr(G + 4*s)}, v9 offset:{64*s}")
        for s in range(16):
            if s + 12 < 16: a(f"ds_read_b128 {vr(G + 4*(s+12))}, v9 offset:{64*(s+12)}")
            a(f"s_waitcnt lgkmcnt({min(12, 15 - s)})")
            acc = 24 + 4 * (s & 1)
            a(f"{MF} {vr(acc)}, {vr(WV + 4*s)}, {vr(G + 4*s)}, {'0' if s < 2 else vr(acc)}")
        for r in range(4): a(f"v_add_f32 v{24+r}, v{24+r}, v{28+r}")
        for r in range(4): a(f"v_add_f32_dpp v{24+r}, v{24+r}, v{24+r} row_ror:4 {DPPM}")
        a("""
        v_cvt_pk_bf16_f32 v32, v24, v25
        v_cvt_pk_bf16_f32 v33, v26, v27
        ds_write_b64 v10, v[32:33]
        s_waitcnt lgkmcnt(0)
        s_barrier
        """)
        O = 24
        for j in range(4): a(f"ds_read_b128 {vr(O + 4*j)}, v11 offset:{64*j}")
        ACC = 64
        for j in range(4):
            a(f"s_waitcnt lgkmcnt({3 - j})")
            for ct in range(5):
                acc = ACC + 4 * ct
                a(f"{MF} {vr(acc)}, {vr(O + 4*j)}, {vr(WO + 16*ct + 4*j)}, {'0' if j == 0 else vr(acc)}")
        Y = 48
        for ct in range(5): a(f"v_min_u32 v{Y+ct}, -2, v{ACC + 4*ct}")
        sk = a.new_label(self.L("L_bh2s"))
        a(f"""
        buffer_store_dwordx4 {vr(Y)}, v4, s[4:7], s38 offen sc1
        s_cmp_ge_u32 s3, 4
        s_cbranch_scc1 {sk}
        buffer_store_dword v{Y+4}, v12, s[4:7], s39 offen sc1
        {sk}:
        """)
        self.stamp(4, 20)

    def role_a(self):
        self.role = "a"
        a = self.a; L = self.L
        a("s_sub_u32 s44, s3, 4")
        if "CLR" in self.en and self.fused: self.clear_finish()
        a(f"""
        s_lshr_b32 s28, s2, 5
        s_cmp_eq_u32 s28, 6
        s_cbranch_scc1 {L('L_bh2')}
        s_lshr_b32 s28, s2, 6
        s_cmp_eq_u32 s28, 1
        s_cbranch_scc1 {L('L_ba_a')}
        """)
        a.label(L("L_amain"))
        if "A" in self.en:
            self.a_main()
        elif "RED" in self.en:
            a(f"s_cmp_lg_u32 s44, 0\ns_cbranch_scc1 {L('L_fin')}")
        if "RED" in self.en:
            self.reducer()

    def a_main(self):
        a = self.a; L = self.L; D = self.o.D
        gb, eb = [int(x) for x in self.o.gb.split(",")], [int(x) for x in self.o.eb.split(",")]
        ub = [b for b in range(8, 20) if b not in gb + eb]
        if self.o.ub: ub = [int(x) for x in self.o.ub.split(',')]
        assert sorted(ub + gb + eb) == list(range(8, 20))
        eoff = lambda e: sum(((e >> i) & 1) << eb[i] for i in range(3))
        runs = []
        for i, b in enumerate(ub):
            if runs and runs[-1][1] + runs[-1][2] == b: runs[-1][2] += 1
            else: runs.append([i, b, 1])
        def uoff(sr):
            t = [f"s_mov_b32 s29, 0"]
            for (sb, db, ln) in runs:
                t.append(f"s_bfe_u32 s57, {sr}, {(ln << 16) | sb}\ns_lshl_b32 s57, s57, {db}\ns_or_b32 s29, s29, s57")
            t.append(f"s_mov_b32 {sr}, s29")
            return "\n".join(t)
        bases = sorted({eoff(e) & ~4095 for e in range(8)})
        vbase = {b: 240 + i for i, b in enumerate(bases)}
        assert D <= 16
        self.srd(12, P_K, 64 << 20); self.srd(16, P_V, 64 << 20)
        a(f"""
        s_lshl_b32 s49, s45, 20
        s_mul_i32 s33, s45, {self.o.rot}      ; rotation
        s_cmp_lt_u32 s45, 32
        s_cselect_b32 s32, 12, 16
        s_lshl_b32 s30, s46, 2
        s_add_u32 s30, s30, s44
        s_add_u32 s30, s30, s33
        s_add_u32 s31, s30, s32
        s_and_b32 s30, s30, 127
        s_and_b32 s31, s31, 127
        {uoff("s30")}
        {uoff("s31")}
        s_add_u32 s30, s30, s49
        s_add_u32 s31, s31, s49
        s_lshl_b32 s28, s46, 2
        s_add_u32 s28, s28, s44
        s_sub_u32 s28, s28, s32
        s_sub_u32 s28, s28, 1
        v_mov_b32 v224, s28
        s_mul_i32 s32, s32, 3
        s_add_u32 s33, s33, s32
        s_sub_u32 s32, 128, s32
        s_lshl_b32 s35, s44, 3
        s_lshr_b32 s35, {sum(x << (8 * i) for i, x in enumerate(self.o.tap))}, s35
        s_and_b32 s35, s35, 0xff
        s_sub_u32 s35, s32, s35
        s_mov_b32 s34, 1
        s_lshl_b32 s48, s45, 12
        s_add_u32 s48, s48, {WS_OP + 768}
        s_mov_b32 s50, 0x05040100
        s_mov_b32 s51, 0x07060302
        v_lshlrev_b32 v4, 4, v0
        v_mov_b32 v1, v4
        v_add_u32 v2, 4096, v4
        v_mov_b32 v3, {CSC}
        v_mov_b32 v4, {NEGMAX}
        v_mov_b32 v5, 0
        v_and_b32 v6, 15, v0
        v_and_b32 v7, 1, v0
        v_lshlrev_b32 v6, 4, v6
        v_lshl_add_u32 v6, v7, 8, v6
        v_add_u32 v6, {L_QA}, v6
        v_xor_b32 v7, 16, v6
        v_cmp_lt_u32 vcc, 31, v0
        v_mov_b32 v226, 0
        v_mov_b32 v227, {L_CNT + 4 * 10}
        """)
        a(f"""
        v_and_b32 v240, 15, v0
        v_lshlrev_b32 v240, 4, v240
        v_bfe_u32 v2, v0, 4, 1
        v_lshl_add_u32 v240, v2, {gb[0]}, v240
        v_bfe_u32 v2, v0, 5, 1
        v_lshl_add_u32 v240, v2, {gb[1]}, v240
        """)
        for b, r in vbase.items():
            if b: a(f"v_add_u32 v{r}, {b}, v240")
        for r in range(32, 64): a(f"v_mov_b32 v{r}, 0")
        a(f"""
        v_lshrrev_b32 v228, 4, v0
        v_and_b32 v229, 1, v0
        v_lshl_add_u32 v228, v228, 1, v229
        v_lshlrev_b32 v228, 4, v228
        s_lshl_b32 s53, s44, 10
        s_add_u32 s53, s53, {L_ACOMB}
        v_add_u32 v228, s53, v228
        s_lshl_b32 s53, s44, 4
        s_add_u32 s53, s53, {L_AST}
        v_lshlrev_b32 v229, 3, v229
        v_add_u32 v230, s53, v229
        v_add_u32 v231, {L_AST}, v229
        v_bfe_u32 v232, v0, 3, 2
        v_and_b32 v233, 7, v0
        v_lshlrev_b32 v233, 4, v233
        v_lshl_add_u32 v233, v232, 8, v233
        v_add_u32 v233, {L_ACOMB}, v233
        v_and_b32 v234, 1, v0
        v_lshlrev_b32 v234, 8, v234
        v_lshl_add_u32 v234, v232, 6, v234
        v_bfe_u32 v232, v0, 1, 2
        v_lshl_add_u32 v234, v232, 4, v234   ; h*256 + j*64 + g'*16
        v_cndmask_b32 v234, v234, v1, vcc
        v_mov_b32 v236, {L_CNT + 4 * 15}
        v_mov_b32 v237, 1
        s_lshl_b32 s54, s47, 10
        s_add_u32 s54, s54, {WS_OP}
        """)
        KA, VA, KB, VB = 96, 128, 160, 192
        def issue(srd, base, e, soff, d=None):
            a(f"s_waitcnt vmcnt({(d or D) - 1})")
            a(f"buffer_load_dwordx4 {vr(base + 4*e)}, v{vbase[eoff(e) & ~4095]}, {srd}, {soff} offen offset:{eoff(e) & 4095} nt")
        def issues(srd, base, es, soff):
            if True:
                for e in es: issue(srd, base, e, soff)
                return
            lo = a.new_label(L("L_ilo")); en = a.new_label(L("L_ien"))
            a(f"s_cmp_lg_u32 s34, 0\ns_cbranch_scc1 {lo}")
            for e in es: issue(srd, base, e, soff)
            a(f"s_branch {en}\n{lo}:")
            for e in es: issue(srd, base, e, soff, self.o.Dlo)
            a.label(en)
        def grab():
            a(f"""
            v_mov_b32 v224, s34
            s_mov_b64 exec, 1
            buffer_atomic_add v224, v226, s[4:7], s48 offen sc0 sc1
            s_mov_b64 exec, -1
            """)
        def gate_wait():
            if not self.fused: return
            lab = a.new_label(L("L_gw"))
            a(f"""
            s_mov_b32 s29, {SPIN * 8}
            {lab}:
            ds_read_b32 v225, v227
            s_sub_u32 s29, s29, 1
            s_cbranch_scc1 {lab}_x
            s_waitcnt lgkmcnt(0)
            v_readfirstlane_b32 s28, v225
            s_cmp_gt_u32 s28, s44
            s_cbranch_scc1 {lab}_x
            s_sleep 1
            s_branch {lab}
            {lab}_x:
            s_waitcnt lgkmcnt(0)
            """)
        def ring(d):
            for e in range(8): issue("s[12:15]", KA, e, "s30", d)
            for e in range(8): issue("s[16:19]", VA, e, "s30", d)
            for e in range(8): issue("s[12:15]", KB, e, "s31", d)
            for e in range(8): issue("s[16:19]", VB, e, "s31", d)
        sk = a.new_label(L("L_t3q"))
        a(f"s_lshr_b32 s28, s2, 5\ns_cmp_lg_u32 s28, 4\ns_cbranch_scc1 {sk}\ns_cmp_lg_u32 s3, 4\ns_cbranch_scc1 {sk}")
        self.fetch_q(64)
        a.label(sk)
        gate_wait()
        self.stamp(9)
        ring(self.o.D0)
        self.wait_lds(9, 1, 28, 1)
        a("ds_read_b128 v[8:11], v6\nds_read_b128 v[12:15], v7")
        self.get_tag(28)
        a("s_waitcnt lgkmcnt(0)")
        ext = 0
        U = 16; P = 24; ACC = 32; T = 64
        def body(K, V, mode):
            if mode == "e1": a("s_waitcnt vmcnt(8)")
            for half in range(2):
                es = range(4 * half, 4 * half + 4)
                for e in es: a(f"v_dot2_f32_bf16 v{U+e}, v{K+4*e}, v8, 0")
                for w in range(1, 4):
                    for e in es: a(f"v_dot2c_f32_bf16 v{U+e}, v{K+4*e+w}, v{8+w}")
                for w in range(4):
                    for e in es: a(f"v_dot2c_f32_bf16_dpp v{U+e}, v{K+4*e+w}, v{12+w} quad_perm:[1,0,3,2] {DPPM}")
                if mode == "loop":
                    if half == 0 and self.o.gpos == 0: grab()
                    issues("s[12:15]", K, es, "s30")
            for d in ("quad_perm:[2,3,0,1]", "row_ror:4", "row_ror:8"):
                for e in range(8): a(f"v_add_f32_dpp v{U+e}, v{U+e}, v{U+e} {d} {DPPM}")
            for e in range(8): a(f"v_mul_f32 v{U+e}, v{U+e}, v3")
            a(f"""
            v_max3_f32 v28, v{U}, v{U+1}, v{U+2}
            v_max3_f32 v28, v28, v{U+3}, v{U+4}
            v_max3_f32 v28, v28, v{U+5}, v{U+6}
            v_max3_f32 v28, v28, v{U+7}, v4
            """)
            self.xg_reduce("v_max_f32", 28, 29)
            a("v_sub_f32 v29, v4, v28")
            for e in range(8): a(f"v_sub_f32 v{U+e}, v{U+e}, v28")
            a("v_exp_f32 v29, v29")
            for e in range(8): a(f"v_exp_f32 v{U+e}, v{U+e}")
            a(f"""
            v_mov_b32 v4, v28
            v_cmp_neq_f32 vcc, 1.0, v29
            v_fma_f32 v5, v5, v29, v{U}
            v_add_f32 v30, v{U+1}, v{U+2}
            v_add_f32 v31, v{U+3}, v{U+4}
            v_add_f32 v5, v5, v{U+5}
            v_add_f32 v30, v30, v{U+6}
            v_add_f32 v31, v31, v{U+7}
            v_add_f32 v5, v5, v30
            v_add_f32 v5, v5, v31
            """)
            for w in range(4): a(f"v_cvt_pk_bf16_f32 v{P+w}, v{U+2*w}, v{U+2*w+1}")
            sk = a.new_label(L("L_nors"))
            a(f"s_cbranch_vccz {sk}")
            for r in range(32): a(f"v_mul_f32 v{ACC+r}, v29, v{ACC+r}")
            a.label(sk)
            if mode == "e1": self.xg_reduce("v_add_f32", 5, 29)
            if mode == "loop" and self.o.gpos == 1: grab()
            for q in range(4):
                if mode == "e1": a(f"s_waitcnt vmcnt({6 - 2*q})")
                for i in range(8):
                    a(f"v_perm_b32 v{T+4*i+q}, v{V + 4*(2*q+1) + (i >> 1)}, v{V + 4*(2*q) + (i >> 1)}, s{50 + (i & 1)}")
                if mode == "loop":
                    issues("s[16:19]", V, (2*q, 2*q+1), "s30")
            for i in range(8):
                a(f"{MF} {vr(ACC+4*i)}, {vr(T+4*i)}, {vr(P)}, {vr(ACC+4*i)}")
        def head(exit_label):
            a(f"""
            s_waitcnt vmcnt({16 if self.o.gpos == 0 else 8})
            v_readfirstlane_b32 s30, v224
            s_add_u32 s28, s30, 1
            s_cmp_ge_i32 s28, s32
            s_cbranch_scc1 {exit_label}
            s_cmp_eq_u32 s34, 0
            s_cbranch_scc1 {exit_label}
            s_cmp_lt_i32 s28, s35
            s_cselect_b32 s34, 1, 0
            s_add_u32 s30, s28, s33
            s_and_b32 s30, s30, 127
            {uoff("s30")}
            s_add_u32 s30, s30, s49
            """)
            if self.o.prog and self.stamps:
                a(f"""
                s_memrealtime s[92:93]
                s_lshl_b32 s94, s45, 7
                s_add_u32 s94, s94, s28
                s_lshl_b32 s94, s94, 7
                s_add_u32 s94, s94, {202 << 20}
                s_waitcnt lgkmcnt(0)
                v_mov_b32 v250, s92
                v_mov_b32 v251, s93
                s_mov_b64 exec, 1
                buffer_store_dwordx2 v[250:251], v226, s[4:7], s94 offen
                s_mov_b64 exec, -1
                """)
        lp = a.new_label(L("L_aloop")); eA = a.new_label(L("L_aeA")); eB = a.new_label(L("L_aeB")); dn = a.new_label(L("L_adone"))
        a.label(lp)
        head(eA); body(KA, VA, "loop")
        head(eB); body(KB, VB, "loop")
        a(f"s_branch {lp}")
        a.label(eA)
        body(KA, VA, "e0"); body(KB, VB, "e1")
        a(f"s_branch {dn}")
        a.label(eB)
        body(KB, VB, "e0"); body(KA, VA, "e1")
        a.label(dn)
        a("s_mov_b64 exec, 3\nds_write_b64 v230, v[4:5]")
        a("s_mov_b32 exec_lo, 0x00030003\ns_mov_b32 exec_hi, 0x00030003")
        for i in range(8): a(f"ds_write_b128 v228, {vr(ACC+4*i)} offset:{128*i}")
        nc = a.new_label(L("L_nocomb"))
        a(f"""
        s_mov_b64 exec, 1
        ds_add_rtn_u32 v238, v236, v237
        s_mov_b64 exec, -1
        s_waitcnt lgkmcnt(0)
        v_readfirstlane_b32 s55, v238
        s_cmp_lg_u32 s55, 3
        s_cbranch_scc1 {nc}
        """)
        for w in range(4): a(f"ds_read_b64 v[{16+2*w}:{17+2*w}], v231 offset:{16*w}")
        for w in range(4):
            a(f"ds_read_b128 {vr(32+8*w)}, v233 offset:{1024*w}\nds_read_b128 {vr(36+8*w)}, v233 offset:{1024*w+128}")
        a(f"""
        s_waitcnt lgkmcnt(8)
        v_max3_f32 v24, v16, v18, v20
        v_max_f32 v24, v24, v22
        v_sub_f32 v16, v16, v24
        v_sub_f32 v18, v18, v24
        v_sub_f32 v20, v20, v24
        v_sub_f32 v22, v22, v24
        v_exp_f32 v16, v16
        v_exp_f32 v18, v18
        v_exp_f32 v20, v20
        v_exp_f32 v22, v22
        v_mul_f32 v25, v16, v17
        v_fmac_f32 v25, v18, v19
        v_fmac_f32 v25, v20, v21
        v_fmac_f32 v25, v22, v23
        s_waitcnt lgkmcnt(6)
        """)
        for e in range(8): a(f"v_mul_f32 v{64+e}, v16, v{32+e}")
        for w in range(1, 4):
            a(f"s_waitcnt lgkmcnt({6 - 2*w})")
            for e in range(8): a(f"v_fmac_f32 v{64+e}, v{16+2*w}, v{32+8*w+e}")
        for w in range(4): a(f"v_cvt_pk_bf16_f32 v{72+w}, v{64+2*w}, v{65+2*w}")
        a(f"""
        v_mov_b32_dpp v72, v24 quad_perm:[0,0,0,0] row_mask:0xc bank_mask:0xf
        v_mov_b32_dpp v73, v25 quad_perm:[0,0,0,0] row_mask:0xc bank_mask:0xf
        v_mov_b32_dpp v74, v24 quad_perm:[1,1,1,1] row_mask:0xc bank_mask:0xf
        v_mov_b32_dpp v75, v25 quad_perm:[1,1,1,1] row_mask:0xc bank_mask:0xf
        """)
        self.sanitize([72, 73, 74, 75])
        a(f"""
        s_mov_b32 exec_hi, 0xff
        buffer_store_dwordx4 v[72:75], v234, s[4:7], s54 offen sc1
        s_mov_b64 exec, -1
        """)
        self.stamp(11)
        a(f"s_branch {L('L_fin')}")
        a.label(nc)
        a(f"s_cmp_lg_u32 s55, 0\ns_cbranch_scc1 {L('L_fin')}")

    def reducer(self):
        a = self.a; L = self.L
        self.srd(12, P_OUT, 4608 * 2)
        t2 = a.new_label(L("L_rt2")); tj = a.new_label(L("L_rtj"))
        a(f"""
        s_cmp_ge_u32 s2, 72
        s_cbranch_scc1 {L('L_fin')}
        s_cmp_ge_u32 s2, 36
        s_cselect_b32 s56, 36, 0
        s_cselect_b32 s57, {WS_YB - WS_YA}, 0
        s_cselect_b32 s60, 1152, 0
        s_movk_i32 s61, 224
        s_cselect_b32 s61, 192, s61
        s_sub_u32 s56, s2, s56               ; r
        s_add_u32 s57, s57, {WS_YA}
        s_mul_i32 s58, s56, 7282
        s_lshr_b32 s58, s58, 16              ; b = r/9
        s_mul_i32 s59, s58, 9
        s_sub_u32 s59, s56, s59              ; grp
        s_mul_i32 s62, s58, 2304
        s_add_u32 s60, s60, s62
        s_lshl_b32 s62, s59, 7
        s_add_u32 s60, s60, s62
        s_lshl_b32 s62, s59, 10
        s_add_u32 s57, s57, s62
        v_lshrrev_b32 v1, 4, v0
        v_and_b32 v2, 15, v0
        v_mul_u32_u24 v3, 9216, v1
        v_and_b32 v6, 31, v0
        v_add_u32 v6, s61, v6
        s_cmp_eq_u32 s59, 8
        s_cbranch_scc1 {t2}
        s_lshl_b32 s62, s58, 8
        v_lshl_add_u32 v3, v2, 4, v3
        v_lshlrev_b32 v5, 1, v0
        s_branch {tj}
        {t2}:
        s_lshl_b32 s62, s58, 6
        v_lshrrev_b32 v4, 2, v2
        v_lshl_add_u32 v3, v4, 8, v3
        v_and_b32 v4, 3, v2
        v_lshl_add_u32 v3, v4, 4, v3
        v_lshl_add_u32 v5, v2, 2, v1
        v_lshlrev_b32 v5, 1, v5
        {tj}:
        s_add_u32 s57, s57, s62
        """)
        for k in range(8): a(f"s_add_u32 s{16+k}, s57, {k * 4 * 9216}")
        self.flag_wg(6)
        self.check_flags(6, 44)
        self.stamp(12)
        self.fpoll([f"buffer_load_dwordx4 {vr(8+4*k)}, v3, s[4:7], s{16+k} offen sc1" for k in range(8)], range(8, 40), 44, depth=self.o.pdr or self.o.pd, lsleep=self.o.slr)
        for c in range(16): a(f"v_add_f32 v{48+c}, v{8+c}, v{24+c}")
        for st in (8, 4):
            for c in range(st): a(f"v_add_f32 v{48+c}, v{48+c}, v{48+st+c}")
        a("""
        v_permlane32_swap_b32 v48, v50
        v_permlane32_swap_b32 v49, v51
        v_add_f32 v48, v48, v50
        v_add_f32 v49, v49, v51
        v_permlane16_swap_b32 v48, v49
        v_add_f32 v48, v48, v49
        v_cvt_pk_bf16_f32 v48, v48, v48
        buffer_store_short v48, v5, s[12:15], s60 offen
        """)
        self.stamp(14)
        if self.fused and not self.o.nowait:
            a(f"""
            s_cmp_lg_u32 s2, 0
            s_cbranch_scc1 {L('L_fin')}
            v_mov_b32 v52, s{S_TAG}
            v_mov_b32 v53, 0
            s_mov_b64 exec, 1
            buffer_store_dword v52, v53, s[4:7], 0 offen sc1
            s_mov_b64 exec, -1
            """)

DESC = """; ---------------------------------------------------------------------------------------------
; ---------------------------------------------------------------------------------------------
"""
def emit(fname, o):
    if o.mode == "fused":
        g = Gen({"CLR", "PQ", "AT", "BH1", "BH2", "BA", "A", "RED"}, True, o)
        a = g.build()
        txt = kernel_file([(NAME + "_kernel", (256, 1, 1), (512, 1, 1), LDS_SIZE)], [(NAME + "_kernel", a.text(), 256, 102, 256)], DESC)
    else:
        phases = [("k0", {"CLR"}), ("k1", {"PQ"}), ("k2", {"BH1", "A"}), ("k3", {"BA", "AT"}), ("k4", {"BH2"}), ("k5", {"RED"})]
        ks = []; ls = []
        for nm, en in phases:
            g = Gen(en, False, o, tag="_" + nm)
            a = g.build()
            ks.append((nm + "_kernel", a.text(), 256, 102, 256)); ls.append((nm + "_kernel", (256, 1, 1), (512, 1, 1), LDS_SIZE))
        txt = kernel_file(ls, ks)
    open(fname, "w").write(txt)

if __name__ == "__main__":
    import argparse
    ap = argparse.ArgumentParser()
    ap.add_argument("out"); ap.add_argument("--mode", default="fused"); ap.add_argument("-D", type=int, default=10); ap.add_argument("--DS", type=int, default=16)
    ap.add_argument("--stamps", action="store_true"); ap.add_argument("--D0", type=int, default=10); ap.add_argument("--g", default="2,2,4"); ap.add_argument("--gat", type=int, default=0); ap.add_argument("--gbh1", type=int, default=0); ap.add_argument("--gbh2", type=int, default=0); ap.add_argument("--pd", type=int, default=1); ap.add_argument("--ub", default=""); ap.add_argument("--gb", default="15,16"); ap.add_argument("--eb", default="17,18,13"); ap.add_argument("--ccol", type=int, default=1); ap.add_argument("--wcol", type=int, default=1); ap.add_argument("--tap", default="0,0,0,0"); ap.add_argument("--rt3", type=int, default=4); ap.add_argument("--rat", type=int, default=2); ap.add_argument("--nowait", action="store_true"); ap.add_argument("--eg", type=int, default=2); ap.add_argument("--ega", type=int, default=2); ap.add_argument("--egb", type=int, default=2); ap.add_argument("--atl", type=int, default=1); ap.add_argument("--sla", type=int, default=1); ap.add_argument("--slr", type=int, default=1); ap.add_argument("--pde", type=int, default=1); ap.add_argument("--sle", type=int, default=2); ap.add_argument("--gpos", type=int, default=0); ap.add_argument("--pdr", type=int, default=0); ap.add_argument("--atgate", type=int, default=9); ap.add_argument("--prog", action="store_true"); ap.add_argument("--dbg", action="store_true"); ap.add_argument("--t2e", type=int, default=0); ap.add_argument("--rot", type=int, default=0); ap.add_argument("--Dlo", type=int, default=0); ap.add_argument("--gpq", type=int, default=0); ap.add_argument("--DC", type=int, default=8); ap.add_argument("--DB", type=int, default=8); ap.add_argument("--atw", type=int, default=4); ap.add_argument("--cap", type=int, default=1000); ap.add_argument("--qfirst", type=int, default=192); ap.add_argument("--cheap", type=int, default=1); ap.add_argument("--sprio", type=int, default=2); ap.add_argument("--bh2hold", type=int, default=0); ap.add_argument("--sh1", default=""); ap.add_argument("--sh2", default=""); ap.add_argument("--NC0", type=int, default=16)
    x = ap.parse_args()
    x.Dlo = x.Dlo or x.D
    x.tap = [int(v) for v in x.tap.split(',')]
    x.g = [int(v) for v in x.g.split(",")]
    if x.sh1: SH1 = tuple(int(v) for v in x.sh1.split(","))
    if x.sh2: SH2 = tuple(int(v) for v in x.sh2.split(","))
    assert sum(SH1) == 128 and sum(SH2) == 128
    emit(x.out, x)
```

```python
import sys, math, struct
from asmlib import *

WS_EP   = 0x00000
WS_OP   = 0x10000
WS_T1S  = 0x50000
WS_QABS = 0x70000
WS_FLG  = 0x08000
WS_YA   = 0x90000
WS_YB   = 0xD8000
WS_BP   = 0x200000
WS_SIZE = 0x10000000
STAMPOFF = 200 << 20
PH_OFF = 201 << 20
L_PQ    = 73728
L_P     = 131072
L_MX    = 139264
L_ACOMB = 147456
L_AST   = 151552
L_CNT   = 151616
L_SM    = 151680
L_QA    = L_SM + 6400
LDS_SIZE = 163840
OOB = 0x40000000
NEGMAX = 0xFF7FFFFF
CSC = struct.unpack("<I", struct.pack("<f", (128 ** -0.5) * math.log2(math.e)))[0]
DPPM = "row_mask:0xf bank_mask:0xf"
SPIN = 200000
P_AX, P_K, P_V, P_WQ, P_WO, P_BX, P_CKV, P_BWQ, P_WUK, P_WUV, P_BWO, P_OUT, P_DBG, P_WS = [64 + 2 * i for i in range(14)]
S_TAG = 63
NSPLIT_B = 16
SH1 = (30, 30, 45, 23)
SH2 = (26, 26, 41, 35)
def share(pair, t):
    sh = SH1 if pair < 32 else SH2
    u0 = sum(sh[:t])
    return 32 * u0, 32 * (u0 + sh[t])
def vr(b, n=4): return f"v[{b}:{b+n-1}]"
MF = "v_mfma_f32_16x16x32_bf16"

class Gen:
    def __init__(self, en, fused, opt, tag=""):
        self.a = Asm(); self.en = en; self.fused = fused; self.o = opt; self.stamps = opt.stamps and fused; self.tag = tag
        self.role = ""
        self.dbgmap = {("a", 8): 2, ("t1", 1): 3, ("bh1", 2): 4, ("t1", 7): 5, ("bh2", 4): 6, ("a", 11): 7, ("at", 2): 8, ("a", 14): 9}
    def L(self, s): return s + self.tag
    def srd(self, d, p, size):
        self.a(f"s_mov_b32 s{d}, s{p}\ns_mov_b32 s{d+1}, s{p+1}\ns_mov_b32 s{d+2}, {size}\ns_mov_b32 s{d+3}, 0x20000")
    def stamp(self, k, vt=250):
        if self.o.dbg and self.fused:
            slot = self.dbgmap.get((self.role, k))
            if slot is None: return
            self.a(f"""
            s_memrealtime s[92:93]
            s_mov_b32 s8, s{P_DBG}
            s_mov_b32 s9, s{P_DBG+1}
            s_mov_b32 s10, 256
            s_mov_b32 s11, 0x20000
            s_waitcnt lgkmcnt(0)
            v_mov_b32 v{vt}, s92
            v_mov_b32 v{vt+2}, 0
            s_mov_b64 s[96:97], exec
            s_mov_b64 exec, 1
            buffer_atomic_umax v{vt}, v{vt+2}, s[8:11], 0 offen offset:{4 * slot} sc1
            s_mov_b64 exec, s[96:97]
            """)
            return
        if not self.stamps: return
        self.a(f"""
        s_memrealtime s[92:93]
        s_lshl_b32 s94, s2, 7
        s_add_u32 s94, s94, {PH_OFF + 8 * k}
        s_waitcnt lgkmcnt(0)
        v_mov_b32 v{vt}, s92
        v_mov_b32 v{vt+1}, s93
        v_mov_b32 v{vt+2}, 0
        s_mov_b64 s[96:97], exec
        s_mov_b64 exec, 1
        buffer_store_dwordx2 v[{vt}:{vt+1}], v{vt+2}, s[4:7], s94 offen
        s_mov_b64 exec, s[96:97]
        """)
    def wait_lds(self, slot, target, vt, sleep=0):
        a = self.a; lab = a.new_label(self.L("L_wl"))
        a(f"""
        v_mov_b32 v{vt}, {L_CNT + 4 * slot}
        s_mov_b32 s29, {SPIN * 8}
        {lab}:
        ds_read_b32 v{vt+1}, v{vt}
        s_sub_u32 s29, s29, 1
        s_cbranch_scc1 {lab}_x
        s_waitcnt lgkmcnt(0)
        v_readfirstlane_b32 s28, v{vt+1}
        s_cmp_ge_u32 s28, {target}
        s_cbranch_scc1 {lab}_x
        """)
        if sleep: a(f"s_sleep {sleep}")
        a(f"s_branch {lab}\n{lab}_x:\ns_waitcnt lgkmcnt(0)")
    def sbar(self, k, vt):
        self.a(f"""
        s_waitcnt lgkmcnt(0)
        v_mov_b32 v{vt}, {L_CNT + 4 * k}
        v_mov_b32 v{vt+1}, 1
        s_mov_b64 exec, 1
        ds_add_u32 v{vt}, v{vt+1}
        s_mov_b64 exec, -1
        """)
        self.wait_lds(k, 4, vt)
    def signal(self, k, vt):
        if not self.fused: return
        self.a(f"""
        v_mov_b32 v{vt}, {L_CNT + 4 * k}
        v_mov_b32 v{vt+1}, 1
        s_mov_b64 exec, 1
        ds_add_u32 v{vt}, v{vt+1}
        s_mov_b64 exec, -1
        """)
    def get_tag(self, vt):
        if not self.fused: return
        self.wait_lds(12, 1, vt, 1)
        self.a(f"ds_read_b32 v{vt+1}, v{vt} offset:4\ns_waitcnt lgkmcnt(0)\nv_readfirstlane_b32 s{S_TAG}, v{vt+1}")
    def check_flags(self, voff, vt):
        if not self.fused: return
        a = self.a; lab = a.new_label(self.L("L_cf"))
        a(f"""
        s_mov_b32 s29, {SPIN}
        {lab}:
        buffer_load_dword v{vt+1}, v{voff}, s[4:7], 0 offen sc1
        s_sub_u32 s29, s29, 1
        s_cbranch_scc1 {lab}_x
        s_waitcnt vmcnt(0)
        v_cmp_ne_u32 vcc, s{S_TAG}, v{vt+1}
        s_cbranch_vccz {lab}_x
        s_mov_b64 exec, vcc
        s_sleep 4
        s_branch {lab}
        {lab}_x:
        s_mov_b64 exec, -1
        s_waitcnt vmcnt(0)
        """)
    def flag_wg(self, v):
        self.a(f"v_lshlrev_b32 v{v}, 7, v{v}\nv_add_u32 v{v}, {WS_FLG}, v{v}")
    def flag_aid(self, v):
        self.a(f"v_lshlrev_b32 v{v}, 10, v{v}\nv_add_u32 v{v}, {WS_OP + 896}, v{v}")
    def gate(self, val, vt):
        if not self.fused: return
        a = self.a; lab = a.new_label(self.L("L_gate"))
        a(f"""
        s_cmp_lg_u32 s3, 0
        s_cbranch_scc1 {lab}
        v_mov_b32 v{vt}, {L_CNT + 4 * 10}
        v_mov_b32 v{vt+1}, {val}
        ds_write_b32 v{vt}, v{vt+1}
        {lab}:
        """)
    def fetch_q(self, vb, gate_after_flags=False):
        a = self.a
        if "A" not in self.en: return
        a(f"""
        s_and_b32 s52, s45, 15
        s_lshl_b32 s53, s52, 2
        s_add_u32 s53, s53, 64
        v_bfe_u32 v{vb}, v0, 3, 2
        v_add_u32 v{vb+1}, s53, v{vb}
        """)
        self.flag_wg(vb + 1)
        a(f"""
        s_lshl_b32 s53, s45, 12
        s_add_u32 s53, s53, {WS_OP + 896}
        v_mov_b32 v{vb+2}, s53
        v_cmp_lt_u32 vcc, 31, v0
        v_cndmask_b32 v{vb+1}, v{vb+1}, v{vb+2}, vcc
        v_and_b32 v{vb+2}, 7, v0
        v_lshlrev_b32 v{vb+2}, 4, v{vb+2}
        v_lshl_add_u32 v{vb+2}, v{vb}, 10, v{vb+2}
        s_lshl_b32 s52, s52, 12
        s_lshr_b32 s53, s45, 4
        s_lshl_b32 s53, s53, 7
        s_add_u32 s52, s52, s53
        s_add_u32 s52, s52, {WS_T1S + 64 * 1024}
        v_lshlrev_b32 v{vb+3}, 4, v0
        v_add_u32 v{vb+3}, {L_QA}, v{vb+3}
        """)
        self.check_flags(vb + 1, vb + 8)
        if gate_after_flags and self.fused:
            a(f"v_mov_b32 v{vb+8}, {L_CNT + 4 * 10}\nv_mov_b32 v{vb+9}, 4\nds_write_b32 v{vb+8}, v{vb+9}")
        a("s_mov_b32 exec_hi, 0")
        self.poll([f"buffer_load_dwordx4 {vr(vb+4)}, v{vb+2}, s[4:7], s52 offen sc1"], range(vb + 4, vb + 8), vb + 8, sleep=2)
        a(f"""
        s_mov_b32 exec_hi, 0
        ds_write_b128 v{vb+3}, {vr(vb+4)}
        v_mov_b32 v{vb+8}, {L_CNT + 4 * 9}
        v_mov_b32 v{vb+9}, 1
        ds_write_b32 v{vb+8}, v{vb+9}
        s_mov_b64 exec, -1
        """)
    def maxchain(self, regs, vt):
        a = self.a
        rs = list(regs); cur = rs[0]; rest = rs[1:]
        while rest:
            if len(rest) >= 2:
                a(f"v_max3_u32 v{vt}, v{cur}, v{rest[0]}, v{rest[1]}"); rest = rest[2:]
            else:
                a(f"v_max_u32 v{vt}, v{cur}, v{rest[0]}"); rest = rest[1:]
            cur = vt
        a(f"v_cmp_eq_u32 vcc, -1, v{cur}")
        if self.o.nowait: a("s_mov_b64 vcc, 0")
    def fpoll(self, loads, regs, vt, depth=2, sleep=0, lsleep=0):
        a = self.a; lab = a.new_label(self.L("L_fp")); n = len(loads)
        a(f"s_mov_b32 s29, {SPIN}")
        for _ in range(depth - 1):
            for l in loads: a(l)
            if sleep: a(f"s_sleep {sleep}")
        a.label(lab)
        for l in loads: a(l)
        a(f"s_sub_u32 s29, s29, 1\ns_cbranch_scc1 {lab}_x\ns_waitcnt vmcnt({n * (depth - 1)})")
        self.maxchain(regs, vt)
        a(f"s_cbranch_vccz {lab}_x\ns_mov_b64 exec, vcc")
        if lsleep: a(f"s_sleep {lsleep}")
        a(f"s_branch {lab}\n{lab}_x:\ns_mov_b64 exec, -1")
    def poll(self, loads, regs, vt, sleep=4):
        a = self.a; lab = a.new_label(self.L("L_poll"))
        a(f"s_mov_b32 s29, {SPIN}\n{lab}:")
        for l in loads: a(l)
        a(f"s_sub_u32 s29, s29, 1\ns_cbranch_scc1 {lab}_x\ns_waitcnt vmcnt(0)")
        self.maxchain(regs, vt)
        a(f"s_cbranch_vccz {lab}_x\ns_mov_b64 exec, vcc")
        if sleep: a(f"s_sleep {sleep}")
        a(f"s_branch {lab}\n{lab}_x:\ns_mov_b64 exec, -1\ns_waitcnt vmcnt(0)")
    def sanitize(self, regs):
        for r in regs: self.a(f"v_min_u32 v{r}, -2, v{r}")
    def xg_reduce(self, op, x, y):
        self.a(f"""
        v_mov_b32 v{y}, v{x}
        v_permlane16_swap_b32 v{x}, v{y}
        {op} v{x}, v{x}, v{y}
        v_mov_b32 v{y}, v{x}
        v_permlane32_swap_b32 v{x}, v{y}
        {op} v{x}, v{x}, v{y}
        """)
    def dma(self, voff, srd, soff, imm=0, depth=None):
        self.a(f"s_waitcnt vmcnt({(depth or self.o.DS) - 1})")
        self.a(f"buffer_load_dwordx4 v{voff}, {srd}, {soff} offen offset:{imm} nt lds")

    def build(self):
        a = self.a; L = self.L
        a(f"""
        s_cmp_ge_u32 s2, 256
        s_cbranch_scc1 {L('L_end')}
        s_load_dwordx16 s[64:79], s[0:1], 0
        s_load_dwordx8 s[80:87], s[0:1], 64
        s_load_dwordx4 s[88:91], s[0:1], 96
        """)
        if self.stamps or self.o.dbg: a("s_memrealtime s[98:99]")
        l1 = a.new_label(L("L_id1")); l2 = a.new_label(L("L_id2"))
        a(f"""
        v_lshrrev_b32 v1, 6, v0
        v_and_b32 v0, 63, v0
        v_readfirstlane_b32 s3, v1
        v_lshlrev_b32 v1, 2, v0
        v_add_u32 v1, {L_CNT}, v1
        v_mov_b32 v2, 0
        s_mov_b64 exec, 0xffff
        ds_write_b32 v1, v2
        s_mov_b64 exec, -1
        s_lshr_b32 s28, s2, 5                ; 0..7
        s_lshl_b32 s29, s28, 2
        s_lshr_b32 s46, 0x13220030, s29
        s_and_b32 s46, s46, 15
        s_lshr_b32 s45, {(self.o.rat << 28) | (self.o.rt3 << 20) | (self.o.rt3 << 16)}, s29
        s_and_b32 s45, s45, 15               ; rotation : T3 4, AT 2
        s_add_u32 s45, s45, s2
        s_and_b32 s45, s45, 31
        s_lshr_b32 s29, 0x22, s28
        s_and_b32 s29, s29, 1
        s_lshl_b32 s29, s29, 5
        s_add_u32 s45, s45, s29
        s_lshr_b32 s28, s2, 6
        s_cmp_lg_u32 s28, 1
        s_cbranch_scc1 {l2}
        s_lshr_b32 s45, s2, 1
        s_and_b32 s46, s2, 1
        {l2}:
        s_lshl_b32 s47, s45, 2
        s_add_u32 s47, s47, s46
        v_lshrrev_b32 v1, 4, v0
        v_and_b32 v2, 15, v0
        v_lshlrev_b32 v4, 4, v0
        s_waitcnt lgkmcnt(0)
        """)
        self.srd(4, P_WS, WS_SIZE)
        if "CLR" in self.en: self.clear()
        a(f"""
        s_barrier
        s_cmp_ge_u32 s3, 4
        s_cbranch_scc1 {L('L_awave')}
        s_setprio {self.o.sprio}
        s_cmp_ge_u32 s2, 224
        s_cbranch_scc1 {L('L_at')}
        s_cmp_ge_u32 s2, 192
        s_cbranch_scc1 {L('L_bh2')}
        s_cmp_ge_u32 s2, 128
        s_cbranch_scc1 {L('L_bh1')}
        """)
        self.role_t1()
        a.label(L("L_at"));  self.role_at();  a(f"s_branch {L('L_fin')}")
        a.label(L("L_bh1")); self.role_bh1(); a(f"s_branch {L('L_fin')}")
        a.label(L("L_bh2")); self.role_bh2(); a(f"s_branch {L('L_fin')}")
        a.label(L("L_awave")); self.role_a()
        a.label(L("L_fin"))
        if self.stamps:
            a(f"""
            s_mov_b64 exec, -1
            s_waitcnt vmcnt(0)
            s_memrealtime s[92:93]
            s_lshl_b32 s94, s2, 3
            s_add_u32 s94, s94, s3
            s_lshl_b32 s94, s94, 4
            s_add_u32 s94, s94, {STAMPOFF}
            s_waitcnt lgkmcnt(0)
            v_mov_b32 v4, s98
            v_mov_b32 v5, s99
            v_mov_b32 v6, s92
            v_mov_b32 v7, s93
            v_mov_b32 v1, 0
            s_mov_b64 exec, 1
            buffer_store_dwordx4 v[4:7], v1, s[4:7], s94 offen
            """)
        a.label(L("L_end"))
        a("s_endpgm")
        return a

    def clear(self):
        a = self.a; L = self.L
        done = a.new_label(L("L_clrd")); c1 = a.new_label(L("L_clr1")); c2 = a.new_label(L("L_clr2")); lp = a.new_label(L("L_clrl"))
        a(f"""
        s_cmp_lg_u32 s3, 4
        s_cbranch_scc1 {done}
        s_setprio 3
        s_load_dword s{S_TAG}, s[{P_WS}:{P_WS+1}], 0
        v_mov_b32 v8, -1
        v_mov_b32 v9, -1
        v_mov_b32 v10, -1
        v_mov_b32 v11, -1
        s_lshl_b32 s30, s47, 10
        s_add_u32 s30, s30, {WS_OP}
        s_lshr_b32 s31, s2, 5
        s_cmp_eq_u32 s31, 6
        s_cselect_b32 s31, 0, -1
        s_cselect_b32 s32, {NEGMAX}, -1
        v_mov_b32 v12, s31
        v_mov_b32 v13, s31
        v_mov_b32 v14, s31
        v_mov_b32 v15, s31
        s_mov_b32 exec_lo, 0
        v_mov_b32 v12, s32
        v_mov_b32 v14, s32
        s_mov_b32 exec_lo, -1
        s_mov_b32 exec_hi, 0xffffff
        buffer_store_dwordx4 v[12:15], v4, s[4:7], s30 offen sc1
        s_mov_b64 exec, -1
        s_cmp_ge_u32 s2, 128
        s_cbranch_scc1 {c1}
        s_lshl_b32 s31, s2, 10
        s_add_u32 s31, s31, {WS_T1S}
        s_mov_b32 s32, 1
        s_branch {lp}
        {c1}:
        s_cmp_ge_u32 s2, 192
        s_cbranch_scc1 {c2}
        s_cmp_ge_u32 s2, 160
        s_cbranch_scc1 {done}
        s_sub_u32 s31, s2, 128
        s_lshl_b32 s31, s31, 12
        s_add_u32 s31, s31, {WS_QABS}
        s_mov_b32 s32, 4
        s_branch {lp}
        {c2}:
        s_and_b32 s31, s2, 31
        s_mul_i32 s31, s31, 9216
        s_add_u32 s31, s31, {WS_YB}
        s_cmp_ge_u32 s2, 224
        s_cselect_b32 s32, {WS_YB - WS_YA}, 0
        s_sub_u32 s31, s31, s32
        s_mov_b32 s32, 9
        {lp}:
        buffer_store_dwordx4 v[8:11], v4, s[4:7], s31 offen sc1
        s_add_u32 s31, s31, 1024
        s_sub_u32 s32, s32, 1
        s_cmp_lg_u32 s32, 0
        s_cbranch_scc1 {lp}
        {done}:
        """)
    def clear_finish(self):
        a = self.a; L = self.L
        done = a.new_label(L("L_clrf"))
        a(f"""
        s_cmp_lg_u32 s3, 4
        s_cbranch_scc1 {done}
        s_waitcnt lgkmcnt(0)
        s_mul_i32 s{S_TAG}, s{S_TAG}, 0x9E3779B1
        s_add_u32 s{S_TAG}, s{S_TAG}, 0x7F4A7C15
        v_mov_b32 v8, s{S_TAG}
        v_mov_b32 v9, s{S_TAG}
        v_mov_b32 v10, s{S_TAG}
        v_mov_b32 v11, s{S_TAG}
        v_mov_b32 v12, 1
        v_mov_b32 v13, s{S_TAG}
        v_mov_b32 v14, {L_CNT + 4 * 12}
        s_lshl_b32 s31, s2, 7
        s_add_u32 s31, s31, {WS_FLG}
        s_waitcnt vmcnt(0)
        s_mov_b64 exec, 0xff
        buffer_store_dwordx4 v[8:11], v4, s[4:7], s30 offen offset:896 sc1
        buffer_store_dwordx4 v[8:11], v4, s[4:7], s31 offen sc1
        s_mov_b64 exec, 1
        ds_write_b64 v14, v[12:13]
        s_mov_b64 exec, -1
        s_setprio 0
        """)
        self.stamp(8)
        if self.o.dbg:
            a(f"""
            s_not_b32 s92, s98
            v_mov_b32 v250, s92
            v_mov_b32 v251, s98
            s_mov_b64 exec, 1
            buffer_atomic_umax v250, v252, s[8:11], 0 offen sc1
            buffer_atomic_umax v251, v252, s[8:11], 0 offen offset:4 sc1
            s_mov_b64 exec, -1
            """)
        a.label(done)

    def role_t1(self):
        self.role = "t1"
        a = self.a; L = self.L
        f = lambda x: ((x & 7) << 1) | (x >> 3)
        PQ = "PQ" in self.en; BA = "BA" in self.en
        T2 = 192
        def c_setup():
            self.srd(20, P_CKV, 16 << 20)
            for r in range(16): a(f"v_xor_b32 v{24+r}, {f(r) << 4}, v4")
            if self.o.ccol:
                a("""
                s_sub_u32 s33, s2, 64
                s_lshr_b32 s36, s33, 1
                s_lshl_b32 s36, s36, 19
                s_and_b32 s37, s33, 1
                s_lshl_b32 s37, s37, 14
                s_add_u32 s36, s36, s37
                """)
            else:
                a("s_sub_u32 s33, s2, 64\ns_lshl_b32 s36, s33, 18")
        def c_loads(s_row16):
            if self.o.ccol:
                a(f"s_lshl_b32 s37, {s_row16}, 14\ns_lshl_b32 s34, {s_row16}, 11\ns_add_u32 s34, s36, s34")
                for r in range(16):
                    a("s_mov_b32 m0, s37")
                    self.dma(24 + r, "s[20:23]", "s34", 0, self.o.DC)
                    a("s_add_u32 s34, s34, 32768\ns_add_u32 s37, s37, 1024")
                a("s_lshl_b32 s35, s3, 11\ns_add_u32 s35, s36, s35\ns_add_u32 s35, s35, 1024")
                return
            a(f"s_lshl_b32 s37, {s_row16}, 14\ns_add_u32 s34, s36, s37")
            for r in range(16):
                if r % 4 == 0: a("s_mov_b32 m0, s37")
                self.dma(24 + r, "s[20:23]", "s34", (r % 4) * 1024, self.o.DC)
                if r % 4 == 3: a("s_add_u32 s34, s34, 4096\ns_add_u32 s37, s37, 4096")
            a("s_lshl_b32 s37, s3, 14\ns_add_u32 s35, s36, s37\ns_add_u32 s35, s35, 131072")
        def t2_load(r, throttle=False):
            if r >= 16: return
            a(f"v_xor_b32 v23, {f(r) << 4}, v4")
            if self.o.ccol:
                a(f"buffer_load_dwordx4 {vr(T2 + 4*r)}, v23, s[20:23], s35 offen nt\ns_add_u32 s35, s35, 32768")
                return
            a(f"buffer_load_dwordx4 {vr(T2 + 4*r)}, v23, s[20:23], s35 offen offset:{(r % 4) * 1024} nt")
            if r % 4 == 3: a("s_add_u32 s35, s35, 4096")
        if PQ:
            X = 64
            L_X = L_SM + 1024
            a(f"""
            s_cmp_lt_u32 s2, 64
            s_cselect_b32 s12, s{P_BWQ}, s{P_WQ}
            s_cselect_b32 s13, s{P_BWQ+1}, s{P_WQ+1}
            s_mov_b32 s14, {576 * 8192}
            s_mov_b32 s15, 0x20000
            s_cselect_b32 s16, s{P_BX}, s{P_AX}
            s_cselect_b32 s17, s{P_BX+1}, s{P_AX+1}
            s_mov_b32 s18, {4 * 1152}
            s_mov_b32 s19, 0x20000
            s_and_b32 s34, s2, 63
            s_lshl_b32 s34, s34, 7               ; h*256 + ch*128
            s_mul_i32 s35, s3, {18 * 65536}
            s_add_u32 s34, s34, s35
            s_mul_i32 s35, s3, {18 * 1024}
            s_add_u32 s35, s35, {L_PQ}
            v_lshlrev_b32 v5, 1, v1
            v_and_b32 v6, 7, v0
            v_xor_b32 v5, v5, v6
            v_lshlrev_b32 v5, 4, v5
            v_lshrrev_b32 v6, 3, v0
            v_lshl_add_u32 v5, v6, 13, v5
            s_mov_b32 m0, {L_X}
            v_and_b32 v6, 3, v2
            buffer_load_dwordx4 v4, s[16:19], 0 offen lds
            buffer_load_dwordx4 v4, s[16:19], 0 offen offset:1024 lds
            buffer_load_dwordx4 v4, s[16:19], 0 offen offset:2048 lds
            buffer_load_dwordx4 v4, s[16:19], 0 offen offset:3072 lds
            s_mov_b32 m0, {L_X + 4096}
            s_mov_b32 s38, 4096
            buffer_load_dwordx4 v4, s[16:19], s38 offen lds
            """)
            for i in range(18):
                a("s_mov_b32 m0, s35")
                self.dma(5, "s[12:15]", "s34", 0, 60)
                if i != 17: a("s_add_u32 s34, s34, 65536\ns_add_u32 s35, s35, 1024")
            if self.o.gpq == 0: self.gate(4, 16)
            a(f"""
            v_mul_u32_u24 v6, 1152, v6
            v_lshl_add_u32 v6, v1, 3, v6
            v_add_u32 v6, {L_X}, v6
            s_waitcnt vmcnt(18)
            """)
            for s in range(18):
                a(f"ds_read2_b64 {vr(X + 4*s)}, v6 offset0:{8*s} offset1:{8*s+4}")
                if s == 12: a("s_waitcnt lgkmcnt(8)")
            a(f"""
            v_lshrrev_b32 v7, 2, v0
            v_bfe_u32 v8, v0, 3, 2
            v_xor_b32 v8, s3, v8
            v_lshlrev_b32 v8, 5, v8
            v_lshl_add_u32 v8, v7, 7, v8
            v_and_b32 v7, 3, v0
            v_lshl_add_u32 v8, v7, 3, v8
            v_add_u32 v8, {L_PQ}, v8
            v_add_u32 v9, 0x8000, v8
            v_and_b32 v6, 3, v2
            v_lshlrev_b32 v6, 7, v6
            v_lshl_add_u32 v6, v1, 3, v6
            s_lshl_b32 s38, s3, 5
            s_add_u32 s38, s38, {L_SM}
            v_add_u32 v6, s38, v6
            """)
            self.get_tag(16)
            if self.o.gpq == 1:
                a("s_waitcnt vmcnt(8)"); self.gate(4, 16)
            a("s_waitcnt vmcnt(0)")
            if self.o.gpq == 2: self.gate(4, 16)
            self.stamp(0, 20)
            self.sbar(0, 16)
            W = 140; NB = 8; PRE = 6
            def rd(s):
                base, off = (8, s * 4096) if s < 8 else (9, (s - 8) * 4096)
                r = W + 4 * (s % NB)
                a(f"ds_read_b64_tr_b16 v[{r}:{r+1}], v{base} offset:{off}")
                a(f"ds_read_b64_tr_b16 v[{r+2}:{r+3}], v{base} offset:{off + 2048}")
            for s in range(PRE): rd(s)
            for s in range(18):
                if s + PRE < 18: rd(s + PRE)
                a(f"s_waitcnt lgkmcnt({2 * min(PRE, 17 - s)})")
                acc = 40 + 4 * (s & 1)
                a(f"{MF} {vr(acc)}, {vr(W + 4 * (s % NB))}, {vr(X + 4*s)}, {'0' if s < 2 else vr(acc)}")
            a(f"""
            v_add_f32 v40, v40, v44
            v_add_f32 v41, v41, v45
            v_add_f32 v42, v42, v46
            v_add_f32 v43, v43, v47
            v_cvt_pk_bf16_f32 v44, v40, v41
            v_cvt_pk_bf16_f32 v45, v42, v43
            """)
            self.sanitize([44, 45])
            a("ds_write_b64 v6, v[44:45]")
            self.sbar(1, 16)
            sk = a.new_label(L("L_pqs"))
            a(f"""
            s_cmp_lg_u32 s3, 0
            s_cbranch_scc1 {sk}
            v_add_u32 v6, {L_SM}, v4
            s_lshl_b32 s38, s2, 10
            s_add_u32 s38, s38, {WS_T1S}
            s_mov_b32 exec_hi, 0
            ds_read_b128 v[40:43], v6
            s_waitcnt lgkmcnt(0)
            buffer_store_dwordx4 v[40:43], v4, s[4:7], s38 offen sc1
            s_mov_b64 exec, -1
            """)
            if self.o.gpq == 3: self.gate(4, 16)
            self.stamp(1, 20)
            a.label(sk)
        t1b = a.new_label(L("L_t1b"))
        a(f"s_cmp_ge_u32 s2, 64\ns_cbranch_scc1 {t1b}\ns_cmp_lg_u32 s3, 1\ns_cbranch_scc1 {L('L_fin')}")
        self.fetch_q(40)
        a(f"s_branch {L('L_fin')}\n{t1b}:")
        if not BA:
            a(f"s_cmp_lg_u32 s3, 1\ns_cbranch_scc1 {L('L_fin')}")
            self.fetch_q(40)
            a(f"s_branch {L('L_fin')}")
            a.label(L("L_ba_a"))
            a(f"s_branch {L('L_amain')}")
            return
        c_setup()
        a("s_add_u32 s38, s3, 4")
        c_loads("s38")
        a(f"s_branch {L('L_ba_c')}")
        a.label(L("L_ba_a"))
        c_setup()
        if self.fused: self.wait_lds(10, 1, 16, 1)
        c_loads("s44")
        self.get_tag(16)
        sk = a.new_label(L("L_noq"))
        a(f"s_cmp_lg_u32 s3, 4\ns_cbranch_scc1 {sk}")
        self.fetch_q(40)
        a.label(sk)
        a(f"s_setprio {self.o.sprio}")
        a.label(L("L_ba_c"))
        L_QS = L_P
        a(f"""
        s_and_b32 s38, s3, 1             ; hg
        s_lshr_b32 s43, s3, 1            ; kq
        v_and_b32 v5, 7, v2
        v_lshlrev_b32 v5, 1, v5
        v_lshrrev_b32 v6, 3, v2
        v_or_b32 v5, v5, v6
        v_lshlrev_b32 v5, 4, v5
        v_lshl_add_u32 v5, v1, 8, v5
        v_lshl_add_u32 v5, v2, 10, v5
        s_lshl_b32 s37, s43, 15
        v_add_u32 v5, s37, v5
        s_lshr_b32 s39, s33, 4           ; b
        s_lshl_b32 s39, s39, 9
        s_lshl_b32 s40, s3, 13
        s_add_u32 s39, s39, s40
        s_add_u32 s39, s39, {WS_QABS}    ; heads 2w,2w+1
        s_add_u32 s40, s39, 4096
        s_add_u32 s41, s39, 65536
        s_add_u32 s42, s39, {65536 + 4096}
        v_lshrrev_b32 v10, 5, v0
        v_lshlrev_b32 v10, 11, v10
        v_and_b32 v11, 31, v0
        v_lshl_add_u32 v10, v11, 4, v10  ; (l>>5)*2048 + (l&31)*16
        v_mov_b32 v3, {CSC}
        v_add_u32 v11, 128, v11
        s_lshl_b32 s37, s3, 5            ; n0*16 with n0 = 2w
        v_xor_b32 v12, s37, v4
        s_lshl_b32 s37, s3, 11
        s_add_u32 s37, s37, {L_QS}
        v_add_u32 v12, s37, v12
        v_xor_b32 v13, 16, v12
        v_add_u32 v13, 1024, v13         ; head 2w+1
        v_xor_b32 v14, v1, v2
        v_lshlrev_b32 v14, 4, v14
        v_lshl_add_u32 v14, v2, 10, v14
        v_add_u32 v14, {L_QS}, v14
        v_xor_b32 v15, 64, v14
        v_xor_b32 v18, 0x80, v14
        v_xor_b32 v19, 0xc0, v14
        """)
        self.flag_wg(11)
        self.check_flags(11, 16)
        a("s_waitcnt vmcnt(0)\ns_barrier")
        self.stamp(2, 20)
        G = 40; Q = 64
        self.fpoll([f"buffer_load_dwordx4 {vr(G + 4*k)}, v10, s[4:7], s{39+k} offen sc1" for k in range(4)], range(G, G + 16), 16, depth=self.o.pde, lsleep=self.o.sle)
        nt2 = [self.o.t2e]
        def t2_more(n):
            for _ in range(n):
                t2_load(nt2[0]); nt2[0] += 1
        t2_more(4)
        self.stamp(3, 20)
        def qread():
            for j in range(16):
                a(f"ds_read_b128 {vr(Q + 4*j)}, v{[14, 15, 18, 19][j & 3]} offset:{(j >> 2) * 256}")
                if j == 11: a("s_waitcnt lgkmcnt(8)")
        for hg in range(2):
            sk = a.new_label(L("L_qs"))
            a(f"""
            ds_write_b128 v12, {vr(G + 8*hg)}
            ds_write_b128 v13, {vr(G + 8*hg + 4)}
            s_waitcnt lgkmcnt(0)
            s_barrier
            s_cmp_lg_u32 s38, {hg}
            s_cbranch_scc1 {sk}
            """)
            qread()
            a(f"s_waitcnt lgkmcnt(0)\n{sk}:")
            t2_more(2)
            if hg == 0: a("s_barrier")
        a(f"""
        v_lshlrev_b32 v12, 4, v2
        v_add_u32 v12, {L_SM}, v12
        s_lshl_b32 s37, s38, 8
        s_lshl_b32 s39, s43, 2
        s_add_u32 s37, s37, s39
        v_add_u32 v13, s37, v12
        s_lshl_b32 s37, s38, 12
        s_lshl_b32 s39, s43, 10
        s_add_u32 s37, s37, s39
        s_add_u32 s37, s37, {L_P}
        v_add_u32 v14, s37, v4               ; P write
        v_add_u32 v15, {L_P}, v4             ; P read
        v_lshrrev_b32 v6, 2, v0
        v_and_b32 v7, 7, v6
        v_lshlrev_b32 v7, 1, v7
        v_lshrrev_b32 v8, 3, v6
        v_or_b32 v7, v7, v8
        v_bfe_u32 v8, v0, 1, 1
        v_xor_b32 v7, v7, v8
        v_lshlrev_b32 v7, 4, v7
        v_lshl_add_u32 v7, v6, 10, v7
        v_and_b32 v8, 1, v0
        v_lshl_add_u32 v7, v8, 3, v7
        s_lshl_b32 s41, s3, 7
        v_xor_b32 v7, s41, v7
        s_lshl_b32 s37, s3, 14
        v_add_u32 v18, s37, v4
        v_mov_b32 v10, {NEGMAX}              ; m hg0
        v_mov_b32 v11, {NEGMAX}              ; m hg1
        v_mov_b32 v19, 0                     ; l partial
        s_waitcnt vmcnt({max(0, min(16, nt2[0]) - self.o.t2e)})
        """)
        for ct in range(4):
            a(f"v_xor_b32 v{24+ct}, {ct << 5}, v7\nv_add_u32 v{28+ct}, 0x10000, v{24+ct}")
        self.stamp(4, 20)
        S = 40; A = 128; NB = 8; ACC = 160; PB = 40
        for ps in range(2):
            seq = [(j, t) for j in range(16) for t in range(2)]
            def rd(i):
                j, t = seq[i]
                if t == 0: a(f"v_xor_b32 v{32 + (j & 3)}, {j << 4}, v5")
                a(f"ds_read_b128 {vr(A + 4 * (i % NB))}, v{32 + (j & 3)} offset:{t * 16384}")
            PRE = 6
            for i in range(PRE): rd(i)
            for i, (j, t) in enumerate(seq):
                if i + PRE < len(seq): rd(i + PRE)
                a(f"s_waitcnt lgkmcnt({min(PRE, len(seq) - 1 - i)})")
                acc = S + 4 * t
                a(f"{MF} {vr(acc)}, {vr(A + 4 * (i % NB))}, {vr(Q + 4*j)}, {'0' if j == 0 else vr(acc)}")
                if ps == 0 and i % 4 == 3: t2_more(1)
            for e in range(8): a(f"v_mul_f32 v{S+e}, v3, v{S+e}")
            a(f"""
            v_max3_f32 v8, v{S}, v{S+1}, v{S+2}
            v_max3_f32 v8, v8, v{S+3}, v{S+4}
            v_max3_f32 v8, v8, v{S+5}, v{S+6}
            v_max_f32 v8, v8, v{S+7}
            """)
            self.xg_reduce("v_max_f32", 8, 9)
            a(f"""
            ds_write_b32 v13, v8
            s_waitcnt lgkmcnt(0)
            s_barrier
            ds_read_b128 v[52:55], v12
            ds_read_b128 v[56:59], v12 offset:256
            s_cmp_eq_u32 s38, 0
            s_cselect_b64 s[26:27], -1, 0
            s_waitcnt lgkmcnt(0)
            v_max3_f32 v52, v52, v53, v54
            v_max3_f32 v56, v56, v57, v58
            v_max3_f32 v52, v52, v55, v10
            v_max3_f32 v56, v56, v59, v11
            v_sub_f32 v60, v10, v52
            v_sub_f32 v61, v11, v56
            v_mov_b32 v10, v52
            v_mov_b32 v11, v56
            v_cndmask_b32 v8, v56, v52, s[26:27]
            v_exp_f32 v60, v60
            v_exp_f32 v61, v61
            """)
            for e in range(8): a(f"v_sub_f32 v{S+e}, v{S+e}, v8")
            for e in range(8): a(f"v_exp_f32 v{S+e}, v{S+e}")
            a("v_cndmask_b32 v9, v61, v60, s[26:27]")
            for e in range(4): a(f"v_cvt_pk_bf16_f32 v{48+e}, v{S+2*e}, v{S+2*e+1}")
            a(f"ds_write_b128 v14, v[48:51]\nv_fma_f32 v19, v19, v9, v{S}")
            for e in range(1, 8): a(f"v_add_f32 v19, v19, v{S+e}")
            if ps == 1:
                for r in range(32): a(f"v_mul_f32 v{ACC+r}, v{60 + (r >> 4)}, v{ACC+r}")
                self.xg_reduce("v_add_f32", 19, 9)
                a("ds_write_b32 v13, v19 offset:512")
            a("s_waitcnt lgkmcnt(0)\ns_barrier")
            seq = [(u, ct) for u in range(4) for ct in range(4)]
            def rd2(i):
                u, ct = seq[i]
                if ct == 0:
                    for hg in range(2): a(f"ds_read_b128 {vr(PB + 8 * (u & 1) + 4 * hg)}, v15 offset:{hg * 4096 + u * 1024}")
                base = (24 if u < 2 else 28) + ct; off = (u & 1) * 32768; r = A + 4 * (i % NB)
                a(f"ds_read_b64_tr_b16 v[{r}:{r+1}], v{base} offset:{off}")
                a(f"ds_read_b64_tr_b16 v[{r+2}:{r+3}], v{base} offset:{off + 16384}")
            cnt = lambda i: 2 + (2 if seq[i][1] == 0 else 0)
            PRE = 4
            for i in range(PRE): rd2(i)
            for i, (u, ct) in enumerate(seq):
                if i + PRE < len(seq): rd2(i + PRE)
                a(f"s_waitcnt lgkmcnt({sum(cnt(k) for k in range(i + 1, min(i + PRE + 1, len(seq))))})")
                for hg in range(2):
                    acc = ACC + 16 * hg + 4 * ct
                    a(f"{MF} {vr(acc)}, {vr(A + 4 * (i % NB))}, {vr(PB + 8 * (u & 1) + 4 * hg)}, {'0' if (u == 0 and ps == 0) else vr(acc)}")
            if ps == 0:
                self.stamp(5, 20)
                a("s_waitcnt vmcnt(0)\ns_barrier")
                self.stamp(13, 20)
                for r in range(16): a(f"ds_write_b128 v18, {vr(T2 + 4*r)} offset:{r * 1024}")
                a("s_waitcnt lgkmcnt(0)\ns_barrier")
        a(f"""
        v_and_b32 v6, 7, v2
        v_lshlrev_b32 v6, 10, v6
        v_lshrrev_b32 v8, 3, v2
        v_lshl_add_u32 v6, v8, 6, v6
        v_lshl_add_u32 v6, v1, 4, v6
        s_lshl_b32 s39, s33, 15
        s_add_u32 s39, s39, s41
        s_add_u32 s39, s39, {WS_BP}
        """)
        for hg in range(2):
            acc = ACC + 16 * hg; X0 = 64 + 8 * hg; X1 = X0 + 4
            for w in range(8): a(f"v_cvt_pk_bf16_f32 v{X0+w}, v{acc+2*w}, v{acc+2*w+1}")
            for w in range(4): a(f"v_mov_b32 v{80+w}, v{X0+w}")
            for w in range(4): a(f"v_mov_b32_dpp v{X0+w}, v{X1+w} row_ror:8 row_mask:0xf bank_mask:0xc")
            for w in range(4): a(f"v_mov_b32_dpp v{X1+w}, v{80+w} row_ror:8 row_mask:0xf bank_mask:0x3")
            a(f"buffer_store_dwordx4 {vr(X0)}, v6, s[4:7], s39 offen sc1\ns_add_u32 s39, s39, 8192")
            a(f"buffer_store_dwordx4 {vr(X1)}, v6, s[4:7], s39 offen sc1\ns_add_u32 s39, s39, 8192")
        self.stamp(6, 20)
        a(f"""
        s_waitcnt vmcnt(0)
        s_barrier
        s_setprio 0
        s_cmp_ge_u32 s3, 4
        s_cbranch_scc1 {L('L_amain')}
        s_cmp_lg_u32 s3, 0
        s_cbranch_scc1 {L('L_fin')}
        s_setprio 3
        v_and_b32 v6, 31, v0
        v_lshlrev_b32 v7, 4, v6
        v_add_u32 v7, {L_SM + 512}, v7
        ds_read_b128 v[40:43], v7
        v_lshlrev_b32 v6, 3, v6
        s_lshl_b32 s39, s2, 10
        s_add_u32 s39, s39, {WS_T1S + 512}
        v_cmp_eq_u32 vcc, 0, v1
        v_cndmask_b32 v8, v11, v10, vcc
        s_waitcnt lgkmcnt(0)
        v_add_f32 v9, v40, v41
        v_add_f32 v42, v42, v43
        v_add_f32 v9, v9, v42
        """)
        self.sanitize([8, 9])
        a(f"""
        s_mov_b32 exec_hi, 0
        buffer_store_dwordx2 v[8:9], v6, s[4:7], s39 offen sc1
        s_mov_b64 exec, -1
        """)
        self.stamp(7, 20)
        a(f"s_branch {L('L_fin')}")

    def stage_lin(self, srd, s_base, s_lds, n, voff):
        a = self.a
        for i in range(n):
            if i % 4 == 0: a(f"s_mov_b32 m0, {s_lds}")
            self.dma(voff, srd, s_base, (i % 4) * 1024)
            if i % 4 == 3 and i != n - 1:
                a(f"s_add_u32 {s_base}, {s_base}, 4096\ns_add_u32 {s_lds}, {s_lds}, 4096")
    def store_y(self, ys, s_y, s_y8, vt):
        a = self.a
        self.sanitize(range(ys, ys + 9))
        a(f"""
        v_lshlrev_b32 v{vt}, 2, v0
        buffer_store_dwordx4 {vr(ys)}, v4, s[4:7], {s_y} offen sc1
        buffer_store_dwordx4 {vr(ys+4)}, v4, s[4:7], {s_y} offen offset:1024 sc1
        buffer_store_dword v{ys+8}, v{vt}, s[4:7], {s_y8} offen sc1
        """)
    def y_addr(self, ybase):
        self.a(f"""
        s_mul_i32 s38, s33, 9216
        s_add_u32 s38, s38, {ybase}
        s_lshl_b32 s39, s3, 8
        s_add_u32 s39, s39, s38
        s_add_u32 s39, s39, 8192
        s_lshl_b32 s40, s3, 11
        s_add_u32 s38, s38, s40
        """)

    def role_at(self):
        self.role = "at"
        a = self.a
        if self.o.ega == 0: self.gate(4, 16)
        self.get_tag(16)
        if self.o.ega == 1: self.gate(4, 16)
        sk = a.new_label(self.L("L_atq"))
        a(f"s_cmp_lg_u32 s3, 0\ns_cbranch_scc1 {sk}")
        self.fetch_q(40, True)
        a.label(sk)
        if "AT" not in self.en: return
        if self.fused: self.wait_lds(self.o.atgate, 1, 16, 2)
        self.srd(12, P_WO, 4096 * 1152)
        a(f"""
        s_and_b32 s33, s2, 31
        s_mul_i32 s36, s33, {128 * 1152}
        s_mul_i32 s37, s3, {1024 if self.o.wcol else 36 * 1024}
        s_add_u32 s36, s36, s37
        """)
        if self.o.wcol:
            for j in range(8):
                for p in range(5 if j < 4 else 4):
                    off = j * 4096 + p * 32768
                    a(f"s_add_u32 s34, s36, {off}\ns_add_u32 m0, s37, {off}")
                    self.dma(4, "s[12:15]", "s34")
        else:
            self.stage_lin("s[12:15]", "s36", "s37", 36, 4)
        a(f"""
        v_lshrrev_b32 v5, 2, v0
        v_mul_u32_u24 v5, {8 * 1152}, v5
        v_and_b32 v6, 3, v0
        v_lshl_add_u32 v5, v6, 3, v5
        s_lshl_b32 s38, s3, 5
        s_add_u32 s38, s38, 1024
        v_add_u32 v6, s38, v5
        s_lshl_b32 s38, s3, 8
        v_add_u32 v5, s38, v5
        s_waitcnt vmcnt(0)
        """)
        self.sbar(0, 16)
        WO = 64
        for ct in range(9):
            for j in range(4):
                r = WO + 16 * ct + 4 * j
                base, co = (5, ct * 32) if ct < 8 else (6, 0)
                a(f"ds_read_b64_tr_b16 v[{r}:{r+1}], v{base} offset:{(2*j) * 1152 + co}")
                a(f"ds_read_b64_tr_b16 v[{r+2}:{r+3}], v{base} offset:{(2*j+1) * 1152 + co}")
            a("s_waitcnt lgkmcnt(7)")
        a(f"""
        s_lshr_b32 s36, s33, 1
        s_lshl_b32 s36, s36, 2               ; 4*hkv
        v_lshrrev_b32 v6, 2, v2
        v_lshlrev_b32 v6, 6, v6
        v_and_b32 v7, 3, v2
        v_add_u32 v6, v6, v7
        v_add_u32 v8, s36, v6
        v_lshlrev_b32 v6, 10, v6
        v_lshl_add_u32 v6, v1, 4, v6         ; o voffset
        v_lshl_add_u32 v7, v1, 6, v7
        v_lshlrev_b32 v7, 10, v7
        s_lshl_b32 s36, s36, 10
        s_add_u32 s36, s36, {WS_OP}
        s_and_b32 s37, s33, 1
        s_lshl_b32 s40, s37, 3
        s_add_u32 s41, s36, s40
        s_add_u32 s41, s41, 512
        s_lshl_b32 s37, s37, 8
        s_add_u32 s36, s36, s37              ; o soffset
        """)
        self.y_addr(WS_YA)
        a(f"""
        v_lshlrev_b32 v10, 10, v1
        v_lshl_add_u32 v9, v2, 4, v10
        s_lshl_b32 s43, s3, 16
        s_add_u32 s42, s36, s43
        s_add_u32 s43, s41, s43
        s_lshl_b32 s40, s3, 2
        v_add_u32 v12, s40, v1               ; m
        v_mul_u32_u24 v11, 272, v12
        v_lshl_add_u32 v11, v2, 4, v11
        v_add_u32 v11, {L_SM}, v11
        v_lshlrev_b32 v12, 3, v12
        v_add_u32 v12, {L_SM + 4352}, v12
        v_mul_u32_u24 v13, 272, v2
        v_lshl_add_u32 v13, v1, 4, v13
        v_add_u32 v13, {L_SM}, v13
        v_and_b32 v14, 3, v2
        v_lshl_add_u32 v14, v1, 2, v14
        v_lshlrev_b32 v14, 3, v14
        v_add_u32 v14, {L_SM + 4352}, v14
        """)
        self.flag_aid(8)
        self.check_flags(8, 16)
        self.stamp(0)
        if self.fused: self.wait_lds(15, self.o.atw, 16, 1)
        O = 24; ST = 40
        if self.o.atl == 0:
            loads = [f"buffer_load_dwordx4 {vr(O + 4*j)}, v6, s[4:7], s36 offen offset:{64*j} sc1" for j in range(4)]
            loads += [f"buffer_load_dwordx2 v[{ST}:{ST+1}], v7, s[4:7], s41 offen sc1"]
            self.fpoll(loads, range(O, O + 18), 16, depth=self.o.pd, lsleep=self.o.sla)
        else:
            self.fpoll([f"buffer_load_dwordx4 v[44:47], v9, s[4:7], s42 offen sc1", f"buffer_load_dwordx2 v[48:49], v10, s[4:7], s43 offen sc1"], range(44, 50), 16, depth=1, lsleep=self.o.sla)
            a("ds_write_b128 v11, v[44:47]\nds_write_b64 v12, v[48:49]")
            self.sbar(1, 16)
            for j in range(4): a(f"ds_read_b128 {vr(O + 4*j)}, v13 offset:{64*j}")
            a(f"ds_read_b64 v[{ST}:{ST+1}], v14\ns_waitcnt lgkmcnt(0)")
        self.stamp(1)
        ACC = 208
        for ct in range(9):
            for j in range(4):
                acc = ACC + 4 * ct
                a(f"{MF} {vr(acc)}, {vr(O + 4*j)}, {vr(WO + 16*ct + 4*j)}, {'0' if j == 0 else vr(acc)}")
            if ct == 0:
                a(f"""
                v_max_f32_dpp v16, v{ST}, v{ST} quad_perm:[1,0,3,2] {DPPM}
                v_max_f32_dpp v16, v16, v16 quad_perm:[2,3,0,1] {DPPM}
                v_sub_f32 v17, v{ST}, v16
                v_exp_f32 v17, v17
                v_mul_f32 v18, v17, v{ST+1}
                """)
            if ct == 1:
                a(f"""
                v_add_f32_dpp v18, v18, v18 quad_perm:[1,0,3,2] {DPPM}
                v_add_f32_dpp v18, v18, v18 quad_perm:[2,3,0,1] {DPPM}
                v_rcp_f32 v18, v18
                v_mul_f32 v17, v17, v18
                """)
            if ct == 2:
                for t in range(4): a(f"v_mov_b32_dpp v{48+t}, v17 quad_perm:[{t},{t},{t},{t}] {DPPM}")
        Y = 52
        for ct in range(9):
            acc = ACC + 4 * ct
            a(f"""
            v_mul_f32 v{Y+ct}, v48, v{acc}
            v_fmac_f32 v{Y+ct}, v49, v{acc+1}
            v_fmac_f32 v{Y+ct}, v50, v{acc+2}
            v_fmac_f32 v{Y+ct}, v51, v{acc+3}
            """)
        self.store_y(Y, "s38", "s39", 16)
        self.stamp(2)

    def role_bh1(self):
        self.role = "bh1"
        a = self.a; L = self.L
        t3a = a.new_label(L("L_t3a"))
        a(f"s_cmp_lt_u32 s2, 160\ns_cbranch_scc1 {t3a}\ns_cmp_lg_u32 s3, 0\ns_cbranch_scc1 {L('L_fin')}")
        if self.o.eg == 0: self.gate(4, 16)
        self.get_tag(16)
        if self.o.eg == 1: self.gate(4, 16)
        self.fetch_q(40, True)
        a(f"s_branch {L('L_fin')}\n{t3a}:")
        if "BH1" not in self.en: return
        self.srd(12, P_WUK, 512 * 8192)
        a(f"""
        s_sub_u32 s36, s2, 128               ; h
        s_lshl_b32 s37, s36, 8               ; h*256
        s_lshl_b32 s38, s3, 18
        s_add_u32 s37, s37, s38
        s_lshl_b32 s35, s3, 15
        v_xor_b32 v5, v1, v2
        v_lshlrev_b32 v5, 4, v5
        v_lshl_add_u32 v8, v1, 13, v5
        v_xor_b32 v9, 64, v8
        v_xor_b32 v10, 0x80, v8
        v_xor_b32 v11, 0xc0, v8
        """)
        for i in sorted(range(32), key=lambda i: ((i >> 1) & 3, i >> 3, i & 1)):
            p, g, half = i >> 3, (i >> 1) & 3, i & 1
            a(f"s_add_u32 s34, s37, {(128 * g + 8 * p + 4 * half) * 8192}\ns_add_u32 m0, s35, {i * 1024}")
            self.dma(8 + g, "s[12:15]", "s34", 0, 32)
        a(f"""
        v_lshrrev_b32 v6, 2, v2
        v_lshlrev_b32 v21, 3, v6
        v_and_b32 v7, 3, v2
        v_add_u32 v21, v21, v7
        v_lshl_add_u32 v12, v21, 8, v5
        v_add_u32 v12, s35, v12
        v_xor_b32 v13, 64, v12
        v_xor_b32 v14, 0x80, v12
        v_xor_b32 v15, 0xc0, v12
        v_lshlrev_b32 v18, 7, v7
        v_lshl_add_u32 v18, v1, 4, v18       ; q_B voffset: b*128 + g*16
        s_lshl_b32 s39, s36, 11
        s_add_u32 s39, s39, {WS_T1S}
        v_lshlrev_b32 v19, 9, v7             ; out: b*512 + p*64 + g*16
        v_lshl_add_u32 v19, v6, 6, v19
        v_lshl_add_u32 v19, v1, 4, v19
        v_cmp_eq_u32 s[42:43], 1, v6
        v_cmp_eq_u32 s[24:25], 2, v6
        v_cmp_eq_u32 s[26:27], 3, v6
        s_lshl_b32 s40, s36, 12
        s_lshr_b32 s41, s3, 1
        s_lshl_b32 s41, s41, 11
        s_add_u32 s40, s40, s41
        s_and_b32 s41, s3, 1
        s_lshl_b32 s41, s41, 8
        s_add_u32 s40, s40, s41
        s_add_u32 s40, s40, {WS_QABS}
        s_lshl_b32 s41, s36, 1
        v_and_b32 v20, 1, v0
        v_add_u32 v20, s41, v20
        """)
        self.gate(self.o.gbh1, 16)
        self.flag_wg(20)
        self.get_tag(16)
        self.check_flags(20, 16)
        a("s_waitcnt vmcnt(0)")
        W = 64; ACC = 192; Q = 24
        for T in range(8):
            p, half = T >> 1, T & 1
            for k in range(4):
                a(f"ds_read_b128 {vr(W + 16*T + 4*k)}, v{12+k} offset:{(32*p + 4*half) * 256}")
            if T >= 2: a("s_waitcnt lgkmcnt(8)")
        self.stamp(0)
        self.fpoll([f"buffer_load_dwordx4 {vr(Q + 4*k)}, v18, s[4:7], s39 offen offset:{(k >> 1) * 1024 + (k & 1) * 64} sc1" for k in range(4)], range(Q, Q + 16), 16, depth=self.o.pde, lsleep=self.o.sle)
        self.stamp(1)
        a("s_waitcnt lgkmcnt(0)")
        for T in range(8):
            for k in range(4):
                acc = ACC + 4 * T
                a(f"{MF} {vr(acc)}, {vr(W + 16*T + 4*k)}, {vr(Q + 4*k)}, {'0' if k == 0 else vr(acc)}")
        for w in range(16): a(f"v_cvt_pk_bf16_f32 v{40+w}, v{ACC+2*w}, v{ACC+2*w+1}")
        for p, sm in ((1, "s[42:43]"), (2, "s[24:25]"), (3, "s[26:27]")):
            for w in range(4): a(f"v_cndmask_b32 v{40+w}, v{40+w}, v{40+4*p+w}, {sm}")
        self.sanitize(range(40, 44))
        a("buffer_store_dwordx4 v[40:43], v19, s[4:7], s40 offen sc1")
        self.gate(4, 16)
        self.stamp(2)

    def role_bh2(self):
        self.role = "bh2"
        a = self.a
        if "BH2" not in self.en: return
        self.srd(12, P_WUV, 512 * 8192)
        self.srd(16, P_BWO, 4096 * 1152)
        a(f"""
        s_and_b32 s33, s2, 31
        s_lshl_b32 s34, s33, 8
        s_lshl_b32 s35, s3, 19
        s_add_u32 s34, s34, s35
        s_lshl_b32 s35, s3, 14
        v_lshlrev_b32 v5, 1, v1
        v_xor_b32 v5, v5, v2
        v_lshlrev_b32 v5, 4, v5
        v_lshl_add_u32 v5, v1, 13, v5
        v_xor_b32 v6, 0x80, v5
        """)
        a(f"""
        s_lshr_b32 s40, s3, 1                ; b
        s_lshl_b32 s36, s40, 4
        s_add_u32 s36, s36, 64
        v_add_u32 v13, s36, v2
        v_mov_b32 v14, v13
        """)
        self.flag_wg(14)
        if self.o.egb >= 1: self.get_tag(16)
        if self.o.egb >= 2: self.check_flags(14, 16)
        for i in range(16):
            a("s_mov_b32 m0, s35")
            self.dma(5 + (i & 1), "s[12:15]", "s34", 0, self.o.DB)
            if i != 15: a("s_add_u32 s34, s34, 32768\ns_add_u32 s35, s35, 1024")
        a(f"""
        v_lshrrev_b32 v10, 2, v0
        v_and_b32 v11, 7, v10
        v_xor_b32 v11, s3, v11
        v_lshlrev_b32 v11, 5, v11
        v_lshl_add_u32 v11, v10, 8, v11
        v_and_b32 v10, 3, v0
        v_lshl_add_u32 v8, v10, 3, v11
        v_add_u32 v9, 0x10000, v8
        s_waitcnt vmcnt(0)
        s_barrier
        """)
        WV = 192
        for s in range(16):
            off = s * 8192; base = 9 if off >> 16 else 8; off &= 0xffff
            r = WV + 4 * s
            a(f"ds_read_b64_tr_b16 v[{r}:{r+1}], v{base} offset:{off}")
            a(f"ds_read_b64_tr_b16 v[{r+2}:{r+3}], v{base} offset:{off + 4096}")
            if s % 4 == 3: a("s_waitcnt lgkmcnt(7)")
        a("s_waitcnt lgkmcnt(0)\ns_barrier")
        self.stamp(0, 20)
        a(f"""
        s_mul_i32 s36, s33, {128 * 1152}
        s_mul_i32 s37, s3, {1024 if self.o.wcol else 18 * 1024}
        s_add_u32 s36, s36, s37
        """)
        if self.o.wcol:
            for j in range(4):
                for p in range(5 if j < 2 else 4):
                    off = j * 8192 + p * 32768
                    a(f"s_add_u32 s34, s36, {off}\ns_add_u32 m0, s37, {off}")
                    self.dma(4, "s[16:19]", "s34", 0, self.o.DB)
        else:
          for i in range(18):
            if i % 2 == 0: a("s_mov_b32 m0, s37")
            self.dma(4, "s[16:19]", "s36", (i % 2) * 1024, self.o.DB)
            if i % 2 == 1: a("s_add_u32 s36, s36, 2048\ns_add_u32 s37, s37, 2048")
        a(f"""
        v_lshlrev_b32 v5, 3, v1
        v_bfe_u32 v8, v0, 2, 2
        v_add_u32 v5, v5, v8
        v_mul_u32_u24 v5, 1152, v5
        v_and_b32 v8, 3, v0
        v_lshl_add_u32 v5, v8, 3, v5
        s_and_b32 s39, s3, 3
        s_lshl_b32 s39, s39, 5
        s_add_u32 s39, s39, 1024
        v_add_u32 v10, s39, v5
        s_lshl_b32 s39, s3, 7
        v_add_u32 v5, s39, v5
        v_add_u32 v9, {64 * 1152}, v5
        v_add_u32 v11, {64 * 1152}, v10
        s_waitcnt vmcnt(0)
        s_barrier
        """)
        WO = 112
        for ct in range(5):
            for j in range(4):
                r = WO + 16 * ct + 4 * j
                if ct < 4: base = 5 if j < 2 else 9; off = ct * 32
                else: base = 10 if j < 2 else 11; off = 0
                off += (j & 1) * 32 * 1152
                a(f"ds_read_b64_tr_b16 v[{r}:{r+1}], v{base} offset:{off}")
                a(f"ds_read_b64_tr_b16 v[{r+2}:{r+3}], v{base} offset:{off + 4 * 1152}")
            a("s_waitcnt lgkmcnt(7)")
        CTXC = L_SM; CST = 1088
        CTX = L_SM + 8 * CST; XST = 272
        a(f"""
        v_lshlrev_b32 v5, 10, v13
        s_lshl_b32 s36, s33, 3
        s_add_u32 s36, s36, {WS_T1S + 512}
        s_lshl_b32 s37, s3, 18               ; (16b + 8half) * 32768
        s_lshl_b32 s39, s33, 10
        s_add_u32 s37, s37, s39
        s_add_u32 s37, s37, {WS_BP}
        s_mul_i32 s39, s3, {CST}
        s_add_u32 s39, s39, {CTXC}
        v_add_u32 v8, s39, v4
        v_and_b32 v9, 3, v2
        v_lshlrev_b32 v9, 1, v9
        v_bfe_u32 v10, v0, 2, 1
        v_add_u32 v9, v9, v10
        v_mul_u32_u24 v9, {CST}, v9
        v_lshl_add_u32 v9, v1, 4, v9
        v_add_u32 v9, {CTXC}, v9
        v_and_b32 v10, 3, v2
        v_mul_u32_u24 v10, {XST}, v10
        v_lshl_add_u32 v10, v1, 3, v10
        s_lshl_b32 s39, s3, 5
        s_add_u32 s39, s39, {CTX}
        v_add_u32 v10, s39, v10
        v_lshrrev_b32 v11, 2, v2
        v_mul_u32_u24 v11, {XST}, v11
        v_lshl_add_u32 v11, v1, 4, v11
        v_add_u32 v11, {CTX}, v11
        s_mul_i32 s38, s33, 9216
        s_add_u32 s38, s38, {WS_YB}
        s_lshl_b32 s39, s3, 8
        s_add_u32 s39, s39, s38
        s_add_u32 s39, s39, 8192
        s_lshl_b32 s42, s3, 10
        s_add_u32 s38, s38, s42
        v_lshlrev_b32 v12, 2, v0
        s_and_b32 s42, s3, 1
        s_lshl_b32 s42, s42, 3
        """)
        if self.o.egb < 1: self.get_tag(16)
        if self.o.egb < 2: self.check_flags(14, 16)
        self.stamp(1, 20)
        a("s_mov_b64 exec, 0xffff")
        self.poll(["buffer_load_dwordx2 v[18:19], v5, s[4:7], s36 offen sc1"], [18, 19], 16, sleep=2)
        G = 48
        for s in range(8):
            a(f"buffer_load_dwordx4 {vr(G + 4*s)}, v4, s[4:7], s37 offen sc1\ns_add_u32 s37, s37, 32768")
        self.stamp(2, 24)
        a("v_mov_b32 v20, v18")
        for d in ("quad_perm:[1,0,3,2]", "quad_perm:[2,3,0,1]", "row_ror:4", "row_ror:8"):
            a(f"v_max_f32_dpp v20, v20, v20 {d} {DPPM}")
        a("v_sub_f32 v21, v18, v20\nv_exp_f32 v21, v21\nv_mul_f32 v22, v21, v19")
        for d in ("quad_perm:[1,0,3,2]", "quad_perm:[2,3,0,1]", "row_ror:4", "row_ror:8"):
            a(f"v_add_f32_dpp v22, v22, v22 {d} {DPPM}")
        a("v_rcp_f32 v22, v22\nv_mul_f32 v21, v21, v22")
        AC = 24
        ext = 1 if self.stamps else 0
        for s in range(8):
            r = G + 4 * s
            a(f"v_readlane_b32 s41, v21, s42\ns_add_u32 s42, s42, 1")
            a(f"s_waitcnt vmcnt({7 - s + ext})")
            for w in range(4):
                a(f"v_lshlrev_b32 v{32+2*w}, 16, v{r+w}\nv_and_b32 v{33+2*w}, 0xffff0000, v{r+w}")
            for e in range(8):
                if s == 0: a(f"v_mul_f32 v{AC+e}, s41, v{32+e}")
                else: a(f"v_fmac_f32 v{AC+e}, s41, v{32+e}")
        for w in range(4): a(f"v_cvt_pk_bf16_f32 v{32+w}, v{AC+2*w}, v{AC+2*w+1}")
        a("ds_write_b128 v8, v[32:35]")
        self.stamp(3, 20)
        a("s_waitcnt lgkmcnt(0)\ns_barrier")
        for s in range(12):
            a(f"ds_read_b128 {vr(G + 4*s)}, v9 offset:{64*s}")
        for s in range(16):
            if s + 12 < 16: a(f"ds_read_b128 {vr(G + 4*(s+12))}, v9 offset:{64*(s+12)}")
            a(f"s_waitcnt lgkmcnt({min(12, 15 - s)})")
            acc = 24 + 4 * (s & 1)
            a(f"{MF} {vr(acc)}, {vr(WV + 4*s)}, {vr(G + 4*s)}, {'0' if s < 2 else vr(acc)}")
        for r in range(4): a(f"v_add_f32 v{24+r}, v{24+r}, v{28+r}")
        for r in range(4): a(f"v_add_f32_dpp v{24+r}, v{24+r}, v{24+r} row_ror:4 {DPPM}")
        a("""
        v_cvt_pk_bf16_f32 v32, v24, v25
        v_cvt_pk_bf16_f32 v33, v26, v27
        ds_write_b64 v10, v[32:33]
        s_waitcnt lgkmcnt(0)
        s_barrier
        """)
        O = 24
        for j in range(4): a(f"ds_read_b128 {vr(O + 4*j)}, v11 offset:{64*j}")
        ACC = 64
        for j in range(4):
            a(f"s_waitcnt lgkmcnt({3 - j})")
            for ct in range(5):
                acc = ACC + 4 * ct
                a(f"{MF} {vr(acc)}, {vr(O + 4*j)}, {vr(WO + 16*ct + 4*j)}, {'0' if j == 0 else vr(acc)}")
        Y = 48
        for ct in range(5): a(f"v_min_u32 v{Y+ct}, -2, v{ACC + 4*ct}")
        sk = a.new_label(self.L("L_bh2s"))
        a(f"""
        buffer_store_dwordx4 {vr(Y)}, v4, s[4:7], s38 offen sc1
        s_cmp_ge_u32 s3, 4
        s_cbranch_scc1 {sk}
        buffer_store_dword v{Y+4}, v12, s[4:7], s39 offen sc1
        {sk}:
        """)
        self.stamp(4, 20)

    def role_a(self):
        self.role = "a"
        a = self.a; L = self.L
        a("s_sub_u32 s44, s3, 4")
        if "CLR" in self.en and self.fused: self.clear_finish()
        a(f"""
        s_lshr_b32 s28, s2, 5
        s_cmp_eq_u32 s28, 6
        s_cbranch_scc1 {L('L_bh2')}
        s_lshr_b32 s28, s2, 6
        s_cmp_eq_u32 s28, 1
        s_cbranch_scc1 {L('L_ba_a')}
        """)
        a.label(L("L_amain"))
        if "A" in self.en:
            self.a_main()
        elif "RED" in self.en:
            a(f"s_cmp_lg_u32 s44, 0\ns_cbranch_scc1 {L('L_fin')}")
        if "RED" in self.en:
            self.reducer()

    def a_main(self):
        a = self.a; L = self.L; D = self.o.D
        gb, eb = [int(x) for x in self.o.gb.split(",")], [int(x) for x in self.o.eb.split(",")]
        ub = [b for b in range(8, 20) if b not in gb + eb]
        if self.o.ub: ub = [int(x) for x in self.o.ub.split(',')]
        assert sorted(ub + gb + eb) == list(range(8, 20))
        eoff = lambda e: sum(((e >> i) & 1) << eb[i] for i in range(3))
        runs = []
        for i, b in enumerate(ub):
            if runs and runs[-1][1] + runs[-1][2] == b: runs[-1][2] += 1
            else: runs.append([i, b, 1])
        def uoff(sr):
            t = [f"s_mov_b32 s29, 0"]
            for (sb, db, ln) in runs:
                t.append(f"s_bfe_u32 s57, {sr}, {(ln << 16) | sb}\ns_lshl_b32 s57, s57, {db}\ns_or_b32 s29, s29, s57")
            t.append(f"s_mov_b32 {sr}, s29")
            return "\n".join(t)
        bases = sorted({eoff(e) & ~4095 for e in range(8)})
        vbase = {b: 240 + i for i, b in enumerate(bases)}
        assert D <= 16
        self.srd(12, P_K, 64 << 20); self.srd(16, P_V, 64 << 20)
        a(f"""
        s_lshl_b32 s49, s45, 20
        s_mul_i32 s33, s45, {self.o.rot}      ; rotation
        s_cmp_lt_u32 s45, 32
        s_cselect_b32 s32, 12, 16
        s_lshl_b32 s30, s46, 2
        s_add_u32 s30, s30, s44
        s_add_u32 s30, s30, s33
        s_add_u32 s31, s30, s32
        s_and_b32 s30, s30, 127
        s_and_b32 s31, s31, 127
        {uoff("s30")}
        {uoff("s31")}
        s_add_u32 s30, s30, s49
        s_add_u32 s31, s31, s49
        s_lshl_b32 s28, s46, 2
        s_add_u32 s28, s28, s44
        s_sub_u32 s28, s28, s32
        s_sub_u32 s28, s28, 1
        v_mov_b32 v224, s28
        s_mul_i32 s32, s32, 3
        s_add_u32 s33, s33, s32
        s_sub_u32 s32, 128, s32
        s_lshl_b32 s35, s44, 3
        s_lshr_b32 s35, {sum(x << (8 * i) for i, x in enumerate(self.o.tap))}, s35
        s_and_b32 s35, s35, 0xff
        s_sub_u32 s35, s32, s35
        s_mov_b32 s34, 1
        s_lshl_b32 s48, s45, 12
        s_add_u32 s48, s48, {WS_OP + 768}
        s_mov_b32 s50, 0x05040100
        s_mov_b32 s51, 0x07060302
        v_lshlrev_b32 v4, 4, v0
        v_mov_b32 v1, v4
        v_add_u32 v2, 4096, v4
        v_mov_b32 v3, {CSC}
        v_mov_b32 v4, {NEGMAX}
        v_mov_b32 v5, 0
        v_and_b32 v6, 15, v0
        v_and_b32 v7, 1, v0
        v_lshlrev_b32 v6, 4, v6
        v_lshl_add_u32 v6, v7, 8, v6
        v_add_u32 v6, {L_QA}, v6
        v_xor_b32 v7, 16, v6
        v_cmp_lt_u32 vcc, 31, v0
        v_mov_b32 v226, 0
        v_mov_b32 v227, {L_CNT + 4 * 10}
        """)
        a(f"""
        v_and_b32 v240, 15, v0
        v_lshlrev_b32 v240, 4, v240
        v_bfe_u32 v2, v0, 4, 1
        v_lshl_add_u32 v240, v2, {gb[0]}, v240
        v_bfe_u32 v2, v0, 5, 1
        v_lshl_add_u32 v240, v2, {gb[1]}, v240
        """)
        for b, r in vbase.items():
            if b: a(f"v_add_u32 v{r}, {b}, v240")
        for r in range(32, 64): a(f"v_mov_b32 v{r}, 0")
        a(f"""
        v_lshrrev_b32 v228, 4, v0
        v_and_b32 v229, 1, v0
        v_lshl_add_u32 v228, v228, 1, v229
        v_lshlrev_b32 v228, 4, v228
        s_lshl_b32 s53, s44, 10
        s_add_u32 s53, s53, {L_ACOMB}
        v_add_u32 v228, s53, v228
        s_lshl_b32 s53, s44, 4
        s_add_u32 s53, s53, {L_AST}
        v_lshlrev_b32 v229, 3, v229
        v_add_u32 v230, s53, v229
        v_add_u32 v231, {L_AST}, v229
        v_bfe_u32 v232, v0, 3, 2
        v_and_b32 v233, 7, v0
        v_lshlrev_b32 v233, 4, v233
        v_lshl_add_u32 v233, v232, 8, v233
        v_add_u32 v233, {L_ACOMB}, v233
        v_and_b32 v234, 1, v0
        v_lshlrev_b32 v234, 8, v234
        v_lshl_add_u32 v234, v232, 6, v234
        v_bfe_u32 v232, v0, 1, 2
        v_lshl_add_u32 v234, v232, 4, v234   ; h*256 + j*64 + g'*16
        v_cndmask_b32 v234, v234, v1, vcc
        v_mov_b32 v236, {L_CNT + 4 * 15}
        v_mov_b32 v237, 1
        s_lshl_b32 s54, s47, 10
        s_add_u32 s54, s54, {WS_OP}
        """)
        KA, VA, KB, VB = 96, 128, 160, 192
        def issue(srd, base, e, soff, d=None):
            a(f"s_waitcnt vmcnt({(d or D) - 1})")
            a(f"buffer_load_dwordx4 {vr(base + 4*e)}, v{vbase[eoff(e) & ~4095]}, {srd}, {soff} offen offset:{eoff(e) & 4095} nt")
        def issues(srd, base, es, soff):
            if True:
                for e in es: issue(srd, base, e, soff)
                return
            lo = a.new_label(L("L_ilo")); en = a.new_label(L("L_ien"))
            a(f"s_cmp_lg_u32 s34, 0\ns_cbranch_scc1 {lo}")
            for e in es: issue(srd, base, e, soff)
            a(f"s_branch {en}\n{lo}:")
            for e in es: issue(srd, base, e, soff, self.o.Dlo)
            a.label(en)
        def grab():
            a(f"""
            v_mov_b32 v224, s34
            s_mov_b64 exec, 1
            buffer_atomic_add v224, v226, s[4:7], s48 offen sc0 sc1
            s_mov_b64 exec, -1
            """)
        def gate_wait():
            if not self.fused: return
            lab = a.new_label(L("L_gw"))
            a(f"""
            s_mov_b32 s29, {SPIN * 8}
            {lab}:
            ds_read_b32 v225, v227
            s_sub_u32 s29, s29, 1
            s_cbranch_scc1 {lab}_x
            s_waitcnt lgkmcnt(0)
            v_readfirstlane_b32 s28, v225
            s_cmp_gt_u32 s28, s44
            s_cbranch_scc1 {lab}_x
            s_sleep 1
            s_branch {lab}
            {lab}_x:
            s_waitcnt lgkmcnt(0)
            """)
        def ring(d):
            for e in range(8): issue("s[12:15]", KA, e, "s30", d)
            for e in range(8): issue("s[16:19]", VA, e, "s30", d)
            for e in range(8): issue("s[12:15]", KB, e, "s31", d)
            for e in range(8): issue("s[16:19]", VB, e, "s31", d)
        sk = a.new_label(L("L_t3q"))
        a(f"s_lshr_b32 s28, s2, 5\ns_cmp_lg_u32 s28, 4\ns_cbranch_scc1 {sk}\ns_cmp_lg_u32 s3, 4\ns_cbranch_scc1 {sk}")
        self.fetch_q(64)
        a.label(sk)
        if self.o.kvpf:
            a("s_mov_b64 exec, 1\nbuffer_load_dword v96, v240, s[12:15], s30 offen nt\nbuffer_load_dword v97, v240, s[16:19], s30 offen nt\ns_mov_b64 exec, -1")
        gate_wait()
        self.stamp(9)
        ring(self.o.D0)
        if self.o.vlag: a(f"s_mov_b32 s58, {OOB}")
        self.wait_lds(9, 1, 28, 1)
        a("ds_read_b128 v[8:11], v6\nds_read_b128 v[12:15], v7")
        self.get_tag(28)
        a("s_waitcnt lgkmcnt(0)")
        ext = 0
        U = 16; P = 24; ACC = 32; T = 64
        def body(K, V, mode):
            if mode == "e1": a("s_waitcnt vmcnt(8)")
            for half in range(2):
                es = range(4 * half, 4 * half + 4)
                for e in es: a(f"v_dot2_f32_bf16 v{U+e}, v{K+4*e}, v8, 0")
                for w in range(1, 4):
                    for e in es: a(f"v_dot2c_f32_bf16 v{U+e}, v{K+4*e+w}, v{8+w}")
                for w in range(4):
                    for e in es: a(f"v_dot2c_f32_bf16_dpp v{U+e}, v{K+4*e+w}, v{12+w} quad_perm:[1,0,3,2] {DPPM}")
                if mode == "loop":
                    if half == 0 and self.o.gpos == 0: grab()
                    issues("s[12:15]", K, es, "s30")
            for d in ("quad_perm:[2,3,0,1]", "row_ror:4", "row_ror:8"):
                for e in range(8): a(f"v_add_f32_dpp v{U+e}, v{U+e}, v{U+e} {d} {DPPM}")
            for e in range(8): a(f"v_mul_f32 v{U+e}, v{U+e}, v3")
            a(f"""
            v_max3_f32 v28, v{U}, v{U+1}, v{U+2}
            v_max3_f32 v28, v28, v{U+3}, v{U+4}
            v_max3_f32 v28, v28, v{U+5}, v{U+6}
            v_max3_f32 v28, v28, v{U+7}, v4
            """)
            self.xg_reduce("v_max_f32", 28, 29)
            a("v_sub_f32 v29, v4, v28")
            for e in range(8): a(f"v_sub_f32 v{U+e}, v{U+e}, v28")
            a("v_exp_f32 v29, v29")
            for e in range(8): a(f"v_exp_f32 v{U+e}, v{U+e}")
            a(f"""
            v_mov_b32 v4, v28
            v_cmp_neq_f32 vcc, 1.0, v29
            v_fma_f32 v5, v5, v29, v{U}
            v_add_f32 v30, v{U+1}, v{U+2}
            v_add_f32 v31, v{U+3}, v{U+4}
            v_add_f32 v5, v5, v{U+5}
            v_add_f32 v30, v30, v{U+6}
            v_add_f32 v31, v31, v{U+7}
            v_add_f32 v5, v5, v30
            v_add_f32 v5, v5, v31
            """)
            for w in range(4): a(f"v_cvt_pk_bf16_f32 v{P+w}, v{U+2*w}, v{U+2*w+1}")
            sk = a.new_label(L("L_nors"))
            a(f"s_cbranch_vccz {sk}")
            for r in range(32): a(f"v_mul_f32 v{ACC+r}, v29, v{ACC+r}")
            a.label(sk)
            if mode == "e1": self.xg_reduce("v_add_f32", 5, 29)
            if mode == "loop" and self.o.gpos == 1: grab()
            for q in range(4):
                if mode == "e1": a(f"s_waitcnt vmcnt({6 - 2*q})")
                for i in range(8):
                    a(f"v_perm_b32 v{T+4*i+q}, v{V + 4*(2*q+1) + (i >> 1)}, v{V + 4*(2*q) + (i >> 1)}, s{50 + (i & 1)}")
                if mode == "loop":
                    issues("s[16:19]", V, (2*q, 2*q+1), "s58" if self.o.vlag else "s30")
                    if q == 3 and self.o.vlag: a("s_mov_b32 s58, s30")
            for i in range(8):
                a(f"{MF} {vr(ACC+4*i)}, {vr(T+4*i)}, {vr(P)}, {vr(ACC+4*i)}")
        def head(exit_label):
            a(f"""
            s_waitcnt vmcnt({16 if self.o.gpos == 0 else 8})
            v_readfirstlane_b32 s30, v224
            s_add_u32 s28, s30, 1
            s_cmp_ge_i32 s28, s32
            s_cbranch_scc1 {exit_label}
            s_cmp_eq_u32 s34, 0
            s_cbranch_scc1 {exit_label}
            s_cmp_lt_i32 s28, s35
            s_cselect_b32 s34, 1, 0
            s_add_u32 s30, s28, s33
            s_and_b32 s30, s30, 127
            {uoff("s30")}
            s_add_u32 s30, s30, s49
            """)
            if self.o.prog and self.stamps:
                a(f"""
                s_memrealtime s[92:93]
                s_lshl_b32 s94, s45, 7
                s_add_u32 s94, s94, s28
                s_lshl_b32 s94, s94, 7
                s_add_u32 s94, s94, {202 << 20}
                s_waitcnt lgkmcnt(0)
                v_mov_b32 v250, s92
                v_mov_b32 v251, s93
                s_mov_b64 exec, 1
                buffer_store_dwordx2 v[250:251], v226, s[4:7], s94 offen
                s_mov_b64 exec, -1
                """)
        lp = a.new_label(L("L_aloop")); eA = a.new_label(L("L_aeA")); eB = a.new_label(L("L_aeB")); dn = a.new_label(L("L_adone"))
        a.label(lp)
        head(eA); body(KA, VA, "loop")
        head(eB); body(KB, VB, "loop")
        a(f"s_branch {lp}")
        a.label(eA)
        if self.o.vlag:
            for e in range(8): issue("s[16:19]", 64, e, "s58")
            a("s_waitcnt vmcnt(0)")
        body(KA, VA, "e0"); body(KB, VB, "e1")
        a(f"s_branch {dn}")
        a.label(eB)
        if self.o.vlag:
            for e in range(8): issue("s[16:19]", 64, e, "s58")
            a("s_waitcnt vmcnt(0)")
        body(KB, VB, "e0"); body(KA, VA, "e1")
        a.label(dn)
        a("s_mov_b64 exec, 3\nds_write_b64 v230, v[4:5]")
        a("s_mov_b32 exec_lo, 0x00030003\ns_mov_b32 exec_hi, 0x00030003")
        for i in range(8): a(f"ds_write_b128 v228, {vr(ACC+4*i)} offset:{128*i}")
        nc = a.new_label(L("L_nocomb"))
        a(f"""
        s_mov_b64 exec, 1
        ds_add_rtn_u32 v238, v236, v237
        s_mov_b64 exec, -1
        s_waitcnt lgkmcnt(0)
        v_readfirstlane_b32 s55, v238
        s_cmp_lg_u32 s55, 3
        s_cbranch_scc1 {nc}
        """)
        for w in range(4): a(f"ds_read_b64 v[{16+2*w}:{17+2*w}], v231 offset:{16*w}")
        for w in range(4):
            a(f"ds_read_b128 {vr(32+8*w)}, v233 offset:{1024*w}\nds_read_b128 {vr(36+8*w)}, v233 offset:{1024*w+128}")
        a(f"""
        s_waitcnt lgkmcnt(8)
        v_max3_f32 v24, v16, v18, v20
        v_max_f32 v24, v24, v22
        v_sub_f32 v16, v16, v24
        v_sub_f32 v18, v18, v24
        v_sub_f32 v20, v20, v24
        v_sub_f32 v22, v22, v24
        v_exp_f32 v16, v16
        v_exp_f32 v18, v18
        v_exp_f32 v20, v20
        v_exp_f32 v22, v22
        v_mul_f32 v25, v16, v17
        v_fmac_f32 v25, v18, v19
        v_fmac_f32 v25, v20, v21
        v_fmac_f32 v25, v22, v23
        s_waitcnt lgkmcnt(6)
        """)
        for e in range(8): a(f"v_mul_f32 v{64+e}, v16, v{32+e}")
        for w in range(1, 4):
            a(f"s_waitcnt lgkmcnt({6 - 2*w})")
            for e in range(8): a(f"v_fmac_f32 v{64+e}, v{16+2*w}, v{32+8*w+e}")
        for w in range(4): a(f"v_cvt_pk_bf16_f32 v{72+w}, v{64+2*w}, v{65+2*w}")
        a(f"""
        v_mov_b32_dpp v72, v24 quad_perm:[0,0,0,0] row_mask:0xc bank_mask:0xf
        v_mov_b32_dpp v73, v25 quad_perm:[0,0,0,0] row_mask:0xc bank_mask:0xf
        v_mov_b32_dpp v74, v24 quad_perm:[1,1,1,1] row_mask:0xc bank_mask:0xf
        v_mov_b32_dpp v75, v25 quad_perm:[1,1,1,1] row_mask:0xc bank_mask:0xf
        """)
        self.sanitize([72, 73, 74, 75])
        a(f"""
        s_mov_b32 exec_hi, 0xff
        buffer_store_dwordx4 v[72:75], v234, s[4:7], s54 offen sc1
        s_mov_b64 exec, -1
        """)
        self.stamp(11)
        a(f"s_branch {L('L_fin')}")
        a.label(nc)
        a(f"s_cmp_lg_u32 s55, 0\ns_cbranch_scc1 {L('L_fin')}")

    def reducer(self):
        a = self.a; L = self.L
        self.srd(12, P_OUT, 4608 * 2)
        t2 = a.new_label(L("L_rt2")); tj = a.new_label(L("L_rtj"))
        a(f"""
        s_cmp_ge_u32 s2, 72
        s_cbranch_scc1 {L('L_fin')}
        s_cmp_ge_u32 s2, 36
        s_cselect_b32 s56, 36, 0
        s_cselect_b32 s57, {WS_YB - WS_YA}, 0
        s_cselect_b32 s60, 1152, 0
        s_movk_i32 s61, 224
        s_cselect_b32 s61, 192, s61
        s_sub_u32 s56, s2, s56               ; r
        s_add_u32 s57, s57, {WS_YA}
        s_mul_i32 s58, s56, 7282
        s_lshr_b32 s58, s58, 16              ; b = r/9
        s_mul_i32 s59, s58, 9
        s_sub_u32 s59, s56, s59              ; grp
        s_mul_i32 s62, s58, 2304
        s_add_u32 s60, s60, s62
        s_lshl_b32 s62, s59, 7
        s_add_u32 s60, s60, s62
        s_lshl_b32 s62, s59, 10
        s_add_u32 s57, s57, s62
        v_lshrrev_b32 v1, 4, v0
        v_and_b32 v2, 15, v0
        v_mul_u32_u24 v3, 9216, v1
        v_and_b32 v6, 31, v0
        v_add_u32 v6, s61, v6
        s_cmp_eq_u32 s59, 8
        s_cbranch_scc1 {t2}
        s_lshl_b32 s62, s58, 8
        v_lshl_add_u32 v3, v2, 4, v3
        v_lshlrev_b32 v5, 1, v0
        s_branch {tj}
        {t2}:
        s_lshl_b32 s62, s58, 6
        v_lshrrev_b32 v4, 2, v2
        v_lshl_add_u32 v3, v4, 8, v3
        v_and_b32 v4, 3, v2
        v_lshl_add_u32 v3, v4, 4, v3
        v_lshl_add_u32 v5, v2, 2, v1
        v_lshlrev_b32 v5, 1, v5
        {tj}:
        s_add_u32 s57, s57, s62
        """)
        for k in range(8): a(f"s_add_u32 s{16+k}, s57, {k * 4 * 9216}")
        if self.o.outpf: a("buffer_load_ushort v46, v5, s[12:15], s60 offen sc1")
        self.flag_wg(6)
        self.check_flags(6, 44)
        self.stamp(12)
        self.fpoll([f"buffer_load_dwordx4 {vr(8+4*k)}, v3, s[4:7], s{16+k} offen sc1" for k in range(8)], range(8, 40), 44, depth=self.o.pdr or self.o.pd, lsleep=self.o.slr)
        for c in range(16): a(f"v_add_f32 v{48+c}, v{8+c}, v{24+c}")
        for st in (8, 4):
            for c in range(st): a(f"v_add_f32 v{48+c}, v{48+c}, v{48+st+c}")
        a("""
        v_permlane32_swap_b32 v48, v50
        v_permlane32_swap_b32 v49, v51
        v_add_f32 v48, v48, v50
        v_add_f32 v49, v49, v51
        v_permlane16_swap_b32 v48, v49
        v_add_f32 v48, v48, v49
        v_cvt_pk_bf16_f32 v48, v48, v48
        buffer_store_short v48, v5, s[12:15], s60 offen
        """)
        self.stamp(14)
        if self.fused and not self.o.nowait:
            a(f"""
            s_cmp_lg_u32 s2, 0
            s_cbranch_scc1 {L('L_fin')}
            v_mov_b32 v52, s{S_TAG}
            v_mov_b32 v53, 0
            s_mov_b64 exec, 1
            buffer_store_dword v52, v53, s[4:7], 0 offen sc1
            s_mov_b64 exec, -1
            """)

DESC = """; ---------------------------------------------------------------------------------------------
; ---------------------------------------------------------------------------------------------
"""
def emit(fname, o):
    if o.mode == "fused":
        g = Gen({"CLR", "PQ", "AT", "BH1", "BH2", "BA", "A", "RED"}, True, o)
        a = g.build()
        txt = kernel_file([(NAME + "_kernel", (256, 1, 1), (512, 1, 1), LDS_SIZE)], [(NAME + "_kernel", a.text(), 256, 102, 256)], DESC)
    else:
        phases = [("k0", {"CLR"}), ("k1", {"PQ"}), ("k2", {"BH1", "A"}), ("k3", {"BA", "AT"}), ("k4", {"BH2"}), ("k5", {"RED"})]
        ks = []; ls = []
        for nm, en in phases:
            g = Gen(en, False, o, tag="_" + nm)
            a = g.build()
            ks.append((nm + "_kernel", a.text(), 256, 102, 256)); ls.append((nm + "_kernel", (256, 1, 1), (512, 1, 1), LDS_SIZE))
        txt = kernel_file(ls, ks)
    open(fname, "w").write(txt)

if __name__ == "__main__":
    import argparse
    ap = argparse.ArgumentParser()
    ap.add_argument("out"); ap.add_argument("--mode", default="fused"); ap.add_argument("-D", type=int, default=10); ap.add_argument("--DS", type=int, default=16)
    ap.add_argument("--stamps", action="store_true"); ap.add_argument("--D0", type=int, default=10); ap.add_argument("--g", default="2,2,4"); ap.add_argument("--gat", type=int, default=0); ap.add_argument("--gbh1", type=int, default=0); ap.add_argument("--gbh2", type=int, default=0); ap.add_argument("--pd", type=int, default=1); ap.add_argument("--outpf", type=int, default=0); ap.add_argument("--vlag", type=int, default=0); ap.add_argument("--kvpf", type=int, default=0); ap.add_argument("--ub", default=""); ap.add_argument("--gb", default="15,16"); ap.add_argument("--eb", default="17,18,13"); ap.add_argument("--ccol", type=int, default=1); ap.add_argument("--wcol", type=int, default=1); ap.add_argument("--tap", default="0,0,0,0"); ap.add_argument("--rt3", type=int, default=4); ap.add_argument("--rat", type=int, default=2); ap.add_argument("--nowait", action="store_true"); ap.add_argument("--eg", type=int, default=2); ap.add_argument("--ega", type=int, default=2); ap.add_argument("--egb", type=int, default=2); ap.add_argument("--atl", type=int, default=1); ap.add_argument("--sla", type=int, default=1); ap.add_argument("--slr", type=int, default=1); ap.add_argument("--pde", type=int, default=1); ap.add_argument("--sle", type=int, default=2); ap.add_argument("--gpos", type=int, default=0); ap.add_argument("--pdr", type=int, default=0); ap.add_argument("--atgate", type=int, default=9); ap.add_argument("--prog", action="store_true"); ap.add_argument("--dbg", action="store_true"); ap.add_argument("--t2e", type=int, default=0); ap.add_argument("--rot", type=int, default=0); ap.add_argument("--Dlo", type=int, default=0); ap.add_argument("--gpq", type=int, default=0); ap.add_argument("--DC", type=int, default=8); ap.add_argument("--DB", type=int, default=8); ap.add_argument("--atw", type=int, default=4); ap.add_argument("--cap", type=int, default=1000); ap.add_argument("--qfirst", type=int, default=192); ap.add_argument("--cheap", type=int, default=1); ap.add_argument("--sprio", type=int, default=2); ap.add_argument("--bh2hold", type=int, default=0); ap.add_argument("--sh1", default=""); ap.add_argument("--sh2", default=""); ap.add_argument("--NC0", type=int, default=16)
    x = ap.parse_args()
    x.Dlo = x.Dlo or x.D
    x.tap = [int(v) for v in x.tap.split(',')]
    x.g = [int(v) for v in x.g.split(",")]
    if x.sh1: SH1 = tuple(int(v) for v in x.sh1.split(","))
    if x.sh2: SH2 = tuple(int(v) for v in x.sh2.split(","))
    assert sum(SH1) == 128 and sum(SH2) == 128
    emit(x.out, x)
```

```python
import sys, math, struct
from asmlib import *

WS_EP   = 0x00000
WS_OP   = 0x10000
WS_T1S  = 0x50000
WS_QABS = 0x70000
WS_FLG  = 0x08000
WS_YA   = 0x90000
WS_YB   = 0xD8000
WS_BP   = 0x200000
WS_SIZE = 0x10000000
STAMPOFF = 200 << 20
PH_OFF = 201 << 20
L_PQ    = 73728
L_P     = 131072
L_MX    = 139264
L_ACOMB = 147456
L_AST   = 151552
L_CNT   = 151616
L_SM    = 151680
L_QA    = L_SM + 6400
LDS_SIZE = 163840
OOB = 0x40000000
NEGMAX = 0xFF7FFFFF
CSC = struct.unpack("<I", struct.pack("<f", (128 ** -0.5) * math.log2(math.e)))[0]
DPPM = "row_mask:0xf bank_mask:0xf"
SPIN = 200000
P_AX, P_K, P_V, P_WQ, P_WO, P_BX, P_CKV, P_BWQ, P_WUK, P_WUV, P_BWO, P_OUT, P_DBG, P_WS = [64 + 2 * i for i in range(14)]
S_TAG = 63
NSPLIT_B = 16
SH1 = (30, 30, 45, 23)
SH2 = (26, 26, 41, 35)
def share(pair, t):
    sh = SH1 if pair < 32 else SH2
    u0 = sum(sh[:t])
    return 32 * u0, 32 * (u0 + sh[t])
def vr(b, n=4): return f"v[{b}:{b+n-1}]"
MF = "v_mfma_f32_16x16x32_bf16"

class Gen:
    def __init__(self, en, fused, opt, tag=""):
        self.a = Asm(); self.en = en; self.fused = fused; self.o = opt; self.stamps = opt.stamps and fused; self.tag = tag
        self.role = ""
        self.dbgmap = {("a", 8): 2, ("t1", 1): 3, ("bh1", 2): 4, ("t1", 7): 5, ("bh2", 4): 6, ("a", 11): 7, ("at", 2): 8, ("a", 14): 9}
    def L(self, s): return s + self.tag
    def srd(self, d, p, size):
        self.a(f"s_mov_b32 s{d}, s{p}\ns_mov_b32 s{d+1}, s{p+1}\ns_mov_b32 s{d+2}, {size}\ns_mov_b32 s{d+3}, 0x20000")
    def stamp(self, k, vt=250):
        if self.o.dbg and self.fused:
            slot = self.dbgmap.get((self.role, k))
            if slot is None: return
            self.a(f"""
            s_memrealtime s[92:93]
            s_mov_b32 s8, s{P_DBG}
            s_mov_b32 s9, s{P_DBG+1}
            s_mov_b32 s10, 256
            s_mov_b32 s11, 0x20000
            s_waitcnt lgkmcnt(0)
            v_mov_b32 v{vt}, s92
            v_mov_b32 v{vt+2}, 0
            s_mov_b64 s[96:97], exec
            s_mov_b64 exec, 1
            buffer_atomic_umax v{vt}, v{vt+2}, s[8:11], 0 offen offset:{4 * slot} sc1
            s_mov_b64 exec, s[96:97]
            """)
            return
        if not self.stamps: return
        self.a(f"""
        s_memrealtime s[92:93]
        s_lshl_b32 s94, s2, 7
        s_add_u32 s94, s94, {PH_OFF + 8 * k}
        s_waitcnt lgkmcnt(0)
        v_mov_b32 v{vt}, s92
        v_mov_b32 v{vt+1}, s93
        v_mov_b32 v{vt+2}, 0
        s_mov_b64 s[96:97], exec
        s_mov_b64 exec, 1
        buffer_store_dwordx2 v[{vt}:{vt+1}], v{vt+2}, s[4:7], s94 offen
        s_mov_b64 exec, s[96:97]
        """)
    def wait_lds(self, slot, target, vt, sleep=0):
        a = self.a; lab = a.new_label(self.L("L_wl"))
        a(f"""
        v_mov_b32 v{vt}, {L_CNT + 4 * slot}
        s_mov_b32 s29, {SPIN * 8}
        {lab}:
        ds_read_b32 v{vt+1}, v{vt}
        s_sub_u32 s29, s29, 1
        s_cbranch_scc1 {lab}_x
        s_waitcnt lgkmcnt(0)
        v_readfirstlane_b32 s28, v{vt+1}
        s_cmp_ge_u32 s28, {target}
        s_cbranch_scc1 {lab}_x
        """)
        if sleep: a(f"s_sleep {sleep}")
        a(f"s_branch {lab}\n{lab}_x:\ns_waitcnt lgkmcnt(0)")
    def sbar(self, k, vt):
        self.a(f"""
        s_waitcnt lgkmcnt(0)
        v_mov_b32 v{vt}, {L_CNT + 4 * k}
        v_mov_b32 v{vt+1}, 1
        s_mov_b64 exec, 1
        ds_add_u32 v{vt}, v{vt+1}
        s_mov_b64 exec, -1
        """)
        self.wait_lds(k, 4, vt)
    def signal(self, k, vt):
        if not self.fused: return
        self.a(f"""
        v_mov_b32 v{vt}, {L_CNT + 4 * k}
        v_mov_b32 v{vt+1}, 1
        s_mov_b64 exec, 1
        ds_add_u32 v{vt}, v{vt+1}
        s_mov_b64 exec, -1
        """)
    def get_tag(self, vt):
        if not self.fused: return
        self.wait_lds(12, 1, vt, 1)
        self.a(f"ds_read_b32 v{vt+1}, v{vt} offset:4\ns_waitcnt lgkmcnt(0)\nv_readfirstlane_b32 s{S_TAG}, v{vt+1}")
    def check_flags(self, voff, vt):
        if not self.fused: return
        a = self.a; lab = a.new_label(self.L("L_cf"))
        a(f"""
        s_mov_b32 s29, {SPIN}
        {lab}:
        buffer_load_dword v{vt+1}, v{voff}, s[4:7], 0 offen sc1
        s_sub_u32 s29, s29, 1
        s_cbranch_scc1 {lab}_x
        s_waitcnt vmcnt(0)
        v_cmp_ne_u32 vcc, s{S_TAG}, v{vt+1}
        s_cbranch_vccz {lab}_x
        s_mov_b64 exec, vcc
        s_sleep 4
        s_branch {lab}
        {lab}_x:
        s_mov_b64 exec, -1
        s_waitcnt vmcnt(0)
        """)
    def flag_wg(self, v):
        self.a(f"v_lshlrev_b32 v{v}, 7, v{v}\nv_add_u32 v{v}, {WS_FLG}, v{v}")
    def flag_aid(self, v):
        self.a(f"v_lshlrev_b32 v{v}, 10, v{v}\nv_add_u32 v{v}, {WS_OP + 896}, v{v}")
    def gate(self, val, vt):
        if not self.fused: return
        a = self.a; lab = a.new_label(self.L("L_gate"))
        a(f"""
        s_cmp_lg_u32 s3, 0
        s_cbranch_scc1 {lab}
        v_mov_b32 v{vt}, {L_CNT + 4 * 10}
        v_mov_b32 v{vt+1}, {val}
        ds_write_b32 v{vt}, v{vt+1}
        {lab}:
        """)
    def fetch_q(self, vb, gate_after_flags=False):
        a = self.a
        if "A" not in self.en: return
        a(f"""
        s_and_b32 s52, s45, 15
        s_lshl_b32 s53, s52, 2
        s_add_u32 s53, s53, 64
        v_bfe_u32 v{vb}, v0, 3, 2
        v_add_u32 v{vb+1}, s53, v{vb}
        """)
        self.flag_wg(vb + 1)
        a(f"""
        s_lshl_b32 s53, s45, 12
        s_add_u32 s53, s53, {WS_OP + 896}
        v_mov_b32 v{vb+2}, s53
        v_cmp_lt_u32 vcc, 31, v0
        v_cndmask_b32 v{vb+1}, v{vb+1}, v{vb+2}, vcc
        v_and_b32 v{vb+2}, 7, v0
        v_lshlrev_b32 v{vb+2}, 4, v{vb+2}
        v_lshl_add_u32 v{vb+2}, v{vb}, 10, v{vb+2}
        s_lshl_b32 s52, s52, 12
        s_lshr_b32 s53, s45, 4
        s_lshl_b32 s53, s53, 7
        s_add_u32 s52, s52, s53
        s_add_u32 s52, s52, {WS_T1S + 64 * 1024}
        v_lshlrev_b32 v{vb+3}, 4, v0
        v_add_u32 v{vb+3}, {L_QA}, v{vb+3}
        """)
        self.check_flags(vb + 1, vb + 8)
        if gate_after_flags and self.fused:
            a(f"v_mov_b32 v{vb+8}, {L_CNT + 4 * 10}\nv_mov_b32 v{vb+9}, 4\nds_write_b32 v{vb+8}, v{vb+9}")
        a("s_mov_b32 exec_hi, 0")
        self.poll([f"buffer_load_dwordx4 {vr(vb+4)}, v{vb+2}, s[4:7], s52 offen sc1"], range(vb + 4, vb + 8), vb + 8, sleep=2)
        a(f"""
        s_mov_b32 exec_hi, 0
        ds_write_b128 v{vb+3}, {vr(vb+4)}
        v_mov_b32 v{vb+8}, {L_CNT + 4 * 9}
        v_mov_b32 v{vb+9}, 1
        ds_write_b32 v{vb+8}, v{vb+9}
        s_mov_b64 exec, -1
        """)
    def maxchain(self, regs, vt):
        a = self.a
        rs = list(regs); cur = rs[0]; rest = rs[1:]
        while rest:
            if len(rest) >= 2:
                a(f"v_max3_u32 v{vt}, v{cur}, v{rest[0]}, v{rest[1]}"); rest = rest[2:]
            else:
                a(f"v_max_u32 v{vt}, v{cur}, v{rest[0]}"); rest = rest[1:]
            cur = vt
        a(f"v_cmp_eq_u32 vcc, -1, v{cur}")
        if self.o.nowait: a("s_mov_b64 vcc, 0")
    def fpoll(self, loads, regs, vt, depth=2, sleep=0, lsleep=0):
        a = self.a; lab = a.new_label(self.L("L_fp")); n = len(loads)
        a(f"s_mov_b32 s29, {SPIN}")
        for _ in range(depth - 1):
            for l in loads: a(l)
            if sleep: a(f"s_sleep {sleep}")
        a.label(lab)
        for l in loads: a(l)
        a(f"s_sub_u32 s29, s29, 1\ns_cbranch_scc1 {lab}_x\ns_waitcnt vmcnt({n * (depth - 1)})")
        self.maxchain(regs, vt)
        a(f"s_cbranch_vccz {lab}_x\ns_mov_b64 exec, vcc")
        if lsleep: a(f"s_sleep {lsleep}")
        a(f"s_branch {lab}\n{lab}_x:\ns_mov_b64 exec, -1")
    def poll(self, loads, regs, vt, sleep=4):
        a = self.a; lab = a.new_label(self.L("L_poll"))
        a(f"s_mov_b32 s29, {SPIN}\n{lab}:")
        for l in loads: a(l)
        a(f"s_sub_u32 s29, s29, 1\ns_cbranch_scc1 {lab}_x\ns_waitcnt vmcnt(0)")
        self.maxchain(regs, vt)
        a(f"s_cbranch_vccz {lab}_x\ns_mov_b64 exec, vcc")
        if sleep: a(f"s_sleep {sleep}")
        a(f"s_branch {lab}\n{lab}_x:\ns_mov_b64 exec, -1\ns_waitcnt vmcnt(0)")
    def sanitize(self, regs):
        for r in regs: self.a(f"v_min_u32 v{r}, -2, v{r}")
    def xg_reduce(self, op, x, y):
        self.a(f"""
        v_mov_b32 v{y}, v{x}
        v_permlane16_swap_b32 v{x}, v{y}
        {op} v{x}, v{x}, v{y}
        v_mov_b32 v{y}, v{x}
        v_permlane32_swap_b32 v{x}, v{y}
        {op} v{x}, v{x}, v{y}
        """)
    def dma(self, voff, srd, soff, imm=0, depth=None):
        self.a(f"s_waitcnt vmcnt({(depth or self.o.DS) - 1})")
        self.a(f"buffer_load_dwordx4 v{voff}, {srd}, {soff} offen offset:{imm} nt lds")

    def build(self):
        a = self.a; L = self.L
        a(f"""
        s_cmp_ge_u32 s2, 256
        s_cbranch_scc1 {L('L_end')}
        s_load_dwordx16 s[64:79], s[0:1], 0
        s_load_dwordx8 s[80:87], s[0:1], 64
        s_load_dwordx4 s[88:91], s[0:1], 96
        """)
        if self.stamps or self.o.dbg: a("s_memrealtime s[98:99]")
        l1 = a.new_label(L("L_id1")); l2 = a.new_label(L("L_id2"))
        a(f"""
        v_lshrrev_b32 v1, 6, v0
        v_and_b32 v0, 63, v0
        v_readfirstlane_b32 s3, v1
        v_lshlrev_b32 v1, 2, v0
        v_add_u32 v1, {L_CNT}, v1
        v_mov_b32 v2, 0
        s_mov_b64 exec, 0xffff
        ds_write_b32 v1, v2
        s_mov_b64 exec, -1
        s_lshr_b32 s28, s2, 5                ; 0..7
        s_lshl_b32 s29, s28, 2
        s_lshr_b32 s46, 0x13220030, s29
        s_and_b32 s46, s46, 15
        s_lshr_b32 s45, {(self.o.rat << 28) | (self.o.rt3 << 20) | (self.o.rt3 << 16)}, s29
        s_and_b32 s45, s45, 15               ; rotation : T3 4, AT 2
        s_add_u32 s45, s45, s2
        s_and_b32 s45, s45, 31
        s_lshr_b32 s29, 0x22, s28
        s_and_b32 s29, s29, 1
        s_lshl_b32 s29, s29, 5
        s_add_u32 s45, s45, s29
        s_lshr_b32 s28, s2, 6
        s_cmp_lg_u32 s28, 1
        s_cbranch_scc1 {l2}
        s_lshr_b32 s45, s2, 1
        s_and_b32 s46, s2, 1
        {l2}:
        s_lshl_b32 s47, s45, 2
        s_add_u32 s47, s47, s46
        v_lshrrev_b32 v1, 4, v0
        v_and_b32 v2, 15, v0
        v_lshlrev_b32 v4, 4, v0
        s_waitcnt lgkmcnt(0)
        """)
        self.srd(4, P_WS, WS_SIZE)
        if "CLR" in self.en: self.clear()
        a(f"""
        s_barrier
        s_cmp_ge_u32 s3, 4
        s_cbranch_scc1 {L('L_awave')}
        s_setprio {self.o.sprio}
        s_cmp_ge_u32 s2, 224
        s_cbranch_scc1 {L('L_at')}
        s_cmp_ge_u32 s2, 192
        s_cbranch_scc1 {L('L_bh2')}
        s_cmp_ge_u32 s2, 128
        s_cbranch_scc1 {L('L_bh1')}
        """)
        self.role_t1()
        a.label(L("L_at"));  self.role_at();  a(f"s_branch {L('L_fin')}")
        a.label(L("L_bh1")); self.role_bh1(); a(f"s_branch {L('L_fin')}")
        a.label(L("L_bh2")); self.role_bh2(); a(f"s_branch {L('L_fin')}")
        a.label(L("L_awave")); self.role_a()
        a.label(L("L_fin"))
        if self.stamps:
            a(f"""
            s_mov_b64 exec, -1
            s_waitcnt vmcnt(0)
            s_memrealtime s[92:93]
            s_lshl_b32 s94, s2, 3
            s_add_u32 s94, s94, s3
            s_lshl_b32 s94, s94, 4
            s_add_u32 s94, s94, {STAMPOFF}
            s_waitcnt lgkmcnt(0)
            v_mov_b32 v4, s98
            v_mov_b32 v5, s99
            v_mov_b32 v6, s92
            v_mov_b32 v7, s93
            v_mov_b32 v1, 0
            s_mov_b64 exec, 1
            buffer_store_dwordx4 v[4:7], v1, s[4:7], s94 offen
            """)
        a.label(L("L_end"))
        a("s_endpgm")
        return a

    def clear(self):
        a = self.a; L = self.L
        done = a.new_label(L("L_clrd")); c1 = a.new_label(L("L_clr1")); c2 = a.new_label(L("L_clr2")); lp = a.new_label(L("L_clrl"))
        a(f"""
        s_cmp_lg_u32 s3, 4
        s_cbranch_scc1 {done}
        s_setprio 3
        s_load_dword s{S_TAG}, s[{P_WS}:{P_WS+1}], 0
        v_mov_b32 v8, -1
        v_mov_b32 v9, -1
        v_mov_b32 v10, -1
        v_mov_b32 v11, -1
        s_lshl_b32 s30, s47, 10
        s_add_u32 s30, s30, {WS_OP}
        s_lshr_b32 s31, s2, 5
        s_cmp_eq_u32 s31, 6
        s_cselect_b32 s31, 0, -1
        s_cselect_b32 s32, {NEGMAX}, -1
        v_mov_b32 v12, s31
        v_mov_b32 v13, s31
        v_mov_b32 v14, s31
        v_mov_b32 v15, s31
        s_mov_b32 exec_lo, 0
        v_mov_b32 v12, s32
        v_mov_b32 v14, s32
        s_mov_b32 exec_lo, -1
        s_mov_b32 exec_hi, 0xffffff
        buffer_store_dwordx4 v[12:15], v4, s[4:7], s30 offen sc1
        s_mov_b64 exec, -1
        s_cmp_ge_u32 s2, 128
        s_cbranch_scc1 {c1}
        s_lshl_b32 s31, s2, 10
        s_add_u32 s31, s31, {WS_T1S}
        s_mov_b32 s32, 1
        s_branch {lp}
        {c1}:
        s_cmp_ge_u32 s2, 192
        s_cbranch_scc1 {c2}
        s_cmp_ge_u32 s2, 160
        s_cbranch_scc1 {done}
        s_sub_u32 s31, s2, 128
        s_lshl_b32 s31, s31, 12
        s_add_u32 s31, s31, {WS_QABS}
        s_mov_b32 s32, 4
        s_branch {lp}
        {c2}:
        s_and_b32 s31, s2, 31
        s_mul_i32 s31, s31, 9216
        s_add_u32 s31, s31, {WS_YB}
        s_cmp_ge_u32 s2, 224
        s_cselect_b32 s32, {WS_YB - WS_YA}, 0
        s_sub_u32 s31, s31, s32
        s_mov_b32 s32, 9
        {lp}:
        buffer_store_dwordx4 v[8:11], v4, s[4:7], s31 offen sc1
        s_add_u32 s31, s31, 1024
        s_sub_u32 s32, s32, 1
        s_cmp_lg_u32 s32, 0
        s_cbranch_scc1 {lp}
        {done}:
        """)
    def clear_finish(self):
        a = self.a; L = self.L
        done = a.new_label(L("L_clrf"))
        a(f"""
        s_cmp_lg_u32 s3, 4
        s_cbranch_scc1 {done}
        s_waitcnt lgkmcnt(0)
        s_mul_i32 s{S_TAG}, s{S_TAG}, 0x9E3779B1
        s_add_u32 s{S_TAG}, s{S_TAG}, 0x7F4A7C15
        v_mov_b32 v8, s{S_TAG}
        v_mov_b32 v9, s{S_TAG}
        v_mov_b32 v10, s{S_TAG}
        v_mov_b32 v11, s{S_TAG}
        v_mov_b32 v12, 1
        v_mov_b32 v13, s{S_TAG}
        v_mov_b32 v14, {L_CNT + 4 * 12}
        s_lshl_b32 s31, s2, 7
        s_add_u32 s31, s31, {WS_FLG}
        s_waitcnt vmcnt(0)
        s_mov_b64 exec, 0xff
        buffer_store_dwordx4 v[8:11], v4, s[4:7], s30 offen offset:896 sc1
        buffer_store_dwordx4 v[8:11], v4, s[4:7], s31 offen sc1
        s_mov_b64 exec, 1
        ds_write_b64 v14, v[12:13]
        s_mov_b64 exec, -1
        s_setprio 0
        """)
        self.stamp(8)
        if self.o.dbg:
            a(f"""
            s_not_b32 s92, s98
            v_mov_b32 v250, s92
            v_mov_b32 v251, s98
            s_mov_b64 exec, 1
            buffer_atomic_umax v250, v252, s[8:11], 0 offen sc1
            buffer_atomic_umax v251, v252, s[8:11], 0 offen offset:4 sc1
            s_mov_b64 exec, -1
            """)
        a.label(done)

    def role_t1(self):
        self.role = "t1"
        a = self.a; L = self.L
        f = lambda x: ((x & 7) << 1) | (x >> 3)
        PQ = "PQ" in self.en; BA = "BA" in self.en
        T2 = 192
        def c_setup():
            self.srd(20, P_CKV, 16 << 20)
            for r in range(16): a(f"v_xor_b32 v{24+r}, {f(r) << 4}, v4")
            if self.o.ccol:
                a("""
                s_sub_u32 s33, s2, 64
                s_lshr_b32 s36, s33, 1
                s_lshl_b32 s36, s36, 19
                s_and_b32 s37, s33, 1
                s_lshl_b32 s37, s37, 14
                s_add_u32 s36, s36, s37
                """)
            else:
                a("s_sub_u32 s33, s2, 64\ns_lshl_b32 s36, s33, 18")
        def c_loads(s_row16):
            if self.o.ccol:
                a(f"s_lshl_b32 s37, {s_row16}, 14\ns_lshl_b32 s34, {s_row16}, 11\ns_add_u32 s34, s36, s34")
                for r in range(16):
                    a("s_mov_b32 m0, s37")
                    self.dma(24 + r, "s[20:23]", "s34", 0, self.o.DC)
                    a("s_add_u32 s34, s34, 32768\ns_add_u32 s37, s37, 1024")
                a("s_lshl_b32 s35, s3, 11\ns_add_u32 s35, s36, s35\ns_add_u32 s35, s35, 1024")
                return
            a(f"s_lshl_b32 s37, {s_row16}, 14\ns_add_u32 s34, s36, s37")
            for r in range(16):
                if r % 4 == 0: a("s_mov_b32 m0, s37")
                self.dma(24 + r, "s[20:23]", "s34", (r % 4) * 1024, self.o.DC)
                if r % 4 == 3: a("s_add_u32 s34, s34, 4096\ns_add_u32 s37, s37, 4096")
            a("s_lshl_b32 s37, s3, 14\ns_add_u32 s35, s36, s37\ns_add_u32 s35, s35, 131072")
        def t2_load(r, throttle=False):
            if r >= 16: return
            a(f"v_xor_b32 v23, {f(r) << 4}, v4")
            if self.o.ccol:
                a(f"buffer_load_dwordx4 {vr(T2 + 4*r)}, v23, s[20:23], s35 offen nt\ns_add_u32 s35, s35, 32768")
                return
            a(f"buffer_load_dwordx4 {vr(T2 + 4*r)}, v23, s[20:23], s35 offen offset:{(r % 4) * 1024} nt")
            if r % 4 == 3: a("s_add_u32 s35, s35, 4096")
        if PQ:
            X = 64
            L_X = L_SM + 1024
            a(f"""
            s_cmp_lt_u32 s2, 64
            s_cselect_b32 s12, s{P_BWQ}, s{P_WQ}
            s_cselect_b32 s13, s{P_BWQ+1}, s{P_WQ+1}
            s_mov_b32 s14, {576 * 8192}
            s_mov_b32 s15, 0x20000
            s_cselect_b32 s16, s{P_BX}, s{P_AX}
            s_cselect_b32 s17, s{P_BX+1}, s{P_AX+1}
            s_mov_b32 s18, {4 * 1152}
            s_mov_b32 s19, 0x20000
            s_and_b32 s34, s2, 63
            s_lshl_b32 s34, s34, 7               ; h*256 + ch*128
            s_mul_i32 s35, s3, {18 * 65536}
            s_add_u32 s34, s34, s35
            s_mul_i32 s35, s3, {18 * 1024}
            s_add_u32 s35, s35, {L_PQ}
            v_lshlrev_b32 v5, 1, v1
            v_and_b32 v6, 7, v0
            v_xor_b32 v5, v5, v6
            v_lshlrev_b32 v5, 4, v5
            v_lshrrev_b32 v6, 3, v0
            v_lshl_add_u32 v5, v6, 13, v5
            s_mov_b32 m0, {L_X}
            v_and_b32 v6, 3, v2
            buffer_load_dwordx4 v4, s[16:19], 0 offen lds
            buffer_load_dwordx4 v4, s[16:19], 0 offen offset:1024 lds
            buffer_load_dwordx4 v4, s[16:19], 0 offen offset:2048 lds
            buffer_load_dwordx4 v4, s[16:19], 0 offen offset:3072 lds
            s_mov_b32 m0, {L_X + 4096}
            s_mov_b32 s38, 4096
            buffer_load_dwordx4 v4, s[16:19], s38 offen lds
            """)
            for i in range(18):
                a("s_mov_b32 m0, s35")
                self.dma(5, "s[12:15]", "s34", 0, 60)
                if i != 17: a("s_add_u32 s34, s34, 65536\ns_add_u32 s35, s35, 1024")
            if self.o.gpq == 0: self.gate(4, 16)
            a(f"""
            v_mul_u32_u24 v6, 1152, v6
            v_lshl_add_u32 v6, v1, 3, v6
            v_add_u32 v6, {L_X}, v6
            s_waitcnt vmcnt(18)
            """)
            for s in range(18):
                a(f"ds_read2_b64 {vr(X + 4*s)}, v6 offset0:{8*s} offset1:{8*s+4}")
                if s == 12: a("s_waitcnt lgkmcnt(8)")
            a(f"""
            v_lshrrev_b32 v7, 2, v0
            v_bfe_u32 v8, v0, 3, 2
            v_xor_b32 v8, s3, v8
            v_lshlrev_b32 v8, 5, v8
            v_lshl_add_u32 v8, v7, 7, v8
            v_and_b32 v7, 3, v0
            v_lshl_add_u32 v8, v7, 3, v8
            v_add_u32 v8, {L_PQ}, v8
            v_add_u32 v9, 0x8000, v8
            v_and_b32 v6, 3, v2
            v_lshlrev_b32 v6, 7, v6
            v_lshl_add_u32 v6, v1, 3, v6
            s_lshl_b32 s38, s3, 5
            s_add_u32 s38, s38, {L_SM}
            v_add_u32 v6, s38, v6
            """)
            self.get_tag(16)
            if self.o.gpq == 1:
                a("s_waitcnt vmcnt(8)"); self.gate(4, 16)
            a("s_waitcnt vmcnt(0)")
            if self.o.gpq == 2: self.gate(4, 16)
            self.stamp(0, 20)
            self.sbar(0, 16)
            W = 140; NB = 8; PRE = 6
            def rd(s):
                base, off = (8, s * 4096) if s < 8 else (9, (s - 8) * 4096)
                r = W + 4 * (s % NB)
                a(f"ds_read_b64_tr_b16 v[{r}:{r+1}], v{base} offset:{off}")
                a(f"ds_read_b64_tr_b16 v[{r+2}:{r+3}], v{base} offset:{off + 2048}")
            for s in range(PRE): rd(s)
            for s in range(18):
                if s + PRE < 18: rd(s + PRE)
                a(f"s_waitcnt lgkmcnt({2 * min(PRE, 17 - s)})")
                acc = 40 + 4 * (s & 1)
                a(f"{MF} {vr(acc)}, {vr(W + 4 * (s % NB))}, {vr(X + 4*s)}, {'0' if s < 2 else vr(acc)}")
            a(f"""
            v_add_f32 v40, v40, v44
            v_add_f32 v41, v41, v45
            v_add_f32 v42, v42, v46
            v_add_f32 v43, v43, v47
            v_cvt_pk_bf16_f32 v44, v40, v41
            v_cvt_pk_bf16_f32 v45, v42, v43
            """)
            self.sanitize([44, 45])
            a("ds_write_b64 v6, v[44:45]")
            self.sbar(1, 16)
            sk = a.new_label(L("L_pqs"))
            a(f"""
            s_cmp_lg_u32 s3, 0
            s_cbranch_scc1 {sk}
            v_add_u32 v6, {L_SM}, v4
            s_lshl_b32 s38, s2, 10
            s_add_u32 s38, s38, {WS_T1S}
            s_mov_b32 exec_hi, 0
            ds_read_b128 v[40:43], v6
            s_waitcnt lgkmcnt(0)
            buffer_store_dwordx4 v[40:43], v4, s[4:7], s38 offen sc1
            s_mov_b64 exec, -1
            """)
            if self.o.gpq == 3: self.gate(4, 16)
            self.stamp(1, 20)
            a.label(sk)
        t1b = a.new_label(L("L_t1b"))
        a(f"s_cmp_ge_u32 s2, 64\ns_cbranch_scc1 {t1b}\ns_cmp_lg_u32 s3, 1\ns_cbranch_scc1 {L('L_fin')}")
        self.fetch_q(40)
        a(f"s_branch {L('L_fin')}\n{t1b}:")
        if not BA:
            a(f"s_cmp_lg_u32 s3, 1\ns_cbranch_scc1 {L('L_fin')}")
            self.fetch_q(40)
            a(f"s_branch {L('L_fin')}")
            a.label(L("L_ba_a"))
            a(f"s_branch {L('L_amain')}")
            return
        c_setup()
        a("s_add_u32 s38, s3, 4")
        c_loads("s38")
        a(f"s_branch {L('L_ba_c')}")
        a.label(L("L_ba_a"))
        c_setup()
        if self.fused: self.wait_lds(10, 1, 16, 1)
        c_loads("s44")
        self.get_tag(16)
        sk = a.new_label(L("L_noq"))
        a(f"s_cmp_lg_u32 s3, 4\ns_cbranch_scc1 {sk}")
        self.fetch_q(40)
        a.label(sk)
        a(f"s_setprio {self.o.sprio}")
        a.label(L("L_ba_c"))
        L_QS = L_P
        a(f"""
        s_and_b32 s38, s3, 1             ; hg
        s_lshr_b32 s43, s3, 1            ; kq
        v_and_b32 v5, 7, v2
        v_lshlrev_b32 v5, 1, v5
        v_lshrrev_b32 v6, 3, v2
        v_or_b32 v5, v5, v6
        v_lshlrev_b32 v5, 4, v5
        v_lshl_add_u32 v5, v1, 8, v5
        v_lshl_add_u32 v5, v2, 10, v5
        s_lshl_b32 s37, s43, 15
        v_add_u32 v5, s37, v5
        s_lshr_b32 s39, s33, 4           ; b
        s_lshl_b32 s39, s39, 9
        s_lshl_b32 s40, s3, 13
        s_add_u32 s39, s39, s40
        s_add_u32 s39, s39, {WS_QABS}    ; heads 2w,2w+1
        s_add_u32 s40, s39, 4096
        s_add_u32 s41, s39, 65536
        s_add_u32 s42, s39, {65536 + 4096}
        v_lshrrev_b32 v10, 5, v0
        v_lshlrev_b32 v10, 11, v10
        v_and_b32 v11, 31, v0
        v_lshl_add_u32 v10, v11, 4, v10  ; (l>>5)*2048 + (l&31)*16
        v_mov_b32 v3, {CSC}
        v_add_u32 v11, 128, v11
        s_lshl_b32 s37, s3, 5            ; n0*16 with n0 = 2w
        v_xor_b32 v12, s37, v4
        s_lshl_b32 s37, s3, 11
        s_add_u32 s37, s37, {L_QS}
        v_add_u32 v12, s37, v12
        v_xor_b32 v13, 16, v12
        v_add_u32 v13, 1024, v13         ; head 2w+1
        v_xor_b32 v14, v1, v2
        v_lshlrev_b32 v14, 4, v14
        v_lshl_add_u32 v14, v2, 10, v14
        v_add_u32 v14, {L_QS}, v14
        v_xor_b32 v15, 64, v14
        v_xor_b32 v18, 0x80, v14
        v_xor_b32 v19, 0xc0, v14
        """)
        self.flag_wg(11)
        self.check_flags(11, 16)
        a("s_waitcnt vmcnt(0)\ns_barrier")
        self.stamp(2, 20)
        G = 40; Q = 64
        self.fpoll([f"buffer_load_dwordx4 {vr(G + 4*k)}, v10, s[4:7], s{39+k} offen sc1" for k in range(4)], range(G, G + 16), 16, depth=self.o.pde, lsleep=self.o.sle)
        nt2 = [self.o.t2e]
        def t2_more(n):
            for _ in range(n):
                t2_load(nt2[0]); nt2[0] += 1
        t2_more(4)
        self.stamp(3, 20)
        def qread():
            for j in range(16):
                a(f"ds_read_b128 {vr(Q + 4*j)}, v{[14, 15, 18, 19][j & 3]} offset:{(j >> 2) * 256}")
                if j == 11: a("s_waitcnt lgkmcnt(8)")
        for hg in range(2):
            sk = a.new_label(L("L_qs"))
            a(f"""
            ds_write_b128 v12, {vr(G + 8*hg)}
            ds_write_b128 v13, {vr(G + 8*hg + 4)}
            s_waitcnt lgkmcnt(0)
            s_barrier
            s_cmp_lg_u32 s38, {hg}
            s_cbranch_scc1 {sk}
            """)
            qread()
            a(f"s_waitcnt lgkmcnt(0)\n{sk}:")
            t2_more(2)
            if hg == 0: a("s_barrier")
        a(f"""
        v_lshlrev_b32 v12, 4, v2
        v_add_u32 v12, {L_SM}, v12
        s_lshl_b32 s37, s38, 8
        s_lshl_b32 s39, s43, 2
        s_add_u32 s37, s37, s39
        v_add_u32 v13, s37, v12
        s_lshl_b32 s37, s38, 12
        s_lshl_b32 s39, s43, 10
        s_add_u32 s37, s37, s39
        s_add_u32 s37, s37, {L_P}
        v_add_u32 v14, s37, v4               ; P write
        v_add_u32 v15, {L_P}, v4             ; P read
        v_lshrrev_b32 v6, 2, v0
        v_and_b32 v7, 7, v6
        v_lshlrev_b32 v7, 1, v7
        v_lshrrev_b32 v8, 3, v6
        v_or_b32 v7, v7, v8
        v_bfe_u32 v8, v0, 1, 1
        v_xor_b32 v7, v7, v8
        v_lshlrev_b32 v7, 4, v7
        v_lshl_add_u32 v7, v6, 10, v7
        v_and_b32 v8, 1, v0
        v_lshl_add_u32 v7, v8, 3, v7
        s_lshl_b32 s41, s3, 7
        v_xor_b32 v7, s41, v7
        s_lshl_b32 s37, s3, 14
        v_add_u32 v18, s37, v4
        v_mov_b32 v10, {NEGMAX}              ; m hg0
        v_mov_b32 v11, {NEGMAX}              ; m hg1
        v_mov_b32 v19, 0                     ; l partial
        s_waitcnt vmcnt({max(0, min(16, nt2[0]) - self.o.t2e)})
        """)
        for ct in range(4):
            a(f"v_xor_b32 v{24+ct}, {ct << 5}, v7\nv_add_u32 v{28+ct}, 0x10000, v{24+ct}")
        self.stamp(4, 20)
        S = 40; A = 128; NB = 8; ACC = 160; PB = 40
        for ps in range(2):
            seq = [(j, t) for j in range(16) for t in range(2)]
            def rd(i):
                j, t = seq[i]
                if t == 0: a(f"v_xor_b32 v{32 + (j & 3)}, {j << 4}, v5")
                a(f"ds_read_b128 {vr(A + 4 * (i % NB))}, v{32 + (j & 3)} offset:{t * 16384}")
            PRE = 6
            for i in range(PRE): rd(i)
            for i, (j, t) in enumerate(seq):
                if i + PRE < len(seq): rd(i + PRE)
                a(f"s_waitcnt lgkmcnt({min(PRE, len(seq) - 1 - i)})")
                acc = S + 4 * t
                a(f"{MF} {vr(acc)}, {vr(A + 4 * (i % NB))}, {vr(Q + 4*j)}, {'0' if j == 0 else vr(acc)}")
                if ps == 0 and i % 4 == 3: t2_more(1)
            for e in range(8): a(f"v_mul_f32 v{S+e}, v3, v{S+e}")
            a(f"""
            v_max3_f32 v8, v{S}, v{S+1}, v{S+2}
            v_max3_f32 v8, v8, v{S+3}, v{S+4}
            v_max3_f32 v8, v8, v{S+5}, v{S+6}
            v_max_f32 v8, v8, v{S+7}
            """)
            self.xg_reduce("v_max_f32", 8, 9)
            a(f"""
            ds_write_b32 v13, v8
            s_waitcnt lgkmcnt(0)
            s_barrier
            ds_read_b128 v[52:55], v12
            ds_read_b128 v[56:59], v12 offset:256
            s_cmp_eq_u32 s38, 0
            s_cselect_b64 s[26:27], -1, 0
            s_waitcnt lgkmcnt(0)
            v_max3_f32 v52, v52, v53, v54
            v_max3_f32 v56, v56, v57, v58
            v_max3_f32 v52, v52, v55, v10
            v_max3_f32 v56, v56, v59, v11
            v_sub_f32 v60, v10, v52
            v_sub_f32 v61, v11, v56
            v_mov_b32 v10, v52
            v_mov_b32 v11, v56
            v_cndmask_b32 v8, v56, v52, s[26:27]
            v_exp_f32 v60, v60
            v_exp_f32 v61, v61
            """)
            for e in range(8): a(f"v_sub_f32 v{S+e}, v{S+e}, v8")
            for e in range(8): a(f"v_exp_f32 v{S+e}, v{S+e}")
            a("v_cndmask_b32 v9, v61, v60, s[26:27]")
            for e in range(4): a(f"v_cvt_pk_bf16_f32 v{48+e}, v{S+2*e}, v{S+2*e+1}")
            a(f"ds_write_b128 v14, v[48:51]\nv_fma_f32 v19, v19, v9, v{S}")
            for e in range(1, 8): a(f"v_add_f32 v19, v19, v{S+e}")
            if ps == 1:
                for r in range(32): a(f"v_mul_f32 v{ACC+r}, v{60 + (r >> 4)}, v{ACC+r}")
                self.xg_reduce("v_add_f32", 19, 9)
                a("ds_write_b32 v13, v19 offset:512")
            a("s_waitcnt lgkmcnt(0)\ns_barrier")
            seq = [(u, ct) for u in range(4) for ct in range(4)]
            def rd2(i):
                u, ct = seq[i]
                if ct == 0:
                    for hg in range(2): a(f"ds_read_b128 {vr(PB + 8 * (u & 1) + 4 * hg)}, v15 offset:{hg * 4096 + u * 1024}")
                base = (24 if u < 2 else 28) + ct; off = (u & 1) * 32768; r = A + 4 * (i % NB)
                a(f"ds_read_b64_tr_b16 v[{r}:{r+1}], v{base} offset:{off}")
                a(f"ds_read_b64_tr_b16 v[{r+2}:{r+3}], v{base} offset:{off + 16384}")
            cnt = lambda i: 2 + (2 if seq[i][1] == 0 else 0)
            PRE = 4
            for i in range(PRE): rd2(i)
            for i, (u, ct) in enumerate(seq):
                if i + PRE < len(seq): rd2(i + PRE)
                a(f"s_waitcnt lgkmcnt({sum(cnt(k) for k in range(i + 1, min(i + PRE + 1, len(seq))))})")
                for hg in range(2):
                    acc = ACC + 16 * hg + 4 * ct
                    a(f"{MF} {vr(acc)}, {vr(A + 4 * (i % NB))}, {vr(PB + 8 * (u & 1) + 4 * hg)}, {'0' if (u == 0 and ps == 0) else vr(acc)}")
            if ps == 0:
                self.stamp(5, 20)
                a("s_waitcnt vmcnt(0)\ns_barrier")
                self.stamp(13, 20)
                for r in range(16): a(f"ds_write_b128 v18, {vr(T2 + 4*r)} offset:{r * 1024}")
                a("s_waitcnt lgkmcnt(0)\ns_barrier")
        a(f"""
        v_and_b32 v6, 7, v2
        v_lshlrev_b32 v6, 10, v6
        v_lshrrev_b32 v8, 3, v2
        v_lshl_add_u32 v6, v8, 6, v6
        v_lshl_add_u32 v6, v1, 4, v6
        s_lshl_b32 s39, s33, 15
        s_add_u32 s39, s39, s41
        s_add_u32 s39, s39, {WS_BP}
        """)
        for hg in range(2):
            acc = ACC + 16 * hg; X0 = 64 + 8 * hg; X1 = X0 + 4
            for w in range(8): a(f"v_cvt_pk_bf16_f32 v{X0+w}, v{acc+2*w}, v{acc+2*w+1}")
            for w in range(4): a(f"v_mov_b32 v{80+w}, v{X0+w}")
            for w in range(4): a(f"v_mov_b32_dpp v{X0+w}, v{X1+w} row_ror:8 row_mask:0xf bank_mask:0xc")
            for w in range(4): a(f"v_mov_b32_dpp v{X1+w}, v{80+w} row_ror:8 row_mask:0xf bank_mask:0x3")
            a(f"buffer_store_dwordx4 {vr(X0)}, v6, s[4:7], s39 offen sc1\ns_add_u32 s39, s39, 8192")
            a(f"buffer_store_dwordx4 {vr(X1)}, v6, s[4:7], s39 offen sc1\ns_add_u32 s39, s39, 8192")
        self.stamp(6, 20)
        a(f"""
        s_waitcnt vmcnt(0)
        s_barrier
        s_setprio 0
        s_cmp_ge_u32 s3, 4
        s_cbranch_scc1 {L('L_amain')}
        s_cmp_lg_u32 s3, 0
        s_cbranch_scc1 {L('L_fin')}
        s_setprio 3
        v_and_b32 v6, 31, v0
        v_lshlrev_b32 v7, 4, v6
        v_add_u32 v7, {L_SM + 512}, v7
        ds_read_b128 v[40:43], v7
        v_lshlrev_b32 v6, 3, v6
        s_lshl_b32 s39, s2, 10
        s_add_u32 s39, s39, {WS_T1S + 512}
        v_cmp_eq_u32 vcc, 0, v1
        v_cndmask_b32 v8, v11, v10, vcc
        s_waitcnt lgkmcnt(0)
        v_add_f32 v9, v40, v41
        v_add_f32 v42, v42, v43
        v_add_f32 v9, v9, v42
        """)
        self.sanitize([8, 9])
        a(f"""
        s_mov_b32 exec_hi, 0
        buffer_store_dwordx2 v[8:9], v6, s[4:7], s39 offen sc1
        s_mov_b64 exec, -1
        """)
        self.stamp(7, 20)
        a(f"s_branch {L('L_fin')}")

    def stage_lin(self, srd, s_base, s_lds, n, voff):
        a = self.a
        for i in range(n):
            if i % 4 == 0: a(f"s_mov_b32 m0, {s_lds}")
            self.dma(voff, srd, s_base, (i % 4) * 1024)
            if i % 4 == 3 and i != n - 1:
                a(f"s_add_u32 {s_base}, {s_base}, 4096\ns_add_u32 {s_lds}, {s_lds}, 4096")
    def store_y(self, ys, s_y, s_y8, vt):
        a = self.a
        self.sanitize(range(ys, ys + 9))
        a(f"""
        v_lshlrev_b32 v{vt}, 2, v0
        buffer_store_dwordx4 {vr(ys)}, v4, s[4:7], {s_y} offen sc1
        buffer_store_dwordx4 {vr(ys+4)}, v4, s[4:7], {s_y} offen offset:1024 sc1
        buffer_store_dword v{ys+8}, v{vt}, s[4:7], {s_y8} offen sc1
        """)
    def y_addr(self, ybase):
        self.a(f"""
        s_mul_i32 s38, s33, 9216
        s_add_u32 s38, s38, {ybase}
        s_lshl_b32 s39, s3, 8
        s_add_u32 s39, s39, s38
        s_add_u32 s39, s39, 8192
        s_lshl_b32 s40, s3, 11
        s_add_u32 s38, s38, s40
        """)

    def role_at(self):
        self.role = "at"
        a = self.a
        if self.o.ega == 0: self.gate(4, 16)
        self.get_tag(16)
        if self.o.ega == 1: self.gate(4, 16)
        sk = a.new_label(self.L("L_atq"))
        a(f"s_cmp_lg_u32 s3, 0\ns_cbranch_scc1 {sk}")
        self.fetch_q(40, True)
        a.label(sk)
        if "AT" not in self.en: return
        if self.fused: self.wait_lds(self.o.atgate, 1, 16, 2)
        self.srd(12, P_WO, 4096 * 1152)
        a(f"""
        s_and_b32 s33, s2, 31
        s_mul_i32 s36, s33, {128 * 1152}
        s_mul_i32 s37, s3, {1024 if self.o.wcol else 36 * 1024}
        s_add_u32 s36, s36, s37
        """)
        if self.o.wcol:
            for j in range(8):
                for p in range(5 if j < 4 else 4):
                    off = j * 4096 + p * 32768
                    a(f"s_add_u32 s34, s36, {off}\ns_add_u32 m0, s37, {off}")
                    self.dma(4, "s[12:15]", "s34")
        else:
            self.stage_lin("s[12:15]", "s36", "s37", 36, 4)
        a(f"""
        v_lshrrev_b32 v5, 2, v0
        v_mul_u32_u24 v5, {8 * 1152}, v5
        v_and_b32 v6, 3, v0
        v_lshl_add_u32 v5, v6, 3, v5
        s_lshl_b32 s38, s3, 5
        s_add_u32 s38, s38, 1024
        v_add_u32 v6, s38, v5
        s_lshl_b32 s38, s3, 8
        v_add_u32 v5, s38, v5
        s_waitcnt vmcnt(0)
        """)
        self.sbar(0, 16)
        WO = 64
        for ct in range(9):
            for j in range(4):
                r = WO + 16 * ct + 4 * j
                base, co = (5, ct * 32) if ct < 8 else (6, 0)
                a(f"ds_read_b64_tr_b16 v[{r}:{r+1}], v{base} offset:{(2*j) * 1152 + co}")
                a(f"ds_read_b64_tr_b16 v[{r+2}:{r+3}], v{base} offset:{(2*j+1) * 1152 + co}")
            a("s_waitcnt lgkmcnt(7)")
        a(f"""
        s_lshr_b32 s36, s33, 1
        s_lshl_b32 s36, s36, 2               ; 4*hkv
        v_lshrrev_b32 v6, 2, v2
        v_lshlrev_b32 v6, 6, v6
        v_and_b32 v7, 3, v2
        v_add_u32 v6, v6, v7
        v_add_u32 v8, s36, v6
        v_lshlrev_b32 v6, 10, v6
        v_lshl_add_u32 v6, v1, 4, v6         ; o voffset
        v_lshl_add_u32 v7, v1, 6, v7
        v_lshlrev_b32 v7, 10, v7
        s_lshl_b32 s36, s36, 10
        s_add_u32 s36, s36, {WS_OP}
        s_and_b32 s37, s33, 1
        s_lshl_b32 s40, s37, 3
        s_add_u32 s41, s36, s40
        s_add_u32 s41, s41, 512
        s_lshl_b32 s37, s37, 8
        s_add_u32 s36, s36, s37              ; o soffset
        """)
        self.y_addr(WS_YA)
        a(f"""
        v_lshlrev_b32 v10, 10, v1
        v_lshl_add_u32 v9, v2, 4, v10
        s_lshl_b32 s43, s3, 16
        s_add_u32 s42, s36, s43
        s_add_u32 s43, s41, s43
        s_lshl_b32 s40, s3, 2
        v_add_u32 v12, s40, v1               ; m
        v_mul_u32_u24 v11, 272, v12
        v_lshl_add_u32 v11, v2, 4, v11
        v_add_u32 v11, {L_SM}, v11
        v_lshlrev_b32 v12, 3, v12
        v_add_u32 v12, {L_SM + 4352}, v12
        v_mul_u32_u24 v13, 272, v2
        v_lshl_add_u32 v13, v1, 4, v13
        v_add_u32 v13, {L_SM}, v13
        v_and_b32 v14, 3, v2
        v_lshl_add_u32 v14, v1, 2, v14
        v_lshlrev_b32 v14, 3, v14
        v_add_u32 v14, {L_SM + 4352}, v14
        """)
        self.flag_aid(8)
        self.check_flags(8, 16)
        self.stamp(0)
        if self.fused: self.wait_lds(15, self.o.atw, 16, 1)
        O = 24; ST = 40
        if self.o.atl == 0:
            loads = [f"buffer_load_dwordx4 {vr(O + 4*j)}, v6, s[4:7], s36 offen offset:{64*j} sc1" for j in range(4)]
            loads += [f"buffer_load_dwordx2 v[{ST}:{ST+1}], v7, s[4:7], s41 offen sc1"]
            self.fpoll(loads, range(O, O + 18), 16, depth=self.o.pd, lsleep=self.o.sla)
        else:
            self.fpoll([f"buffer_load_dwordx4 v[44:47], v9, s[4:7], s42 offen sc1", f"buffer_load_dwordx2 v[48:49], v10, s[4:7], s43 offen sc1"], range(44, 50), 16, depth=1, lsleep=self.o.sla)
            a("ds_write_b128 v11, v[44:47]\nds_write_b64 v12, v[48:49]")
            self.sbar(1, 16)
            for j in range(4): a(f"ds_read_b128 {vr(O + 4*j)}, v13 offset:{64*j}")
            a(f"ds_read_b64 v[{ST}:{ST+1}], v14\ns_waitcnt lgkmcnt(0)")
        self.stamp(1)
        ACC = 208
        Y = 52
        def scale(ct):
            acc = ACC + 4 * ct
            a(f"""
            v_mul_f32 v{Y+ct}, v48, v{acc}
            v_fmac_f32 v{Y+ct}, v49, v{acc+1}
            v_fmac_f32 v{Y+ct}, v50, v{acc+2}
            v_fmac_f32 v{Y+ct}, v51, v{acc+3}
            v_min_u32 v{Y+ct}, -2, v{Y+ct}
            """)
        for ct in range(9):
            for j in range(4):
                acc = ACC + 4 * ct
                a(f"{MF} {vr(acc)}, {vr(O + 4*j)}, {vr(WO + 16*ct + 4*j)}, {'0' if j == 0 else vr(acc)}")
            if ct == 0:
                a(f"""
                v_max_f32_dpp v16, v{ST}, v{ST} quad_perm:[1,0,3,2] {DPPM}
                v_max_f32_dpp v16, v16, v16 quad_perm:[2,3,0,1] {DPPM}
                v_sub_f32 v17, v{ST}, v16
                v_exp_f32 v17, v17
                v_mul_f32 v18, v17, v{ST+1}
                """)
            if ct == 1:
                a(f"""
                v_add_f32_dpp v18, v18, v18 quad_perm:[1,0,3,2] {DPPM}
                v_add_f32_dpp v18, v18, v18 quad_perm:[2,3,0,1] {DPPM}
                v_rcp_f32 v18, v18
                v_mul_f32 v17, v17, v18
                """)
            if ct == 2:
                for t in range(4): a(f"v_mov_b32_dpp v{48+t}, v17 quad_perm:[{t},{t},{t},{t}] {DPPM}")
                a("v_lshlrev_b32 v16, 2, v0")
            if self.o.atint:
                for c2 in {3: (0, 1), 4: (2, 3), 5: (4,), 6: (5,), 7: (6,), 8: (7,)}.get(ct, ()): scale(c2)
                if ct == 4: a(f"buffer_store_dwordx4 {vr(Y)}, v4, s[4:7], s38 offen sc1")
                if ct == 8: a(f"buffer_store_dwordx4 {vr(Y+4)}, v4, s[4:7], s38 offen offset:1024 sc1")
        if self.o.atint:
            scale(8)
            a(f"buffer_store_dword v{Y+8}, v16, s[4:7], s39 offen sc1")
        else:
            for ct in range(9): scale(ct)
            self.store_y(Y, "s38", "s39", 16)
        self.stamp(2)

    def role_bh1(self):
        self.role = "bh1"
        a = self.a; L = self.L
        t3a = a.new_label(L("L_t3a"))
        a(f"s_cmp_lt_u32 s2, 160\ns_cbranch_scc1 {t3a}\ns_cmp_lg_u32 s3, 0\ns_cbranch_scc1 {L('L_fin')}")
        if self.o.eg == 0: self.gate(4, 16)
        self.get_tag(16)
        if self.o.eg == 1: self.gate(4, 16)
        self.fetch_q(40, True)
        a(f"s_branch {L('L_fin')}\n{t3a}:")
        if "BH1" not in self.en: return
        self.srd(12, P_WUK, 512 * 8192)
        a(f"""
        s_sub_u32 s36, s2, 128               ; h
        s_lshl_b32 s37, s36, 8               ; h*256
        s_lshl_b32 s38, s3, 18
        s_add_u32 s37, s37, s38
        s_lshl_b32 s35, s3, 15
        v_xor_b32 v5, v1, v2
        v_lshlrev_b32 v5, 4, v5
        v_lshl_add_u32 v8, v1, 13, v5
        v_xor_b32 v9, 64, v8
        v_xor_b32 v10, 0x80, v8
        v_xor_b32 v11, 0xc0, v8
        """)
        for i in sorted(range(32), key=lambda i: ((i >> 1) & 3, i >> 3, i & 1)):
            p, g, half = i >> 3, (i >> 1) & 3, i & 1
            a(f"s_add_u32 s34, s37, {(128 * g + 8 * p + 4 * half) * 8192}\ns_add_u32 m0, s35, {i * 1024}")
            self.dma(8 + g, "s[12:15]", "s34", 0, 32)
        a(f"""
        v_lshrrev_b32 v6, 2, v2
        v_lshlrev_b32 v21, 3, v6
        v_and_b32 v7, 3, v2
        v_add_u32 v21, v21, v7
        v_lshl_add_u32 v12, v21, 8, v5
        v_add_u32 v12, s35, v12
        v_xor_b32 v13, 64, v12
        v_xor_b32 v14, 0x80, v12
        v_xor_b32 v15, 0xc0, v12
        v_lshlrev_b32 v18, 7, v7
        v_lshl_add_u32 v18, v1, 4, v18       ; q_B voffset: b*128 + g*16
        s_lshl_b32 s39, s36, 11
        s_add_u32 s39, s39, {WS_T1S}
        v_lshlrev_b32 v19, 9, v7             ; out: b*512 + p*64 + g*16
        v_lshl_add_u32 v19, v6, 6, v19
        v_lshl_add_u32 v19, v1, 4, v19
        v_cmp_eq_u32 s[42:43], 1, v6
        v_cmp_eq_u32 s[24:25], 2, v6
        v_cmp_eq_u32 s[26:27], 3, v6
        s_lshl_b32 s40, s36, 12
        s_lshr_b32 s41, s3, 1
        s_lshl_b32 s41, s41, 11
        s_add_u32 s40, s40, s41
        s_and_b32 s41, s3, 1
        s_lshl_b32 s41, s41, 8
        s_add_u32 s40, s40, s41
        s_add_u32 s40, s40, {WS_QABS}
        s_lshl_b32 s41, s36, 1
        v_and_b32 v20, 1, v0
        v_add_u32 v20, s41, v20
        """)
        self.gate(self.o.gbh1, 16)
        self.flag_wg(20)
        self.get_tag(16)
        self.check_flags(20, 16)
        a("s_waitcnt vmcnt(0)")
        W = 64; ACC = 192; Q = 24
        for T in range(8):
            p, half = T >> 1, T & 1
            for k in range(4):
                a(f"ds_read_b128 {vr(W + 16*T + 4*k)}, v{12+k} offset:{(32*p + 4*half) * 256}")
            if T >= 2: a("s_waitcnt lgkmcnt(8)")
        self.stamp(0)
        self.fpoll([f"buffer_load_dwordx4 {vr(Q + 4*k)}, v18, s[4:7], s39 offen offset:{(k >> 1) * 1024 + (k & 1) * 64} sc1" for k in range(4)], range(Q, Q + 16), 16, depth=self.o.pde, lsleep=self.o.sle)
        self.stamp(1)
        a("s_waitcnt lgkmcnt(0)")
        for T in range(8):
            for k in range(4):
                acc = ACC + 4 * T
                a(f"{MF} {vr(acc)}, {vr(W + 16*T + 4*k)}, {vr(Q + 4*k)}, {'0' if k == 0 else vr(acc)}")
        for w in range(16): a(f"v_cvt_pk_bf16_f32 v{40+w}, v{ACC+2*w}, v{ACC+2*w+1}")
        for p, sm in ((1, "s[42:43]"), (2, "s[24:25]"), (3, "s[26:27]")):
            for w in range(4): a(f"v_cndmask_b32 v{40+w}, v{40+w}, v{40+4*p+w}, {sm}")
        self.sanitize(range(40, 44))
        a("buffer_store_dwordx4 v[40:43], v19, s[4:7], s40 offen sc1")
        self.gate(4, 16)
        self.stamp(2)

    def role_bh2(self):
        self.role = "bh2"
        a = self.a
        if "BH2" not in self.en: return
        self.srd(12, P_WUV, 512 * 8192)
        self.srd(16, P_BWO, 4096 * 1152)
        a(f"""
        s_and_b32 s33, s2, 31
        s_lshl_b32 s34, s33, 8
        s_lshl_b32 s35, s3, 19
        s_add_u32 s34, s34, s35
        s_lshl_b32 s35, s3, 14
        v_lshlrev_b32 v5, 1, v1
        v_xor_b32 v5, v5, v2
        v_lshlrev_b32 v5, 4, v5
        v_lshl_add_u32 v5, v1, 13, v5
        v_xor_b32 v6, 0x80, v5
        """)
        a(f"""
        s_lshr_b32 s40, s3, 1                ; b
        s_lshl_b32 s36, s40, 4
        s_add_u32 s36, s36, 64
        v_add_u32 v13, s36, v2
        v_mov_b32 v14, v13
        """)
        self.flag_wg(14)
        if self.o.egb >= 1: self.get_tag(16)
        if self.o.egb >= 2: self.check_flags(14, 16)
        for i in range(16):
            a("s_mov_b32 m0, s35")
            self.dma(5 + (i & 1), "s[12:15]", "s34", 0, self.o.DB)
            if i != 15: a("s_add_u32 s34, s34, 32768\ns_add_u32 s35, s35, 1024")
        a(f"""
        v_lshrrev_b32 v10, 2, v0
        v_and_b32 v11, 7, v10
        v_xor_b32 v11, s3, v11
        v_lshlrev_b32 v11, 5, v11
        v_lshl_add_u32 v11, v10, 8, v11
        v_and_b32 v10, 3, v0
        v_lshl_add_u32 v8, v10, 3, v11
        v_add_u32 v9, 0x10000, v8
        s_waitcnt vmcnt(0)
        s_barrier
        """)
        WV = 192
        for s in range(16):
            off = s * 8192; base = 9 if off >> 16 else 8; off &= 0xffff
            r = WV + 4 * s
            a(f"ds_read_b64_tr_b16 v[{r}:{r+1}], v{base} offset:{off}")
            a(f"ds_read_b64_tr_b16 v[{r+2}:{r+3}], v{base} offset:{off + 4096}")
            if s % 4 == 3: a("s_waitcnt lgkmcnt(7)")
        a("s_waitcnt lgkmcnt(0)\ns_barrier")
        self.stamp(0, 20)
        a(f"""
        s_mul_i32 s36, s33, {128 * 1152}
        s_mul_i32 s37, s3, {1024 if self.o.wcol else 18 * 1024}
        s_add_u32 s36, s36, s37
        """)
        if self.o.wcol:
            for j in range(4):
                for p in range(5 if j < 2 else 4):
                    off = j * 8192 + p * 32768
                    a(f"s_add_u32 s34, s36, {off}\ns_add_u32 m0, s37, {off}")
                    self.dma(4, "s[16:19]", "s34", 0, self.o.DB)
        else:
          for i in range(18):
            if i % 2 == 0: a("s_mov_b32 m0, s37")
            self.dma(4, "s[16:19]", "s36", (i % 2) * 1024, self.o.DB)
            if i % 2 == 1: a("s_add_u32 s36, s36, 2048\ns_add_u32 s37, s37, 2048")
        a(f"""
        v_lshlrev_b32 v5, 3, v1
        v_bfe_u32 v8, v0, 2, 2
        v_add_u32 v5, v5, v8
        v_mul_u32_u24 v5, 1152, v5
        v_and_b32 v8, 3, v0
        v_lshl_add_u32 v5, v8, 3, v5
        s_and_b32 s39, s3, 3
        s_lshl_b32 s39, s39, 5
        s_add_u32 s39, s39, 1024
        v_add_u32 v10, s39, v5
        s_lshl_b32 s39, s3, 7
        v_add_u32 v5, s39, v5
        v_add_u32 v9, {64 * 1152}, v5
        v_add_u32 v11, {64 * 1152}, v10
        s_waitcnt vmcnt(0)
        s_barrier
        """)
        WO = 112
        for ct in range(5):
            for j in range(4):
                r = WO + 16 * ct + 4 * j
                if ct < 4: base = 5 if j < 2 else 9; off = ct * 32
                else: base = 10 if j < 2 else 11; off = 0
                off += (j & 1) * 32 * 1152
                a(f"ds_read_b64_tr_b16 v[{r}:{r+1}], v{base} offset:{off}")
                a(f"ds_read_b64_tr_b16 v[{r+2}:{r+3}], v{base} offset:{off + 4 * 1152}")
            a("s_waitcnt lgkmcnt(7)")
        CTXC = L_SM; CST = 1088
        CTX = L_SM + 8 * CST; XST = 272
        a(f"""
        v_lshlrev_b32 v5, 10, v13
        s_lshl_b32 s36, s33, 3
        s_add_u32 s36, s36, {WS_T1S + 512}
        s_lshl_b32 s37, s3, 18               ; (16b + 8half) * 32768
        s_lshl_b32 s39, s33, 10
        s_add_u32 s37, s37, s39
        s_add_u32 s37, s37, {WS_BP}
        s_mul_i32 s39, s3, {CST}
        s_add_u32 s39, s39, {CTXC}
        v_add_u32 v8, s39, v4
        v_and_b32 v9, 3, v2
        v_lshlrev_b32 v9, 1, v9
        v_bfe_u32 v10, v0, 2, 1
        v_add_u32 v9, v9, v10
        v_mul_u32_u24 v9, {CST}, v9
        v_lshl_add_u32 v9, v1, 4, v9
        v_add_u32 v9, {CTXC}, v9
        v_and_b32 v10, 3, v2
        v_mul_u32_u24 v10, {XST}, v10
        v_lshl_add_u32 v10, v1, 3, v10
        s_lshl_b32 s39, s3, 5
        s_add_u32 s39, s39, {CTX}
        v_add_u32 v10, s39, v10
        v_lshrrev_b32 v11, 2, v2
        v_mul_u32_u24 v11, {XST}, v11
        v_lshl_add_u32 v11, v1, 4, v11
        v_add_u32 v11, {CTX}, v11
        s_mul_i32 s38, s33, 9216
        s_add_u32 s38, s38, {WS_YB}
        s_lshl_b32 s39, s3, 8
        s_add_u32 s39, s39, s38
        s_add_u32 s39, s39, 8192
        s_lshl_b32 s42, s3, 10
        s_add_u32 s38, s38, s42
        v_lshlrev_b32 v12, 2, v0
        s_and_b32 s42, s3, 1
        s_lshl_b32 s42, s42, 3
        """)
        if self.o.egb < 1: self.get_tag(16)
        if self.o.egb < 2: self.check_flags(14, 16)
        self.stamp(1, 20)
        a("s_mov_b64 exec, 0xffff")
        self.poll(["buffer_load_dwordx2 v[18:19], v5, s[4:7], s36 offen sc1"], [18, 19], 16, sleep=2)
        G = 48
        for s in range(8):
            a(f"buffer_load_dwordx4 {vr(G + 4*s)}, v4, s[4:7], s37 offen sc1\ns_add_u32 s37, s37, 32768")
        self.stamp(2, 24)
        a("v_mov_b32 v20, v18")
        for d in ("quad_perm:[1,0,3,2]", "quad_perm:[2,3,0,1]", "row_ror:4", "row_ror:8"):
            a(f"v_max_f32_dpp v20, v20, v20 {d} {DPPM}")
        a("v_sub_f32 v21, v18, v20\nv_exp_f32 v21, v21\nv_mul_f32 v22, v21, v19")
        for d in ("quad_perm:[1,0,3,2]", "quad_perm:[2,3,0,1]", "row_ror:4", "row_ror:8"):
            a(f"v_add_f32_dpp v22, v22, v22 {d} {DPPM}")
        a("v_rcp_f32 v22, v22\nv_mul_f32 v21, v21, v22")
        AC = 24
        ext = 1 if self.stamps else 0
        for s in range(8):
            r = G + 4 * s
            a(f"v_readlane_b32 s41, v21, s42\ns_add_u32 s42, s42, 1")
            a(f"s_waitcnt vmcnt({7 - s + ext})")
            for w in range(4):
                a(f"v_lshlrev_b32 v{32+2*w}, 16, v{r+w}\nv_and_b32 v{33+2*w}, 0xffff0000, v{r+w}")
            for e in range(8):
                if s == 0: a(f"v_mul_f32 v{AC+e}, s41, v{32+e}")
                else: a(f"v_fmac_f32 v{AC+e}, s41, v{32+e}")
        for w in range(4): a(f"v_cvt_pk_bf16_f32 v{32+w}, v{AC+2*w}, v{AC+2*w+1}")
        a("ds_write_b128 v8, v[32:35]")
        self.stamp(3, 20)
        a("s_waitcnt lgkmcnt(0)\ns_barrier")
        for s in range(12):
            a(f"ds_read_b128 {vr(G + 4*s)}, v9 offset:{64*s}")
        for s in range(16):
            if s + 12 < 16: a(f"ds_read_b128 {vr(G + 4*(s+12))}, v9 offset:{64*(s+12)}")
            a(f"s_waitcnt lgkmcnt({min(12, 15 - s)})")
            acc = 24 + 4 * (s & 1)
            a(f"{MF} {vr(acc)}, {vr(WV + 4*s)}, {vr(G + 4*s)}, {'0' if s < 2 else vr(acc)}")
        for r in range(4): a(f"v_add_f32 v{24+r}, v{24+r}, v{28+r}")
        for r in range(4): a(f"v_add_f32_dpp v{24+r}, v{24+r}, v{24+r} row_ror:4 {DPPM}")
        a("""
        v_cvt_pk_bf16_f32 v32, v24, v25
        v_cvt_pk_bf16_f32 v33, v26, v27
        ds_write_b64 v10, v[32:33]
        s_waitcnt lgkmcnt(0)
        s_barrier
        """)
        O = 24
        for j in range(4): a(f"ds_read_b128 {vr(O + 4*j)}, v11 offset:{64*j}")
        ACC = 64
        for j in range(4):
            a(f"s_waitcnt lgkmcnt({3 - j})")
            for ct in range(5):
                acc = ACC + 4 * ct
                a(f"{MF} {vr(acc)}, {vr(O + 4*j)}, {vr(WO + 16*ct + 4*j)}, {'0' if j == 0 else vr(acc)}")
        Y = 48
        for ct in range(5): a(f"v_min_u32 v{Y+ct}, -2, v{ACC + 4*ct}")
        sk = a.new_label(self.L("L_bh2s"))
        a(f"""
        buffer_store_dwordx4 {vr(Y)}, v4, s[4:7], s38 offen sc1
        s_cmp_ge_u32 s3, 4
        s_cbranch_scc1 {sk}
        buffer_store_dword v{Y+4}, v12, s[4:7], s39 offen sc1
        {sk}:
        """)
        self.stamp(4, 20)

    def role_a(self):
        self.role = "a"
        a = self.a; L = self.L
        a("s_sub_u32 s44, s3, 4")
        if "CLR" in self.en and self.fused: self.clear_finish()
        a(f"""
        s_lshr_b32 s28, s2, 5
        s_cmp_eq_u32 s28, 6
        s_cbranch_scc1 {L('L_bh2')}
        s_lshr_b32 s28, s2, 6
        s_cmp_eq_u32 s28, 1
        s_cbranch_scc1 {L('L_ba_a')}
        """)
        a.label(L("L_amain"))
        if "A" in self.en:
            self.a_main()
        elif "RED" in self.en:
            a(f"s_cmp_lg_u32 s44, 0\ns_cbranch_scc1 {L('L_fin')}")
        if "RED" in self.en:
            self.reducer()

    def a_main(self):
        a = self.a; L = self.L; D = self.o.D
        gb, eb = [int(x) for x in self.o.gb.split(",")], [int(x) for x in self.o.eb.split(",")]
        ub = [b for b in range(8, 20) if b not in gb + eb]
        if self.o.ub: ub = [int(x) for x in self.o.ub.split(',')]
        assert sorted(ub + gb + eb) == list(range(8, 20))
        eoff = lambda e: sum(((e >> i) & 1) << eb[i] for i in range(3))
        runs = []
        for i, b in enumerate(ub):
            if runs and runs[-1][1] + runs[-1][2] == b: runs[-1][2] += 1
            else: runs.append([i, b, 1])
        def uoff(sr):
            t = [f"s_mov_b32 s29, 0"]
            for (sb, db, ln) in runs:
                t.append(f"s_bfe_u32 s57, {sr}, {(ln << 16) | sb}\ns_lshl_b32 s57, s57, {db}\ns_or_b32 s29, s29, s57")
            t.append(f"s_mov_b32 {sr}, s29")
            return "\n".join(t)
        bases = sorted({eoff(e) & ~4095 for e in range(8)})
        vbase = {b: 240 + i for i, b in enumerate(bases)}
        assert D <= 16
        self.srd(12, P_K, 64 << 20); self.srd(16, P_V, 64 << 20)
        a(f"""
        s_lshl_b32 s49, s45, 20
        s_mul_i32 s33, s45, {self.o.rot}      ; rotation
        s_cmp_lt_u32 s45, 32
        s_cselect_b32 s32, 12, 16
        s_lshl_b32 s30, s46, 2
        s_add_u32 s30, s30, s44
        s_add_u32 s30, s30, s33
        s_add_u32 s31, s30, s32
        s_and_b32 s30, s30, 127
        s_and_b32 s31, s31, 127
        {uoff("s30")}
        {uoff("s31")}
        s_add_u32 s30, s30, s49
        s_add_u32 s31, s31, s49
        s_lshl_b32 s28, s46, 2
        s_add_u32 s28, s28, s44
        s_sub_u32 s28, s28, s32
        s_sub_u32 s28, s28, 1
        v_mov_b32 v224, s28
        s_mul_i32 s32, s32, 3
        s_add_u32 s33, s33, s32
        s_sub_u32 s32, 128, s32
        s_lshl_b32 s35, s44, 3
        s_lshr_b32 s35, {sum(x << (8 * i) for i, x in enumerate(self.o.tap))}, s35
        s_and_b32 s35, s35, 0xff
        s_sub_u32 s35, s32, s35
        s_mov_b32 s34, 1
        s_lshl_b32 s48, s45, 12
        s_add_u32 s48, s48, {WS_OP + 768}
        s_mov_b32 s50, 0x05040100
        s_mov_b32 s51, 0x07060302
        v_lshlrev_b32 v4, 4, v0
        v_mov_b32 v1, v4
        v_add_u32 v2, 4096, v4
        v_mov_b32 v3, {CSC}
        v_mov_b32 v4, {NEGMAX}
        v_mov_b32 v5, 0
        v_and_b32 v6, 15, v0
        v_and_b32 v7, 1, v0
        v_lshlrev_b32 v6, 4, v6
        v_lshl_add_u32 v6, v7, 8, v6
        v_add_u32 v6, {L_QA}, v6
        v_xor_b32 v7, 16, v6
        v_cmp_lt_u32 vcc, 31, v0
        v_mov_b32 v226, 0
        v_mov_b32 v227, {L_CNT + 4 * 10}
        """)
        a(f"""
        v_and_b32 v240, 15, v0
        v_lshlrev_b32 v240, 4, v240
        v_bfe_u32 v2, v0, 4, 1
        v_lshl_add_u32 v240, v2, {gb[0]}, v240
        v_bfe_u32 v2, v0, 5, 1
        v_lshl_add_u32 v240, v2, {gb[1]}, v240
        """)
        for b, r in vbase.items():
            if b: a(f"v_add_u32 v{r}, {b}, v240")
        for r in range(32, 64): a(f"v_mov_b32 v{r}, 0")
        a(f"""
        v_lshrrev_b32 v228, 4, v0
        v_and_b32 v229, 1, v0
        v_lshl_add_u32 v228, v228, 1, v229
        v_lshlrev_b32 v228, 4, v228
        s_lshl_b32 s53, s44, 10
        s_add_u32 s53, s53, {L_ACOMB}
        v_add_u32 v228, s53, v228
        s_lshl_b32 s53, s44, 4
        s_add_u32 s53, s53, {L_AST}
        v_lshlrev_b32 v229, 3, v229
        v_add_u32 v230, s53, v229
        v_add_u32 v231, {L_AST}, v229
        v_bfe_u32 v232, v0, 3, 2
        v_and_b32 v233, 7, v0
        v_lshlrev_b32 v233, 4, v233
        v_lshl_add_u32 v233, v232, 8, v233
        v_add_u32 v233, {L_ACOMB}, v233
        v_and_b32 v234, 1, v0
        v_lshlrev_b32 v234, 8, v234
        v_lshl_add_u32 v234, v232, 6, v234
        v_bfe_u32 v232, v0, 1, 2
        v_lshl_add_u32 v234, v232, 4, v234   ; h*256 + j*64 + g'*16
        v_cndmask_b32 v234, v234, v1, vcc
        v_mov_b32 v236, {L_CNT + 4 * 15}
        v_mov_b32 v237, 1
        s_lshl_b32 s54, s47, 10
        s_add_u32 s54, s54, {WS_OP}
        """)
        KA, VA, KB, VB = 96, 128, 160, 192
        def issue(srd, base, e, soff, d=None):
            a(f"s_waitcnt vmcnt({(d or D) - 1})")
            a(f"buffer_load_dwordx4 {vr(base + 4*e)}, v{vbase[eoff(e) & ~4095]}, {srd}, {soff} offen offset:{eoff(e) & 4095} nt")
        def issues(srd, base, es, soff):
            if True:
                for e in es: issue(srd, base, e, soff)
                return
            lo = a.new_label(L("L_ilo")); en = a.new_label(L("L_ien"))
            a(f"s_cmp_lg_u32 s34, 0\ns_cbranch_scc1 {lo}")
            for e in es: issue(srd, base, e, soff)
            a(f"s_branch {en}\n{lo}:")
            for e in es: issue(srd, base, e, soff, self.o.Dlo)
            a.label(en)
        def grab():
            a(f"""
            v_mov_b32 v224, s34
            s_mov_b64 exec, 1
            buffer_atomic_add v224, v226, s[4:7], s48 offen sc0 sc1
            s_mov_b64 exec, -1
            """)
        def gate_wait():
            if not self.fused: return
            lab = a.new_label(L("L_gw"))
            a(f"""
            s_mov_b32 s29, {SPIN * 8}
            {lab}:
            ds_read_b32 v225, v227
            s_sub_u32 s29, s29, 1
            s_cbranch_scc1 {lab}_x
            s_waitcnt lgkmcnt(0)
            v_readfirstlane_b32 s28, v225
            s_cmp_gt_u32 s28, s44
            s_cbranch_scc1 {lab}_x
            s_sleep 1
            s_branch {lab}
            {lab}_x:
            s_waitcnt lgkmcnt(0)
            """)
        def ring(d):
            for e in range(8): issue("s[12:15]", KA, e, "s30", d)
            for e in range(8): issue("s[16:19]", VA, e, "s30", d)
            for e in range(8): issue("s[12:15]", KB, e, "s31", d)
            for e in range(8): issue("s[16:19]", VB, e, "s31", d)
        sk = a.new_label(L("L_t3q"))
        a(f"s_lshr_b32 s28, s2, 5\ns_cmp_lg_u32 s28, 4\ns_cbranch_scc1 {sk}\ns_cmp_lg_u32 s3, 4\ns_cbranch_scc1 {sk}")
        self.fetch_q(64)
        a.label(sk)
        if self.o.kvpf:
            a("s_mov_b64 exec, 1\nbuffer_load_dword v96, v240, s[12:15], s30 offen nt\nbuffer_load_dword v97, v240, s[16:19], s30 offen nt\ns_mov_b64 exec, -1")
        gate_wait()
        self.stamp(9)
        ring(self.o.D0)
        if self.o.vlag: a(f"s_mov_b32 s58, {OOB}")
        self.wait_lds(9, 1, 28, 1)
        a("ds_read_b128 v[8:11], v6\nds_read_b128 v[12:15], v7")
        self.get_tag(28)
        a("s_waitcnt lgkmcnt(0)")
        ext = 0
        U = 16; P = 24; ACC = 32; T = 64
        def body(K, V, mode):
            if mode == "e1": a("s_waitcnt vmcnt(8)")
            for half in range(2):
                es = range(4 * half, 4 * half + 4)
                for e in es: a(f"v_dot2_f32_bf16 v{U+e}, v{K+4*e}, v8, 0")
                for w in range(1, 4):
                    for e in es: a(f"v_dot2c_f32_bf16 v{U+e}, v{K+4*e+w}, v{8+w}")
                for w in range(4):
                    for e in es: a(f"v_dot2c_f32_bf16_dpp v{U+e}, v{K+4*e+w}, v{12+w} quad_perm:[1,0,3,2] {DPPM}")
                if mode == "loop":
                    if half == 0 and self.o.gpos == 0: grab()
                    issues("s[12:15]", K, es, "s30")
            for d in ("quad_perm:[2,3,0,1]", "row_ror:4", "row_ror:8"):
                for e in range(8): a(f"v_add_f32_dpp v{U+e}, v{U+e}, v{U+e} {d} {DPPM}")
            for e in range(8): a(f"v_mul_f32 v{U+e}, v{U+e}, v3")
            a(f"""
            v_max3_f32 v28, v{U}, v{U+1}, v{U+2}
            v_max3_f32 v28, v28, v{U+3}, v{U+4}
            v_max3_f32 v28, v28, v{U+5}, v{U+6}
            v_max3_f32 v28, v28, v{U+7}, v4
            """)
            self.xg_reduce("v_max_f32", 28, 29)
            a("v_sub_f32 v29, v4, v28")
            for e in range(8): a(f"v_sub_f32 v{U+e}, v{U+e}, v28")
            a("v_exp_f32 v29, v29")
            for e in range(8): a(f"v_exp_f32 v{U+e}, v{U+e}")
            a(f"""
            v_mov_b32 v4, v28
            v_cmp_neq_f32 vcc, 1.0, v29
            v_fma_f32 v5, v5, v29, v{U}
            v_add_f32 v30, v{U+1}, v{U+2}
            v_add_f32 v31, v{U+3}, v{U+4}
            v_add_f32 v5, v5, v{U+5}
            v_add_f32 v30, v30, v{U+6}
            v_add_f32 v31, v31, v{U+7}
            v_add_f32 v5, v5, v30
            v_add_f32 v5, v5, v31
            """)
            for w in range(4): a(f"v_cvt_pk_bf16_f32 v{P+w}, v{U+2*w}, v{U+2*w+1}")
            sk = a.new_label(L("L_nors"))
            a(f"s_cbranch_vccz {sk}")
            for r in range(32): a(f"v_mul_f32 v{ACC+r}, v29, v{ACC+r}")
            a.label(sk)
            if mode == "e1": self.xg_reduce("v_add_f32", 5, 29)
            if mode == "loop" and self.o.gpos == 1: grab()
            for q in range(4):
                if mode == "e1": a(f"s_waitcnt vmcnt({6 - 2*q})")
                for i in range(8):
                    a(f"v_perm_b32 v{T+4*i+q}, v{V + 4*(2*q+1) + (i >> 1)}, v{V + 4*(2*q) + (i >> 1)}, s{50 + (i & 1)}")
                if mode == "loop":
                    issues("s[16:19]", V, (2*q, 2*q+1), "s58" if self.o.vlag else "s30")
                    if q == 3 and self.o.vlag: a("s_mov_b32 s58, s30")
            for i in range(8):
                a(f"{MF} {vr(ACC+4*i)}, {vr(T+4*i)}, {vr(P)}, {vr(ACC+4*i)}")
        def head(exit_label):
            a(f"""
            s_waitcnt vmcnt({16 if self.o.gpos == 0 else 8})
            v_readfirstlane_b32 s30, v224
            s_add_u32 s28, s30, 1
            s_cmp_ge_i32 s28, s32
            s_cbranch_scc1 {exit_label}
            s_cmp_eq_u32 s34, 0
            s_cbranch_scc1 {exit_label}
            s_cmp_lt_i32 s28, s35
            s_cselect_b32 s34, 1, 0
            s_add_u32 s30, s28, s33
            s_and_b32 s30, s30, 127
            {uoff("s30")}
            s_add_u32 s30, s30, s49
            """)
            if self.o.prog and self.stamps:
                a(f"""
                s_memrealtime s[92:93]
                s_lshl_b32 s94, s45, 7
                s_add_u32 s94, s94, s28
                s_lshl_b32 s94, s94, 7
                s_add_u32 s94, s94, {202 << 20}
                s_waitcnt lgkmcnt(0)
                v_mov_b32 v250, s92
                v_mov_b32 v251, s93
                s_mov_b64 exec, 1
                buffer_store_dwordx2 v[250:251], v226, s[4:7], s94 offen
                s_mov_b64 exec, -1
                """)
        lp = a.new_label(L("L_aloop")); eA = a.new_label(L("L_aeA")); eB = a.new_label(L("L_aeB")); dn = a.new_label(L("L_adone"))
        a.label(lp)
        head(eA); body(KA, VA, "loop")
        head(eB); body(KB, VB, "loop")
        a(f"s_branch {lp}")
        a.label(eA)
        if self.o.vlag:
            for e in range(8): issue("s[16:19]", 64, e, "s58")
            a("s_waitcnt vmcnt(0)")
        body(KA, VA, "e0"); body(KB, VB, "e1")
        a(f"s_branch {dn}")
        a.label(eB)
        if self.o.vlag:
            for e in range(8): issue("s[16:19]", 64, e, "s58")
            a("s_waitcnt vmcnt(0)")
        body(KB, VB, "e0"); body(KA, VA, "e1")
        a.label(dn)
        a("s_mov_b64 exec, 3\nds_write_b64 v230, v[4:5]")
        a("s_mov_b32 exec_lo, 0x00030003\ns_mov_b32 exec_hi, 0x00030003")
        for i in range(8): a(f"ds_write_b128 v228, {vr(ACC+4*i)} offset:{128*i}")
        nc = a.new_label(L("L_nocomb"))
        a(f"""
        s_mov_b64 exec, 1
        ds_add_rtn_u32 v238, v236, v237
        s_mov_b64 exec, -1
        s_waitcnt lgkmcnt(0)
        v_readfirstlane_b32 s55, v238
        s_cmp_lg_u32 s55, 3
        s_cbranch_scc1 {nc}
        """)
        for w in range(4): a(f"ds_read_b64 v[{16+2*w}:{17+2*w}], v231 offset:{16*w}")
        for w in range(4):
            a(f"ds_read_b128 {vr(32+8*w)}, v233 offset:{1024*w}\nds_read_b128 {vr(36+8*w)}, v233 offset:{1024*w+128}")
        a(f"""
        s_waitcnt lgkmcnt(8)
        v_max3_f32 v24, v16, v18, v20
        v_max_f32 v24, v24, v22
        v_sub_f32 v16, v16, v24
        v_sub_f32 v18, v18, v24
        v_sub_f32 v20, v20, v24
        v_sub_f32 v22, v22, v24
        v_exp_f32 v16, v16
        v_exp_f32 v18, v18
        v_exp_f32 v20, v20
        v_exp_f32 v22, v22
        v_mul_f32 v25, v16, v17
        v_fmac_f32 v25, v18, v19
        v_fmac_f32 v25, v20, v21
        v_fmac_f32 v25, v22, v23
        s_waitcnt lgkmcnt(6)
        """)
        for e in range(8): a(f"v_mul_f32 v{64+e}, v16, v{32+e}")
        for w in range(1, 4):
            a(f"s_waitcnt lgkmcnt({6 - 2*w})")
            for e in range(8): a(f"v_fmac_f32 v{64+e}, v{16+2*w}, v{32+8*w+e}")
        for w in range(4): a(f"v_cvt_pk_bf16_f32 v{72+w}, v{64+2*w}, v{65+2*w}")
        a(f"""
        v_mov_b32_dpp v72, v24 quad_perm:[0,0,0,0] row_mask:0xc bank_mask:0xf
        v_mov_b32_dpp v73, v25 quad_perm:[0,0,0,0] row_mask:0xc bank_mask:0xf
        v_mov_b32_dpp v74, v24 quad_perm:[1,1,1,1] row_mask:0xc bank_mask:0xf
        v_mov_b32_dpp v75, v25 quad_perm:[1,1,1,1] row_mask:0xc bank_mask:0xf
        """)
        self.sanitize([72, 73, 74, 75])
        a(f"""
        s_mov_b32 exec_hi, 0xff
        buffer_store_dwordx4 v[72:75], v234, s[4:7], s54 offen sc1
        s_mov_b64 exec, -1
        """)
        self.stamp(11)
        a(f"s_branch {L('L_fin')}")
        a.label(nc)
        a(f"s_cmp_lg_u32 s55, 0\ns_cbranch_scc1 {L('L_fin')}")

    def reducer(self):
        a = self.a; L = self.L
        self.srd(12, P_OUT, 4608 * 2)
        t2 = a.new_label(L("L_rt2")); tj = a.new_label(L("L_rtj"))
        a(f"""
        s_cmp_ge_u32 s2, 72
        s_cbranch_scc1 {L('L_fin')}
        s_cmp_ge_u32 s2, 36
        s_cselect_b32 s56, 36, 0
        s_cselect_b32 s57, {WS_YB - WS_YA}, 0
        s_cselect_b32 s60, 1152, 0
        s_movk_i32 s61, 224
        s_cselect_b32 s61, 192, s61
        s_sub_u32 s56, s2, s56               ; r
        s_add_u32 s57, s57, {WS_YA}
        s_mul_i32 s58, s56, 7282
        s_lshr_b32 s58, s58, 16              ; b = r/9
        s_mul_i32 s59, s58, 9
        s_sub_u32 s59, s56, s59              ; grp
        s_mul_i32 s62, s58, 2304
        s_add_u32 s60, s60, s62
        s_lshl_b32 s62, s59, 7
        s_add_u32 s60, s60, s62
        s_lshl_b32 s62, s59, 10
        s_add_u32 s57, s57, s62
        v_lshrrev_b32 v1, 4, v0
        v_and_b32 v2, 15, v0
        v_mul_u32_u24 v3, 9216, v1
        v_and_b32 v6, 31, v0
        v_add_u32 v6, s61, v6
        s_cmp_eq_u32 s59, 8
        s_cbranch_scc1 {t2}
        s_lshl_b32 s62, s58, 8
        v_lshl_add_u32 v3, v2, 4, v3
        v_lshlrev_b32 v5, 1, v0
        s_branch {tj}
        {t2}:
        s_lshl_b32 s62, s58, 6
        v_lshrrev_b32 v4, 2, v2
        v_lshl_add_u32 v3, v4, 8, v3
        v_and_b32 v4, 3, v2
        v_lshl_add_u32 v3, v4, 4, v3
        v_lshl_add_u32 v5, v2, 2, v1
        v_lshlrev_b32 v5, 1, v5
        {tj}:
        s_add_u32 s57, s57, s62
        """)
        for k in range(8): a(f"s_add_u32 s{16+k}, s57, {k * 4 * 9216}")
        if self.o.outpf: a("buffer_load_ushort v46, v5, s[12:15], s60 offen sc1")
        self.flag_wg(6)
        self.check_flags(6, 44)
        self.stamp(12)
        self.fpoll([f"buffer_load_dwordx4 {vr(8+4*k)}, v3, s[4:7], s{16+k} offen sc1" for k in range(8)], range(8, 40), 44, depth=self.o.pdr or self.o.pd, lsleep=self.o.slr)
        for c in range(16): a(f"v_add_f32 v{48+c}, v{8+c}, v{24+c}")
        for st in (8, 4):
            for c in range(st): a(f"v_add_f32 v{48+c}, v{48+c}, v{48+st+c}")
        a("""
        v_permlane32_swap_b32 v48, v50
        v_permlane32_swap_b32 v49, v51
        v_add_f32 v48, v48, v50
        v_add_f32 v49, v49, v51
        v_permlane16_swap_b32 v48, v49
        v_add_f32 v48, v48, v49
        v_cvt_pk_bf16_f32 v48, v48, v48
        buffer_store_short v48, v5, s[12:15], s60 offen
        """)
        self.stamp(14)
        if self.fused and not self.o.nowait:
            a(f"""
            s_cmp_lg_u32 s2, 0
            s_cbranch_scc1 {L('L_fin')}
            v_mov_b32 v52, s{S_TAG}
            v_mov_b32 v53, 0
            s_mov_b64 exec, 1
            buffer_store_dword v52, v53, s[4:7], 0 offen sc1
            s_mov_b64 exec, -1
            """)

DESC = """; ---------------------------------------------------------------------------------------------
; ---------------------------------------------------------------------------------------------
"""
def emit(fname, o):
    if o.mode == "fused":
        g = Gen({"CLR", "PQ", "AT", "BH1", "BH2", "BA", "A", "RED"}, True, o)
        a = g.build()
        txt = kernel_file([(NAME + "_kernel", (256, 1, 1), (512, 1, 1), LDS_SIZE)], [(NAME + "_kernel", a.text(), 256, 102, 256)], DESC)
    else:
        phases = [("k0", {"CLR"}), ("k1", {"PQ"}), ("k2", {"BH1", "A"}), ("k3", {"BA", "AT"}), ("k4", {"BH2"}), ("k5", {"RED"})]
        ks = []; ls = []
        for nm, en in phases:
            g = Gen(en, False, o, tag="_" + nm)
            a = g.build()
            ks.append((nm + "_kernel", a.text(), 256, 102, 256)); ls.append((nm + "_kernel", (256, 1, 1), (512, 1, 1), LDS_SIZE))
        txt = kernel_file(ls, ks)
    open(fname, "w").write(txt)

if __name__ == "__main__":
    import argparse
    ap = argparse.ArgumentParser()
    ap.add_argument("out"); ap.add_argument("--mode", default="fused"); ap.add_argument("-D", type=int, default=10); ap.add_argument("--DS", type=int, default=16)
    ap.add_argument("--stamps", action="store_true"); ap.add_argument("--D0", type=int, default=10); ap.add_argument("--g", default="2,2,4"); ap.add_argument("--gat", type=int, default=0); ap.add_argument("--gbh1", type=int, default=0); ap.add_argument("--gbh2", type=int, default=0); ap.add_argument("--pd", type=int, default=1); ap.add_argument("--atint", type=int, default=1); ap.add_argument("--outpf", type=int, default=0); ap.add_argument("--vlag", type=int, default=0); ap.add_argument("--kvpf", type=int, default=0); ap.add_argument("--ub", default=""); ap.add_argument("--gb", default="15,16"); ap.add_argument("--eb", default="17,18,13"); ap.add_argument("--ccol", type=int, default=1); ap.add_argument("--wcol", type=int, default=1); ap.add_argument("--tap", default="0,0,0,0"); ap.add_argument("--rt3", type=int, default=4); ap.add_argument("--rat", type=int, default=2); ap.add_argument("--nowait", action="store_true"); ap.add_argument("--eg", type=int, default=2); ap.add_argument("--ega", type=int, default=2); ap.add_argument("--egb", type=int, default=2); ap.add_argument("--atl", type=int, default=1); ap.add_argument("--sla", type=int, default=1); ap.add_argument("--slr", type=int, default=1); ap.add_argument("--pde", type=int, default=1); ap.add_argument("--sle", type=int, default=2); ap.add_argument("--gpos", type=int, default=0); ap.add_argument("--pdr", type=int, default=0); ap.add_argument("--atgate", type=int, default=9); ap.add_argument("--prog", action="store_true"); ap.add_argument("--dbg", action="store_true"); ap.add_argument("--t2e", type=int, default=0); ap.add_argument("--rot", type=int, default=0); ap.add_argument("--Dlo", type=int, default=0); ap.add_argument("--gpq", type=int, default=0); ap.add_argument("--DC", type=int, default=8); ap.add_argument("--DB", type=int, default=8); ap.add_argument("--atw", type=int, default=4); ap.add_argument("--cap", type=int, default=1000); ap.add_argument("--qfirst", type=int, default=192); ap.add_argument("--cheap", type=int, default=1); ap.add_argument("--sprio", type=int, default=2); ap.add_argument("--bh2hold", type=int, default=0); ap.add_argument("--sh1", default=""); ap.add_argument("--sh2", default=""); ap.add_argument("--NC0", type=int, default=16)
    x = ap.parse_args()
    x.Dlo = x.Dlo or x.D
    x.tap = [int(v) for v in x.tap.split(',')]
    x.g = [int(v) for v in x.g.split(",")]
    if x.sh1: SH1 = tuple(int(v) for v in x.sh1.split(","))
    if x.sh2: SH2 = tuple(int(v) for v in x.sh2.split(","))
    assert sum(SH1) == 128 and sum(SH2) == 128
    emit(x.out, x)
```
